```python
import torch

def _softmax(x, axis=-1):
    return torch.softmax(x, dim=axis)
def _gelu(x):
    return torch.nn.functional.gelu(x, approximate="tanh")
def _silu(x):
    return torch.nn.functional.silu(x)
def _sigmoid(x):
    return torch.sigmoid(x)
def _layernorm(x, axis=-1, eps=1e-5):
    m = x.mean(dim=axis, keepdim=True)
    v = x.var(dim=axis, keepdim=True, unbiased=False)
    return (x - m) / torch.sqrt(v + eps)
def _scatter_add(tgt, idx, src, axis=0):
    return tgt.clone().index_add_(axis, idx, src)
def _segment_sum(src, seg, n):
    out = torch.zeros((n,) + src.shape[1:], dtype=src.dtype)
    return out.index_add_(0, seg, src)
def _pad(x, pw):
    flat = tuple(v for pair in reversed(pw) for v in pair)
    return torch.nn.functional.pad(x, flat)

kernel_name = 'standalone__spectral_conv_chebnet__graph'

def setup_inputs():

    _w = (lambda a: (lambda t: t.to(torch.bfloat16) if t.is_floating_point() else t)(torch.as_tensor(a)))
    N, deg, D, K = 50000, 16, 64, 3
    E = N * deg
    src = (lambda lo, hi, *s: torch.randint(lo, hi, s))(0, N, E).to(torch.int64)
    dst = (lambda lo, hi, *s: torch.randint(lo, hi, s))(0, N, E).to(torch.int64)
    deg_cnt = torch.bincount(dst, minlength=N).to(float) + 1.0
    dis = (1.0 / (lambda _x: torch.sqrt(torch.as_tensor(_x)))(deg_cnt)).to(float)
    ew = -(dis[src] * dis[dst])
    return {
        "x": _w((lambda *s: torch.randn(*s, dtype=torch.bfloat16) * 0.05)(N, D)),
        "src": _w(src),
        "dst": _w(dst),
        "ew": _w(ew),
        "w": _w((lambda *s: torch.randn(*s, dtype=torch.bfloat16) * 0.05)(K, D, D) * 0.2),
    }

def reference(x, src, dst, ew, w):
    N, K = x.shape[0], w.shape[0]
    Ts = [x]
    if K > 1:
        Ts.append(_segment_sum(ew[:, None] * x[src], dst, N))
    for k in range(2, K):
        Tk = 2.0 * _segment_sum(ew[:, None] * Ts[-1][src], dst, N) - Ts[-2]
        Ts.append(Tk)
    T = torch.stack(Ts, 0)
    return torch.einsum('knd,kde->ne', T, w)
```

```python
import sys

N = 50000; E = 800000
R = 200
NB = 250
CH = 4096
NC = 196
S = 48
NIT = S // 8
NW = 13
NT = NW * 64

WS_ENT = 0x0000000
WS_SEG = 0x0800000
WS_WT  = 0x0900000
WS_CSR = 0x1000000
CSR_STRIDE = 0x10000
WS_T1  = 0x2000000
WS_PART = 0x3000000
WS_SIZE = 268435456

L_CNT = 0
L_OFF = 1024
L_MAX = 2048
L_SORT = 3072
SORT_BYTES = NT * 16 * 4
L_DUMMY = L_SORT + SORT_BYTES - 16
L_END2 = L_SORT + SORT_BYTES
L_W = L_END2
L_TILE = L_W + 24576
TILE_STRIDE = 144
TILE_BYTES = 16 * TILE_STRIDE
WAVE_TILE = 2 * TILE_BYTES
L_END3 = L_TILE + NW * WAVE_TILE

out = []
def e(s=''):
    out.append('    ' + s if s and not s.endswith(':') else s)
def lab(s):
    out.append(s + ':')

def srd(d, lo, hi, nbytes, add=0):
    if add:
        e(f's_add_u32 s{d}, s{lo}, {hex(add)}')
        e(f's_addc_u32 s{d+1}, s{hi}, 0')
    else:
        e(f's_mov_b32 s{d}, s{lo}')
        e(f's_mov_b32 s{d+1}, s{hi}')
    e(f's_mov_b32 s{d+2}, {hex(nbytes)}')
    e(f's_mov_b32 s{d+3}, 0x00020000')

def wave_scan(v, op='v_add_u32'):
    for sh in (1, 2, 4, 8):
        e('s_nop 1')
        e(f'{op}_dpp v{v}, v{v}, v{v} row_shr:{sh} row_mask:0xf bank_mask:0xf bound_ctrl:0')
    e('s_nop 1')
    e(f'{op}_dpp v{v}, v{v}, v{v} row_bcast:15 row_mask:0xa bank_mask:0xf')
    e('s_nop 1')
    e(f'{op}_dpp v{v}, v{v}, v{v} row_bcast:31 row_mask:0xc bank_mask:0xf')

def kernel_head(name):
    out.append(f'.globl {name}')
    out.append('.p2align 8')
    out.append(f'.type {name},@function')
    lab(name)

def gen_k1():
    kernel_head('part_kernel')
    e(f's_cmp_gt_u32 s2, {NC}')
    e('s_cbranch_scc1 K1_END')
    e('s_load_dwordx4 s[4:7], s[0:1], 8')
    e('s_load_dwordx4 s[8:11], s[0:1], 24')
    e('s_load_dwordx2 s[12:13], s[0:1], 56')
    e('v_lshlrev_b32 v1, 2, v0')
    e('v_mov_b32 v2, 0')
    e('ds_write_b32 v1, v2')
    e('s_waitcnt lgkmcnt(0)')
    e(f's_cmp_eq_u32 s2, {NC}')
    e('s_cbranch_scc1 K1_WPREP')
    srd(16, 4, 5, E * 4)
    srd(20, 6, 7, E * 4)
    srd(24, 8, 9, E * 2)
    srd(28, 12, 13, WS_SIZE)
    e('s_lshl_b32 s14, s2, 12')
    e('v_add_u32 v3, s14, v1')
    e(f's_mov_b32 s15, {E}')
    e('v_cmp_gt_u32 vcc, s15, v3')
    e('v_lshlrev_b32 v13, 2, v3')
    e('v_lshlrev_b32 v12, 1, v3')
    e('s_mov_b64 s[32:33], vcc')
    e('s_mov_b64 exec, vcc')
    e('buffer_load_dwordx4 v[4:7], v13, s[20:23], 0 offen')
    e('buffer_load_dwordx4 v[8:11], v13, s[16:19], 0 offen')
    e('buffer_load_dwordx2 v[14:15], v12, s[24:27], 0 offen')
    e('s_mov_b32 s34, 83887')
    e(f's_mov_b32 s35, {-R & 0xffffffff:#x}')
    e('s_mov_b32 s36, 0xffff0000')
    e('v_mov_b32 v2, 1')
    e('s_barrier')
    e('s_waitcnt vmcnt(2)')
    for i in range(4):
        e(f'v_mul_u32_u24 v{16+i}, s34, v{4+i}')
        e(f'v_lshrrev_b32 v{16+i}, 24, v{16+i}')
        e(f'v_mad_i32_i24 v{25+2*i}, v{16+i}, s35, v{4+i}')
        e(f'v_lshlrev_b32 v{16+i}, 2, v{16+i}')
        e(f'ds_add_rtn_u32 v{20+i}, v{16+i}, v2')
    e('s_waitcnt vmcnt(0)')
    e('v_lshl_or_b32 v24, v14, 16, v8')
    e('v_and_or_b32 v26, v14, s36, v9')
    e('v_lshl_or_b32 v28, v15, 16, v10')
    e('v_and_or_b32 v30, v15, s36, v11')
    e('s_mov_b64 exec, -1')
    e('s_waitcnt lgkmcnt(0)')
    e('s_barrier')
    e('v_cmp_gt_u32 vcc, 64, v0')
    e('s_cbranch_vccz K1_SCAN_DONE')
    e('v_lshlrev_b32 v32, 4, v0')
    e('ds_read_b128 v[36:39], v32')
    e('s_waitcnt lgkmcnt(0)')
    e('v_add_u32 v41, v36, v37')
    e('v_add_u32 v42, v41, v38')
    e('v_add_u32 v43, v42, v39')
    e('v_mov_b32 v44, v43')
    wave_scan(44)
    e('v_sub_u32 v48, v44, v43')
    e('v_add_u32 v49, v48, v36')
    e('v_add_u32 v50, v48, v41')
    e('v_add_u32 v51, v48, v42')
    e('ds_write_b128 v32, v[48:51] offset:1024')
    for i in range(4):
        e(f'v_lshl_or_b32 v{52+i}, v{36+i}, 16, v{48+i}')
    e('v_lshlrev_b32 v33, 12, v0')
    e('s_lshl_b32 s37, s2, 2')
    e(f's_add_u32 s37, s37, {hex(WS_SEG)}')
    for i in range(4):
        e(f'buffer_store_dword v{52+i}, v33, s[28:31], s37 offen offset:{i*1024}')
    e('s_waitcnt lgkmcnt(0)')
    lab('K1_SCAN_DONE')
    e('s_barrier')
    e('s_mov_b64 exec, s[32:33]')
    for i in range(4):
        e(f'ds_read_b32 v{32+i}, v{16+i} offset:1024')
    for i in range(4):
        e(f's_waitcnt lgkmcnt({3-i})')
        e(f'v_add_lshl_u32 v{32+i}, v{32+i}, v{20+i}, 3')
        e(f'ds_write_b64 v{32+i}, v[{24+2*i}:{25+2*i}] offset:4096')
    e('s_mov_b64 exec, -1')
    e('s_waitcnt lgkmcnt(0)')
    e('s_barrier')
    e('v_lshlrev_b32 v36, 4, v0')
    e('ds_read_b128 v[40:43], v36 offset:4096')
    e('ds_read_b128 v[44:47], v36 offset:20480')
    e('s_lshl_b32 s37, s2, 15')
    e('s_add_u32 s38, s37, 16384')
    e('s_waitcnt lgkmcnt(1)')
    e('buffer_store_dwordx4 v[40:43], v36, s[28:31], s37 offen')
    e('s_waitcnt lgkmcnt(0)')
    e('buffer_store_dwordx4 v[44:47], v36, s[28:31], s38 offen')
    e('s_endpgm')
    lab('K1_WPREP')
    srd(16, 10, 11, 3 * 64 * 64 * 2)
    srd(28, 12, 13, WS_SIZE)
    e(f's_mov_b32 s37, {hex(WS_WT)}')
    for rep in range(2):
        if rep == 1:
            e('v_cmp_gt_u32 vcc, 512, v0')
            e('s_and_saveexec_b64 s[40:41], vcc')
            e('s_cbranch_execz K1_END')
        e(f'v_add_u32 v1, {rep*1024}, v0')
        e('v_lshrrev_b32 v2, 6, v1')
        e('v_and_b32 v3, 3, v2')
        e('v_lshrrev_b32 v4, 2, v2')
        e('v_and_b32 v5, 15, v1')
        e('v_bfe_u32 v6, v1, 4, 2')
        e('v_lshrrev_b32 v7, 2, v5')
        e('v_lshlrev_b32 v7, 4, v7')
        e('v_lshl_add_u32 v7, v3, 2, v7')
        e('v_and_b32 v8, 3, v5')
        e('v_add_u32 v7, v7, v8')
        e('v_lshlrev_b32 v9, 12, v4')
        e('v_lshl_add_u32 v9, v6, 10, v9')
        e('v_lshl_add_u32 v9, v7, 1, v9')
        for j in range(8):
            e(f'buffer_load_ushort v{10+j}, v9, s[16:19], 0 offen offset:{j*128}')
        e('s_waitcnt vmcnt(0)')
        for j in range(4):
            e(f'v_lshl_or_b32 v{20+j}, v{11+2*j}, 16, v{10+2*j}')
        e('v_lshlrev_b32 v1, 4, v1')
        e('buffer_store_dwordx4 v[20:23], v1, s[28:31], s37 offen')
        e('s_nop 1')
    lab('K1_END')
    e('s_endpgm')

X = [64, 96]
EN = [48, 56]
ACC = [32, 40]
ACCO = 16
V_J = 1; V_PA = 2; V_EA = 3; V_PB = 4; V_EB = 5; V_TA = 6; V_TB = 7
V_W = 8
V_ROW = 12
V_DUM = 13
S_TAB = 16; S_WS = 20; S_OUT = 24; S_X = 28
S_128 = 32; S_HI = 33; S_ROUND = 34; S_NR = 35
S_MASKB = 36
S_T = 38
S_M = 40
S_CSR = 64; S_TMP = 65; S_TMP2 = 66; S_WAVE = 67

def issue(p, half):
    x = X[p] + 16 * half
    en = EN[p] + 4 * half
    for u in range(4):
        e(f'v_mad_u32_u16 v{x+4*u}, v{en+u}, s{S_128}, v{V_J}')
    for u in range(4):
        e(f'buffer_load_dwordx4 v[{x+4*u}:{x+4*u+3}], v{x+4*u}, s[{S_TAB}:{S_TAB+3}], 0 offen')

def consume(p, half):
    x = X[p] + 16 * half
    en = EN[p] + 4 * half
    acc = ACC[half]
    for u in range(4):
        wl = V_W + 2 * (u & 1); wh = wl + 1
        e(f'v_lshrrev_b32 v{wl}, 16, v{en+u}')
        e(f'v_and_b32 v{wh}, s{S_HI}, v{en+u}')
        for d in range(4):
            e(f'v_dot2c_f32_bf16 v{acc+2*d}, v{x+4*u+d}, v{wl}')
            e(f'v_dot2c_f32_bf16 v{acc+2*d+1}, v{x+4*u+d}, v{wh}')

def next_entries(p, half, save_mask):
    P = V_PA if half == 0 else V_PB
    EE = V_EA if half == 0 else V_EB
    T = V_TA if half == 0 else V_TB
    en = EN[p] + 4 * half
    m = 'vcc' if half == 0 else f's[{S_MASKB}:{S_MASKB+1}]'
    e(f'v_cmp_lt_u32 {m}, v{P}, v{EE}')
    e('s_nop 1')
    e(f'v_cndmask_b32 v{T}, v{V_DUM}, v{P}, {m}')
    e(f'v_add_u32 v{P}, 16, v{P}')
    e(f'ds_read_b128 v[{en}:{en+3}], v{T}')

def gen_k23(k3):
    pf = 'K3' if k3 else 'K2'
    kernel_head('pass2_kernel' if k3 else 'pass1_kernel')
    e(f's_cmp_ge_u32 s2, {NB}')
    e(f's_cbranch_scc1 {pf}_END')
    e('s_load_dwordx2 s[4:5], s[0:1], 0')
    e('s_load_dwordx2 s[6:7], s[0:1], 40')
    e('s_load_dwordx2 s[8:9], s[0:1], 56')
    e('v_lshrrev_b32 v14, 6, v0')
    e('v_and_b32 v15, 7, v0')
    e(f'v_readfirstlane_b32 s{S_WAVE}, v14')
    e(f'v_lshlrev_b32 v{V_J}, 4, v15')
    e(f's_movk_i32 s{S_128}, 128')
    e(f's_mov_b32 s{S_HI}, 0xffff0000')
    e(f's_mov_b32 s{S_ROUND}, 0')
    e(f'v_mov_b32 v{V_DUM}, {L_DUMMY}')
    e(f's_mul_i32 s{S_TMP}, s2, {R*128}')
    e(f's_lshl_b32 s{S_TMP2}, s{S_WAVE}, 11')
    e(f's_add_u32 s{S_TMP}, s{S_TMP}, s{S_TMP2}')
    e('v_and_b32 v14, 63, v0')
    e(f'v_lshl_add_u32 v{V_ROW}, v14, 4, s{S_TMP}')
    e(f's_lshl_b32 s{S_CSR}, s2, 16')
    e(f's_add_u32 s{S_CSR}, s{S_CSR}, {hex(WS_CSR)}')
    e('s_waitcnt lgkmcnt(0)')
    srd(S_WS, 8, 9, WS_SIZE)
    if k3:
        srd(S_TAB, 8, 9, N * 128, WS_T1)
        srd(S_OUT, 6, 7, N * 128)
        srd(S_X, 4, 5, N * 128)
    else:
        srd(S_TAB, 4, 5, N * 128)
        srd(S_OUT, 8, 9, N * 128, WS_T1)
    if k3:
        e('v_lshlrev_b32 v14, 4, v0')
        for i in range(4):
            e(f'buffer_load_dwordx4 v[{64+4*i}:{67+4*i}], v14, s[{S_WS}:{S_WS+3}], s{S_CSR} offen')
            e(f's_add_u32 s{S_CSR}, s{S_CSR}, {NT*16}')
        e(f's_mov_b32 s{S_TMP}, {hex(WS_WT)}')
        e(f'buffer_load_dwordx4 v[80:83], v14, s[{S_WS}:{S_WS+3}], s{S_TMP} offen')
        e(f's_add_u32 s{S_TMP}, s{S_TMP}, {NT*16}')
        e(f'buffer_load_dwordx4 v[84:87], v14, s[{S_WS}:{S_WS+3}], s{S_TMP} offen')
        e(f'buffer_load_dwordx4 v[96:99], v{V_ROW}, s[{S_X}:{S_X+3}], 0 offen')
        e(f'buffer_load_dwordx4 v[100:103], v{V_ROW}, s[{S_X}:{S_X+3}], 0 offen offset:1024')
        e(f'buffer_load_dwordx4 v[104:107], v{V_ROW}, s[{S_TAB}:{S_TAB+3}], 0 offen')
        e(f'buffer_load_dwordx4 v[108:111], v{V_ROW}, s[{S_TAB}:{S_TAB+3}], 0 offen offset:1024')
        for i in range(4):
            e(f's_waitcnt vmcnt({9-i})')
            e(f'ds_write_b128 v14, v[{64+4*i}:{67+4*i}] offset:{L_OFF + i*NT*16}')
        e('v_mov_b32 v88, 0xffff')
        e('v_mov_b32 v89, 0xffff')
        e('v_mov_b32 v90, 0xffff')
        e('v_mov_b32 v91, 0xffff')
        e(f'ds_write_b128 v{V_DUM}, v[88:91]')
        e('s_waitcnt vmcnt(5)')
        e(f'v_add_u32 v15, {L_W}, v14')
        e('ds_write_b128 v15, v[80:83]')
        e('s_waitcnt vmcnt(4)')
        e(f'v_cmp_gt_u32 vcc, {1536-NT}, v0')
        e(f's_and_saveexec_b64 s[{S_T}:{S_T+1}], vcc')
        e(f'ds_write_b128 v15, v[84:87] offset:{NT*16}')
        e(f's_mov_b64 exec, s[{S_T}:{S_T+1}]')
        e('v_bfe_u32 v14, v0, 3, 3')
        e(f'v_mul_u32_u24 v14, {TILE_STRIDE}, v14')
        e(f'v_add_u32 v14, v14, v{V_J}')
        e(f's_mul_i32 s{S_TMP}, s{S_WAVE}, {WAVE_TILE}')
        e(f's_add_u32 s{S_TMP}, s{S_TMP}, {L_TILE}')
        e(f'v_add_u32 v14, s{S_TMP}, v14')
        e('s_waitcnt vmcnt(0)')
        e('ds_write_b128 v14, v[96:99]')
        e(f'ds_write_b128 v14, v[100:103] offset:{8*TILE_STRIDE}')
        e(f'ds_write_b128 v14, v[104:107] offset:{TILE_BYTES}')
        e(f'ds_write_b128 v14, v[108:111] offset:{TILE_BYTES + 8*TILE_STRIDE}')
        e('s_waitcnt lgkmcnt(0)')
        e('s_barrier')
        e('v_and_b32 v15, 15, v0')
        e(f'v_mul_u32_u24 v15, {TILE_STRIDE}, v15')
        e('v_bfe_u32 v14, v0, 4, 2')
        e('v_lshl_add_u32 v15, v14, 4, v15')
        e(f'v_add_u32 v15, s{S_TMP}, v15')
        e('v_and_b32 v14, 63, v0')
        e('v_lshlrev_b32 v14, 4, v14')
        e(f'v_add_u32 v14, {L_W}, v14')
        for r in range(16):
            e(f'v_mov_b32 v{ACCO+r}, 0')
        for ks in range(4):
            e(f'ds_read_b128 v[64:67], v15 offset:{(ks&1)*64 + (ks>>1)*TILE_BYTES}')
            for mt in range(4):
                e(f'ds_read_b128 v[{68+4*mt}:{71+4*mt}], v14 offset:{(ks*4+mt)*1024}')
            for mt in range(4):
                e(f's_waitcnt lgkmcnt({3-mt})')
                e(f'v_mfma_f32_16x16x32_bf16 v[{ACCO+4*mt}:{ACCO+4*mt+3}], v[{68+4*mt}:{71+4*mt}], v[64:67], v[{ACCO+4*mt}:{ACCO+4*mt+3}]')
        e(f's_branch {pf}_PHASE_B')
    else:
        e('v_mov_b32 v14, 0')
        e(f'v_mov_b32 v15, {L_MAX}')
        e('ds_write_b32 v15, v14')

    lab(f'{pf}_ROUND')
    e('v_lshrrev_b32 v100, 2, v0')
    e('v_lshlrev_b32 v14, 2, v100')
    e(f's_lshl_b32 s{S_TMP}, s2, 10')
    e(f's_add_u32 s{S_TMP}, s{S_TMP}, {hex(WS_SEG)}')
    e('v_mov_b32 v103, 0')
    e(f'v_cmp_gt_u32 vcc, {NC*4}, v0')
    e(f's_and_saveexec_b64 s[{S_T}:{S_T+1}], vcc')
    e(f'buffer_load_dword v103, v14, s[{S_WS}:{S_WS+3}], s{S_TMP} offen')
    e(f's_mov_b64 exec, s[{S_T}:{S_T+1}]')
    e('v_lshlrev_b32 v14, 2, v0')
    e('v_mov_b32 v15, 0')
    e('v_cmp_gt_u32 vcc, 256, v0')
    e(f's_and_saveexec_b64 s[{S_T}:{S_T+1}], vcc')
    e('ds_write_b32 v14, v15')
    e(f's_mov_b64 exec, s[{S_T}:{S_T+1}]')
    for i in range(4):
        e(f'v_mov_b32 v{88+i}, 0xffff')
    e('v_lshlrev_b32 v14, 4, v0')
    for i in range(4):
        e(f'ds_write_b128 v14, v[88:91] offset:{L_SORT + i*NT*16}')
    e('v_and_b32 v102, 3, v0')
    e('v_lshlrev_b32 v102, 1, v102')
    e(f's_mul_i32 s{S_TMP}, s{S_ROUND}, {S}')
    e(f'v_add_u32 v102, s{S_TMP}, v102')
    e('v_mov_b32 v104, 1')
    e('s_waitcnt vmcnt(0)')
    e('v_and_b32 v101, 0xffff, v103')
    e('v_lshrrev_b32 v103, 16, v103')
    e('v_add_u32 v101, v101, v102')
    e('v_lshlrev_b32 v101, 3, v101')
    e('v_lshl_add_u32 v101, v100, 15, v101')
    e('v_sub_u32 v105, v103, v102')
    for i in range(NIT):
        e(f'v_cmp_lt_i32 s[{S_M+4*i}:{S_M+4*i+1}], {8*i}, v105')
        e(f'v_cmp_lt_i32 s[{S_M+4*i+2}:{S_M+4*i+3}], {8*i+1}, v105')
    for i in range(NIT):
        e(f's_mov_b64 exec, s[{S_M+4*i}:{S_M+4*i+1}]')
        e(f'buffer_load_dwordx4 v[{64+4*i}:{67+4*i}], v101, s[{S_WS}:{S_WS+3}], 0 offen offset:{64*i}')
    e('s_mov_b64 exec, -1')
    e('s_waitcnt lgkmcnt(0)')
    e('s_barrier')
    if not k3:
        e(f'v_cmp_lt_u32 vcc, {S}, v103')
        e(f's_cbranch_vccz {pf}_NOMAX')
        e(f'v_mov_b32 v15, {L_MAX}')
        e('ds_max_u32 v15, v103')
        lab(f'{pf}_NOMAX')
    e('s_waitcnt vmcnt(0)')
    for i in range(NIT):
        e(f's_mov_b64 exec, s[{S_M+4*i}:{S_M+4*i+1}]')
        e(f'v_lshlrev_b32 v{65+4*i}, 2, v{65+4*i}')
        e(f'ds_add_rtn_u32 v{88+2*i}, v{65+4*i}, v104')
        e(f's_mov_b64 exec, s[{S_M+4*i+2}:{S_M+4*i+3}]')
        e(f'v_lshlrev_b32 v{67+4*i}, 2, v{67+4*i}')
        e(f'ds_add_rtn_u32 v{89+2*i}, v{67+4*i}, v104')
    e('s_mov_b64 exec, -1')
    e('s_waitcnt lgkmcnt(0)')
    e('s_barrier')
    e(f's_cmp_lg_u32 s{S_WAVE}, 0')
    e(f's_cbranch_scc1 {pf}_SCAN_DONE')
    e('v_lshlrev_b32 v14, 4, v0')
    e('ds_read_b128 v[108:111], v14')
    e('s_waitcnt lgkmcnt(0)')
    for i in range(4):
        e(f'v_add_u32 v{108+i}, 3, v{108+i}')
        e(f'v_and_b32 v{108+i}, -4, v{108+i}')
    e('v_add_u32 v113, v108, v109')
    e('v_add_u32 v114, v113, v110')
    e('v_add_u32 v115, v114, v111')
    e('v_mov_b32 v116, v115')
    wave_scan(116)
    e('v_sub_u32 v120, v116, v115')
    e('v_add_u32 v121, v120, v108')
    e('v_add_u32 v122, v120, v113')
    e('v_add_u32 v123, v120, v114')
    e(f'ds_write_b128 v14, v[120:123] offset:{L_OFF}')
    e('s_waitcnt lgkmcnt(0)')
    lab(f'{pf}_SCAN_DONE')
    e('s_barrier')
    for i in range(NIT):
        e(f's_mov_b64 exec, s[{S_M+4*i}:{S_M+4*i+1}]')
        e(f'ds_read_b32 v{65+4*i}, v{65+4*i} offset:{L_OFF}')
        e(f's_mov_b64 exec, s[{S_M+4*i+2}:{S_M+4*i+3}]')
        e(f'ds_read_b32 v{67+4*i}, v{67+4*i} offset:{L_OFF}')
    e('s_waitcnt lgkmcnt(0)')
    for i in range(NIT):
        e(f's_mov_b64 exec, s[{S_M+4*i}:{S_M+4*i+1}]')
        e(f'v_add_lshl_u32 v{65+4*i}, v{65+4*i}, v{88+2*i}, 2')
        e(f'ds_write_b32 v{65+4*i}, v{64+4*i} offset:{L_SORT}')
        e(f's_mov_b64 exec, s[{S_M+4*i+2}:{S_M+4*i+3}]')
        e(f'v_add_lshl_u32 v{67+4*i}, v{67+4*i}, v{89+2*i}, 2')
        e(f'ds_write_b32 v{67+4*i}, v{66+4*i} offset:{L_SORT}')
    e('s_mov_b64 exec, -1')
    e('s_waitcnt lgkmcnt(0)')
    e('s_barrier')
    if not k3:
        e(f's_cmp_lg_u32 s{S_ROUND}, 0')
        e(f's_cbranch_scc1 {pf}_PHASE_B')
        e('v_lshlrev_b32 v14, 4, v0')
        for i in range(4):
            e(f'ds_read_b128 v[{64+4*i}:{67+4*i}], v14 offset:{L_OFF + i*NT*16}')
        for i in range(4):
            e(f's_waitcnt lgkmcnt({3-i})')
            e(f'buffer_store_dwordx4 v[{64+4*i}:{67+4*i}], v14, s[{S_WS}:{S_WS+3}], s{S_CSR} offen')
            e(f's_add_u32 s{S_CSR}, s{S_CSR}, {NT*16}')
        e('s_nop 1')

    lab(f'{pf}_PHASE_B')
    e('v_lshrrev_b32 v14, 3, v0')
    e('v_and_b32 v15, 7, v14')
    e(f's_lshl_b32 s{S_TMP}, s{S_WAVE}, 6')
    e(f'v_lshl_add_u32 v14, v15, 2, s{S_TMP}')
    e(f'v_add_u32 v14, {L_OFF}, v14')
    e(f'ds_read2_b32 v[{V_PA}:{V_EA}], v14 offset0:0 offset1:1')
    e(f'ds_read2_b32 v[{V_PB}:{V_EB}], v14 offset0:8 offset1:9')
    e(f'v_mov_b32 v15, {L_MAX}')
    e('ds_read_b32 v15, v15')
    e(f's_cmp_lg_u32 s{S_ROUND}, 0')
    e(f's_cbranch_scc1 {pf}_LOADPART')
    for r in range(16):
        e(f'v_mov_b32 v{ACC[0]+r}, 0')
    e(f's_branch {pf}_ACCRDY')
    lab(f'{pf}_LOADPART')
    e(f'v_lshlrev_b32 v14, 1, v{V_ROW}')
    e(f's_mov_b32 s{S_TMP}, {hex(WS_PART)}')
    e(f'buffer_load_dwordx4 v[32:35], v14, s[{S_WS}:{S_WS+3}], s{S_TMP} offen')
    e(f'buffer_load_dwordx4 v[36:39], v14, s[{S_WS}:{S_WS+3}], s{S_TMP} offen offset:16')
    e(f'buffer_load_dwordx4 v[40:43], v14, s[{S_WS}:{S_WS+3}], s{S_TMP} offen offset:2048')
    e(f'buffer_load_dwordx4 v[44:47], v14, s[{S_WS}:{S_WS+3}], s{S_TMP} offen offset:2064')
    e('s_waitcnt vmcnt(0)')
    lab(f'{pf}_ACCRDY')
    e('s_waitcnt lgkmcnt(0)')
    e(f'v_readfirstlane_b32 s{S_NR}, v15')
    for r in (V_PA, V_EA, V_PB, V_EB):
        e(f'v_lshlrev_b32 v{r}, 2, v{r}')
        e(f'v_add_u32 v{r}, {L_SORT}, v{r}')
    for p in (0, 1):
        next_entries(p, 0, False)
        next_entries(p, 1, False)
        e('s_waitcnt lgkmcnt(1)')
        issue(p, 0)
        e('s_waitcnt lgkmcnt(0)')
        issue(p, 1)
    lab(f'{pf}_LOOP')
    for p in (0, 1):
        e('s_waitcnt vmcnt(12)')
        consume(p, 0)
        next_entries(p, 0, True)
        e('s_waitcnt vmcnt(8)')
        consume(p, 1)
        next_entries(p, 1, True)
        e(f's_or_b64 s[{S_T}:{S_T+1}], vcc, s[{S_MASKB}:{S_MASKB+1}]')
        e(f's_cbranch_scc0 {pf}_DRAIN{p^1}')
        e('s_waitcnt lgkmcnt(1)')
        issue(p, 0)
        e('s_waitcnt lgkmcnt(0)')
        issue(p, 1)
    e(f's_branch {pf}_LOOP')
    for q in (0, 1):
        lab(f'{pf}_DRAIN{q}')
        e('s_waitcnt vmcnt(4)')
        consume(q, 0)
        e('s_waitcnt vmcnt(0)')
        consume(q, 1)
        if q == 0:
            e(f's_branch {pf}_DONE')
    lab(f'{pf}_DONE')
    e('s_waitcnt lgkmcnt(0)')
    e(f's_add_u32 s{S_ROUND}, s{S_ROUND}, 1')
    e(f's_mul_i32 s{S_TMP}, s{S_ROUND}, {S}')
    e(f's_cmp_ge_u32 s{S_TMP}, s{S_NR}')
    e(f's_cbranch_scc1 {pf}_FINAL')
    e(f'v_lshlrev_b32 v14, 1, v{V_ROW}')
    e(f's_mov_b32 s{S_TMP}, {hex(WS_PART)}')
    e(f'buffer_store_dwordx4 v[32:35], v14, s[{S_WS}:{S_WS+3}], s{S_TMP} offen')
    e(f'buffer_store_dwordx4 v[36:39], v14, s[{S_WS}:{S_WS+3}], s{S_TMP} offen offset:16')
    e(f's_cmp_eq_u32 s{S_WAVE}, {NW-1}')
    e(f's_cbranch_scc1 {pf}_NOB')
    e(f'buffer_store_dwordx4 v[40:43], v14, s[{S_WS}:{S_WS+3}], s{S_TMP} offen offset:2048')
    e(f'buffer_store_dwordx4 v[44:47], v14, s[{S_WS}:{S_WS+3}], s{S_TMP} offen offset:2064')
    lab(f'{pf}_NOB')
    e('s_waitcnt vmcnt(0)')
    e('s_barrier')
    e(f's_branch {pf}_ROUND')

    lab(f'{pf}_FINAL')
    if not k3:
        for h in range(2):
            for d in range(4):
                e(f'v_cvt_pk_bf16_f32 v{64+4*h+d}, v{ACC[h]+2*d}, v{ACC[h]+2*d+1}')
        e(f'buffer_store_dwordx4 v[64:67], v{V_ROW}, s[{S_OUT}:{S_OUT+3}], 0 offen')
        e(f's_cmp_eq_u32 s{S_WAVE}, {NW-1}')
        e(f's_cbranch_scc1 {pf}_END')
        e(f'buffer_store_dwordx4 v[68:71], v{V_ROW}, s[{S_OUT}:{S_OUT+3}], 0 offen offset:1024')
    else:
        e('v_bfe_u32 v14, v0, 3, 3')
        e(f'v_mul_u32_u24 v14, {TILE_STRIDE}, v14')
        e(f'v_add_u32 v14, v14, v{V_J}')
        e(f's_mul_i32 s{S_TMP}, s{S_WAVE}, {WAVE_TILE}')
        e(f's_add_u32 s{S_TMP}, s{S_TMP}, {L_TILE}')
        e(f'v_add_u32 v14, s{S_TMP}, v14')
        e('ds_read_b128 v[64:67], v14')
        e(f'ds_read_b128 v[68:71], v14 offset:{8*TILE_STRIDE}')
        e('s_waitcnt lgkmcnt(0)')
        for h in range(2):
            for d in range(4):
                xs = 64 + 4*h + d
                e(f'v_lshlrev_b32 v72, 16, v{xs}')
                e(f'v_and_b32 v73, s{S_HI}, v{xs}')
                e(f'v_fma_f32 v72, 2.0, v{ACC[h]+2*d}, -v72')
                e(f'v_fma_f32 v73, 2.0, v{ACC[h]+2*d+1}, -v73')
                e(f'v_cvt_pk_bf16_f32 v{80+4*h+d}, v72, v73')
        e(f'ds_write_b128 v14, v[80:83] offset:{TILE_BYTES}')
        e(f'ds_write_b128 v14, v[84:87] offset:{TILE_BYTES + 8*TILE_STRIDE}')
        e('v_and_b32 v15, 15, v0')
        e(f'v_mul_u32_u24 v15, {TILE_STRIDE}, v15')
        e('v_bfe_u32 v14, v0, 4, 2')
        e('v_lshl_add_u32 v15, v14, 4, v15')
        e(f'v_add_u32 v15, s{S_TMP}, v15')
        e('v_and_b32 v14, 63, v0')
        e('v_lshlrev_b32 v14, 4, v14')
        e(f'v_add_u32 v14, {L_W}, v14')
        e('s_waitcnt lgkmcnt(0)')
        for ks in (4, 5):
            e(f'ds_read_b128 v[64:67], v15 offset:{(ks&1)*64 + TILE_BYTES}')
            for mt in range(4):
                e(f'ds_read_b128 v[{68+4*mt}:{71+4*mt}], v14 offset:{(ks*4+mt)*1024}')
            for mt in range(4):
                e(f's_waitcnt lgkmcnt({3-mt})')
                e(f'v_mfma_f32_16x16x32_bf16 v[{ACCO+4*mt}:{ACCO+4*mt+3}], v[{68+4*mt}:{71+4*mt}], v[64:67], v[{ACCO+4*mt}:{ACCO+4*mt+3}]')
        e(f's_mul_i32 s{S_TMP}, s2, {R*128}')
        e(f's_lshl_b32 s{S_TMP2}, s{S_WAVE}, 11')
        e(f's_add_u32 s{S_TMP}, s{S_TMP}, s{S_TMP2}')
        e('v_and_b32 v15, 15, v0')
        e('v_bfe_u32 v14, v0, 4, 2')
        e('v_lshlrev_b32 v14, 5, v14')
        e('v_lshl_add_u32 v14, v15, 7, v14')
        e(f'v_add_u32 v14, s{S_TMP}, v14')
        e(f's_cmp_lg_u32 s{S_WAVE}, {NW-1}')
        e(f's_cbranch_scc1 {pf}_FULL')
        e('v_cmp_gt_u32 vcc, 8, v15')
        e('s_and_b64 exec, exec, vcc')
        lab(f'{pf}_FULL')
        e('s_nop 7')
        for mt in range(4):
            e(f'v_cvt_pk_bf16_f32 v{64+2*mt}, v{ACCO+4*mt}, v{ACCO+4*mt+1}')
            e(f'v_cvt_pk_bf16_f32 v{65+2*mt}, v{ACCO+4*mt+2}, v{ACCO+4*mt+3}')
        e(f'buffer_store_dwordx4 v[64:67], v14, s[{S_OUT}:{S_OUT+3}], 0 offen')
        e(f'buffer_store_dwordx4 v[68:71], v14, s[{S_OUT}:{S_OUT+3}], 0 offen offset:16')
    lab(f'{pf}_END')
    e('s_endpgm')

def kd(name, vgpr, sgpr):
    out.append('.p2align 6')
    out.append(f'.amdhsa_kernel {name}')
    out.append(f'  .amdhsa_next_free_vgpr {vgpr}')
    out.append(f'  .amdhsa_next_free_sgpr {sgpr}')
    out.append(f'  .amdhsa_accum_offset {(vgpr+3)//4*4}')
    out.append('  .amdhsa_group_segment_fixed_size 0')
    out.append('  .amdhsa_kernarg_size 64')
    out.append('  .amdhsa_user_sgpr_count 2')
    out.append('  .amdhsa_user_sgpr_kernarg_segment_ptr 1')
    out.append('  .amdhsa_system_sgpr_workgroup_id_x 1')
    out.append('.end_amdhsa_kernel')

hdr = open('standalone__spectral_conv_chebnet__graph.s.ref').read().split('\n')
for l in hdr:
    if l.startswith(';') and '@launch' not in l and 'Override launch' not in l and 'grid=ceil' not in l:
        out.append(l)
    elif not l.startswith(';'):
        break
out.append(f'; @launch kernel=part_kernel grid=({NC+1},1,1) block=(1024,1,1) lds={4096+32768}')
out.append(f'; @launch kernel=pass1_kernel grid=({NB},1,1) block=({NT},1,1) lds={L_END2}')
out.append(f'; @launch kernel=pass2_kernel grid=({NB},1,1) block=({NT},1,1) lds={L_END3}')
out.append('.amdgcn_target "amdgcn-amd-amdhsa--gfx950"')
out.append('.text')
gen_k1()
gen_k23(False)
gen_k23(True)
out.append('.section .rodata,"a"')
kd('part_kernel', 64, 48)
kd('pass1_kernel', 128, 72)
kd('pass2_kernel', 128, 72)
dst = sys.argv[1] if len(sys.argv) > 1 else 'standalone__spectral_conv_chebnet__graph.s'
open(dst, 'w').write('\n'.join(out) + '\n')
print('wrote', dst, len(out), 'lines')
```

```python
import sys

N = 50000; E = 800000
R = 200
NB = 250
CH = 4096
NC = 196
S = 48
NIT = S // 8
NW = 13
NT = NW * 64

WS_ENT = 0x0000000
WS_SEG = 0x0800000
WS_WT  = 0x0900000
WS_CSR = 0x1000000
CSR_STRIDE = 0x10000
WS_T1  = 0x2000000
WS_PART = 0x3000000
WS_SIZE = 268435456

L_CNT = 0
L_OFF = 2048
L_MAX = 4096
L_DESC = 4112
L_H2 = 5888
L_JUNK = 6400
L_SORT = 6656
SORT_BYTES = NT * 16 * 4
L_DUMMY = L_SORT + SORT_BYTES - 16
L_END2 = L_SORT + SORT_BYTES
L_W = L_END2
L_ROWS = L_W + 24576
ROW_STRIDE = 272
L_END3 = L_ROWS + 208 * ROW_STRIDE
HALF = 25000

import os
INSTR = int(os.environ.get('INSTR', '0'))
PF2 = int(os.environ.get('PF2', '32'))
PF3 = int(os.environ.get('PF3', '24'))
PFB2 = int(os.environ.get('PFB2', '0'))
PFB3 = int(os.environ.get('PFB3', '0'))
PFBW = int(os.environ.get('PFBW', '0'))
BAL = int(os.environ.get('BAL', '1'))
XP = os.environ.get('XP', '')
PF1 = int(os.environ.get('PF1', '0'))
PF2BASE = 24 * 16 * PF1
RENUM = int(os.environ.get('RENUM', '1'))
WS_DBG = 0x8000000
S_ST = 76
NSTAMP = 12
def stamp(i, real=False):
    if INSTR:
        e(f's_memrealtime s[{S_ST+2*i}:{S_ST+2*i+1}]' if real else f's_memtime s[{S_ST+2*i}:{S_ST+2*i+1}]')
def dump_stamps(kidx, ws_srd, wave_sgpr_from_v0=True):
    if not INSTR: return
    e('s_waitcnt vmcnt(0) lgkmcnt(0)')
    stamp(NSTAMP-2); stamp(NSTAMP-1, True)
    e('s_waitcnt lgkmcnt(0)')
    e('s_mov_b64 exec, -1')
    e('v_lshrrev_b32 v1, 6, v0')
    e('s_lshl_b32 s70, s2, 4')
    e('v_add_u32 v1, s70, v1')
    e('v_lshlrev_b32 v1, 7, v1')
    e(f's_mov_b32 s70, {hex(WS_DBG + kidx*0x100000)}')
    e('s_mov_b64 exec, 1')
    for i in range(NSTAMP):
        e(f'v_mov_b32 v2, s{S_ST+2*i}')
        e(f'v_mov_b32 v3, s{S_ST+2*i+1}')
        e(f'buffer_store_dwordx2 v[2:3], v1, s[{ws_srd}:{ws_srd+3}], s70 offen offset:{8*i}')
        e('s_nop 1')

out = []
def e(s=''):
    out.append('    ' + s if s and not s.endswith(':') else s)
def lab(s):
    out.append(s + ':')

def srd(d, lo, hi, nbytes, add=0):
    if add:
        e(f's_add_u32 s{d}, s{lo}, {hex(add)}')
        e(f's_addc_u32 s{d+1}, s{hi}, 0')
    else:
        e(f's_mov_b32 s{d}, s{lo}')
        e(f's_mov_b32 s{d+1}, s{hi}')
    e(f's_mov_b32 s{d+2}, {hex(nbytes)}')
    e(f's_mov_b32 s{d+3}, 0x00020000')

def wave_scan(v, op='v_add_u32'):
    for sh in (1, 2, 4, 8):
        e('s_nop 1')
        e(f'{op}_dpp v{v}, v{v}, v{v} row_shr:{sh} row_mask:0xf bank_mask:0xf bound_ctrl:0')
    e('s_nop 1')
    e(f'{op}_dpp v{v}, v{v}, v{v} row_bcast:15 row_mask:0xa bank_mask:0xf')
    e('s_nop 1')
    e(f'{op}_dpp v{v}, v{v}, v{v} row_bcast:31 row_mask:0xc bank_mask:0xf')

def kernel_head(name):
    out.append(f'.globl {name}')
    out.append('.p2align 8')
    out.append(f'.type {name},@function')
    lab(name)

def gen_k1():
    kernel_head('part_kernel')
    e(f's_cmp_ge_u32 s2, {NC}')
    e('s_cbranch_scc1 K1_END')
    stamp(0, True); stamp(1)
    e('s_load_dwordx4 s[4:7], s[0:1], 8')
    e('s_load_dwordx4 s[8:11], s[0:1], 24')
    e('s_load_dwordx2 s[12:13], s[0:1], 56')
    e('s_load_dwordx2 s[44:45], s[0:1], 0')
    e('v_lshlrev_b32 v1, 2, v0')
    e('v_mov_b32 v2, 0')
    e('ds_write_b32 v1, v2')
    e('s_waitcnt lgkmcnt(0)')
    stamp(2)
    srd(16, 4, 5, E * 4)
    srd(20, 6, 7, E * 4)
    srd(24, 8, 9, E * 2)
    srd(28, 12, 13, WS_SIZE)
    srd(40, 44, 45, N * 128)
    e('s_lshl_b32 s14, s2, 12')
    e('v_add_u32 v3, s14, v1')
    e(f's_mov_b32 s15, {E}')
    e('v_cmp_gt_u32 vcc, s15, v3')
    e('v_lshlrev_b32 v13, 2, v3')
    e('v_lshlrev_b32 v12, 1, v3')
    e('s_mov_b64 s[32:33], vcc')
    e('s_mov_b64 exec, vcc')
    e('buffer_load_dwordx4 v[4:7], v13, s[20:23], 0 offen')
    e('buffer_load_dwordx4 v[8:11], v13, s[16:19], 0 offen')
    e('buffer_load_dwordx2 v[14:15], v12, s[24:27], 0 offen')
    e('s_mov_b32 s34, 83887')
    e(f's_mov_b32 s35, {-R & 0xffffffff:#x}')
    e('s_mov_b32 s36, 0xffff0000')
    e('v_mov_b32 v2, 1')
    e('s_barrier')
    e('s_waitcnt vmcnt(2)')
    stamp(3)
    for i in range(4):
        e(f'v_mul_u32_u24 v{16+i}, s34, v{4+i}')
        e(f'v_lshrrev_b32 v{16+i}, 24, v{16+i}')
        e(f'v_mad_i32_i24 v{25+2*i}, v{16+i}, s35, v{4+i}')
        if RENUM:
            e(f'v_and_b32 v3, 7, v{16+i}')
            e(f'v_lshrrev_b32 v{16+i}, 3, v{16+i}')
            e(f'v_lshlrev_b32 v{16+i}, 2, v{16+i}')
            e(f'v_lshl_or_b32 v{16+i}, v3, 7, v{16+i}')
        else:
            e(f'v_lshlrev_b32 v{16+i}, 2, v{16+i}')
        e(f'ds_add_rtn_u32 v{20+i}, v{16+i}, v2')
    e('s_waitcnt vmcnt(0)')
    e(f's_movk_i32 s37, {HALF}')
    for i in range(4):
        e(f'v_cmp_le_u32 s[{48+2*i}:{49+2*i}], s37, v{8+i}')
    e('v_lshl_or_b32 v24, v14, 16, v8')
    e('v_and_or_b32 v26, v14, s36, v9')
    e('v_lshl_or_b32 v28, v15, 16, v10')
    e('v_and_or_b32 v30, v15, s36, v11')
    for i in range(4):
        e(f'v_addc_co_u32 v{25+2*i}, vcc, v{25+2*i}, v{25+2*i}, s[{48+2*i}:{49+2*i}]')
    e('s_mov_b64 exec, -1')
    if PF1:
        e('s_lshr_b32 s37, s2, 3')
        e('s_min_u32 s37, s37, 23')
        e(f's_mul_i32 s37, s37, {16*PF1*128}')
        e('v_lshrrev_b32 v60, 6, v0')
        e(f'v_mul_u32_u24 v60, {PF1*128}, v60')
        e('v_and_b32 v61, 63, v0')
        e('v_lshl_add_u32 v60, v61, 7, v60')
        e('v_add_u32 v60, s37, v60')
        m = (1 << PF1) - 1
        e(f's_mov_b32 exec_lo, {hex(m & 0xffffffff)}')
        e(f's_mov_b32 exec_hi, {hex(m >> 32)}')
        e('buffer_load_dword v61, v60, s[40:43], 0 offen')
        e('s_mov_b64 exec, -1')
    e('s_waitcnt lgkmcnt(0)')
    e('s_barrier')
    stamp(4)
    e('v_cmp_gt_u32 vcc, 64, v0')
    e('s_cbranch_vccz K1_SCAN_DONE')
    e('v_lshlrev_b32 v32, 4, v0')
    e('ds_read_b128 v[36:39], v32')
    e('s_waitcnt lgkmcnt(0)')
    e('v_add_u32 v41, v36, v37')
    e('v_add_u32 v42, v41, v38')
    e('v_add_u32 v43, v42, v39')
    e('v_mov_b32 v44, v43')
    wave_scan(44)
    e('v_sub_u32 v48, v44, v43')
    e('v_add_u32 v49, v48, v36')
    e('v_add_u32 v50, v48, v41')
    e('v_add_u32 v51, v48, v42')
    e('ds_write_b128 v32, v[48:51] offset:1024')
    for i in range(4):
        e(f'v_lshl_or_b32 v{52+i}, v{36+i}, 16, v{48+i}')
    e('v_lshlrev_b32 v33, 12, v0')
    e('s_lshl_b32 s37, s2, 2')
    e(f's_add_u32 s37, s37, {hex(WS_SEG)}')
    for i in range(4):
        if 'noT' not in XP:
            e(f'buffer_store_dword v{52+i}, v33, s[28:31], s37 offen offset:{i*1024}' + (' sc1' if 'Tplain' not in XP else ''))
    e('s_waitcnt lgkmcnt(0)')
    lab('K1_SCAN_DONE')
    e('s_barrier')
    stamp(5)
    e('s_mov_b64 exec, s[32:33]')
    for i in range(4):
        e(f'ds_read_b32 v{32+i}, v{16+i} offset:1024')
    for i in range(4):
        e(f's_waitcnt lgkmcnt({3-i})')
        e(f'v_add_lshl_u32 v{32+i}, v{32+i}, v{20+i}, 3')
        e(f'ds_write_b64 v{32+i}, v[{24+2*i}:{25+2*i}] offset:4096')
    e('s_mov_b64 exec, -1')
    e('s_waitcnt lgkmcnt(0)')
    e('s_barrier')
    stamp(6)
    e('v_lshlrev_b32 v36, 4, v0')
    e('ds_read_b128 v[40:43], v36 offset:4096')
    e('ds_read_b128 v[44:47], v36 offset:20480')
    e('s_lshl_b32 s37, s2, 15')
    e('s_add_u32 s38, s37, 16384')
    e('s_waitcnt lgkmcnt(1)')
    pol = '' if 'Eplain' in XP else ' sc1'
    if 'noE' not in XP:
        e('buffer_store_dwordx4 v[40:43], v36, s[28:31], s37 offen' + pol)
    e('s_waitcnt lgkmcnt(0)')
    if 'noE' not in XP:
        e('buffer_store_dwordx4 v[44:47], v36, s[28:31], s38 offen' + pol)
    stamp(7)
    dump_stamps(0, 28)
    e('s_endpgm')
    lab('K1_END')
    e('s_endpgm')

X = [64, 96]
EN = [48, 56]
ACC = [32, 40]
ACCO = 16
V_J = 1; V_PA = 2; V_EA = 3; V_PB = 4; V_EB = 5; V_TA = 6; V_TB = 7
V_W = 8
V_ROWS = 12
S_TAB = 16; S_WS = 20; S_OUT = 24; S_X = 28
S_128 = 32; S_HI = 33; S_ROUND = 34; S_NR = 35
S_MASKB = 36
S_T = 38
S_M = 40
S_CSR = 64; S_TMP = 65; S_TMP2 = 66; S_WAVE = 67; S_ROW0 = 68; S_TOT = 69; S_DUM = 70; S_TILE = 71
IMG = NT * 16

def issue(p, half):
    x = X[p] + 16 * half
    en = EN[p] + 4 * half
    for u in range(4):
        e(f'v_mad_u32_u16 v{x+4*u}, v{en+u}, s{S_128}, v{V_J}')
    for u in range(4):
        e(f'buffer_load_dwordx4 v[{x+4*u}:{x+4*u+3}], v{x+4*u}, s[{S_TAB}:{S_TAB+3}], 0 offen')

V_SEL0 = 7; V_SEL1 = 13
def consume(p, half):
    x = X[p] + 16 * half
    en = EN[p] + 4 * half
    acc = ACC[half]
    def perm(bs, u):
        e(f'v_perm_b32 v{V_W+2*bs}, v{en+u}, v{en+u}, v{V_SEL0}')
        e(f'v_perm_b32 v{V_W+2*bs+1}, v{en+u}, v{en+u}, v{V_SEL1}')
    def mm(bs, u):
        e(f'v_mfma_f32_4x4x4_16b_bf16 v[{acc}:{acc+3}], v[{x+4*u}:{x+4*u+1}], v[{V_W+2*bs}:{V_W+2*bs+1}], v[{acc}:{acc+3}]')
        e(f'v_mfma_f32_4x4x4_16b_bf16 v[{acc+4}:{acc+7}], v[{x+4*u+2}:{x+4*u+3}], v[{V_W+2*bs}:{V_W+2*bs+1}], v[{acc+4}:{acc+7}]')
    perm(0, 0); perm(1, 1)
    mm(0, 0)
    perm(0, 2)
    mm(1, 1)
    perm(1, 3)
    mm(0, 2)
    e('s_nop 0')
    mm(1, 3)

def next_entries(p, half):
    P = V_PA if half == 0 else V_PB
    EE = V_EA if half == 0 else V_EB
    T = V_TA
    en = EN[p] + 4 * half
    m = 'vcc' if half == 0 else f's[{S_MASKB}:{S_MASKB+1}]'
    e(f'v_cmp_lt_u32 {m}, v{P}, v{EE}')
    e(f'v_mov_b32 v{T}, s{S_DUM}')
    e('s_nop 0')
    e(f'v_cndmask_b32 v{T}, v{T}, v{P}, {m}')
    e(f'v_add_u32 v{P}, 16, v{P}')
    e(f'ds_read_b128 v[{en}:{en+3}], v{T}')

def masked_loop(pf, tag, body, first_check=2):
    for i in range(NIT):
        e(f's_mov_b64 exec, s[{S_M+4*i}:{S_M+4*i+1}]')
        if i >= first_check:
            e(f's_cbranch_execz {pf}_{tag}_X')
        body(i, 0)
        if body.__code__.co_argcount == 2 and getattr(body, 'two', True):
            e(f's_mov_b64 exec, s[{S_M+4*i+2}:{S_M+4*i+3}]')
            body(i, 1)
    lab(f'{pf}_{tag}_X')
    e('s_mov_b64 exec, -1')

def gemm_steps(ks_list, vB, vA, tB, tA, part_off):
    for ks in ks_list:
        e(f'ds_read_b128 v[{tB}:{tB+3}], v{vB} offset:{(ks&1)*64 + part_off(ks)}')
        for mt in range(3):
            e(f'ds_read_b128 v[{tA[mt]}:{tA[mt]+3}], v{vA} offset:{(ks*4+mt)*1024}')
        e('s_waitcnt lgkmcnt(2)')
        e(f'v_mfma_f32_16x16x32_bf16 v[{ACCO}:{ACCO+3}], v[{tA[0]}:{tA[0]+3}], v[{tB}:{tB+3}], v[{ACCO}:{ACCO+3}]')
        e(f'ds_read_b128 v[{tA[0]}:{tA[0]+3}], v{vA} offset:{(ks*4+3)*1024}')
        e('s_waitcnt lgkmcnt(2)')
        e(f'v_mfma_f32_16x16x32_bf16 v[{ACCO+4}:{ACCO+7}], v[{tA[1]}:{tA[1]+3}], v[{tB}:{tB+3}], v[{ACCO+4}:{ACCO+7}]')
        e('s_waitcnt lgkmcnt(1)')
        e(f'v_mfma_f32_16x16x32_bf16 v[{ACCO+8}:{ACCO+11}], v[{tA[2]}:{tA[2]+3}], v[{tB}:{tB+3}], v[{ACCO+8}:{ACCO+11}]')
        e('s_waitcnt lgkmcnt(0)')
        e(f'v_mfma_f32_16x16x32_bf16 v[{ACCO+12}:{ACCO+15}], v[{tA[0]}:{tA[0]+3}], v[{tB}:{tB+3}], v[{ACCO+12}:{ACCO+15}]')

def frag_addrs(vb, va, vrow):
    e(f'v_and_b32 v{vrow}, 15, v0')
    e(f's_lshl_b32 s{S_TMP}, s{S_WAVE}, 7')
    e(f's_add_u32 s{S_TMP}, s{S_TMP}, {L_DESC}')
    e(f'v_lshl_add_u32 v{vrow}, v{vrow}, 3, s{S_TMP}')
    e(f'ds_read_b32 v{vrow}, v{vrow}')
    e(f'v_bfe_u32 v{va}, v0, 4, 2')
    e(f'v_lshlrev_b32 v{vb}, 4, v{va}')
    e(f'v_add_u32 v{vb}, {L_ROWS}, v{vb}')
    e(f'v_and_b32 v{va}, 63, v0')
    e(f'v_lshlrev_b32 v{va}, 4, v{va}')
    e(f'v_add_u32 v{va}, {L_W}, v{va}')
    e('s_waitcnt lgkmcnt(0)')
    e(f'v_and_b32 v{vrow}, 255, v{vrow}')
    e(f'v_mad_u32_u24 v{vb}, v{vrow}, s{S_RS}, v{vb}')

def prefetch(lanes, base_line, vdst, vtmp):
    if lanes == 0: return
    e(f's_lshr_b32 s{S_TMP}, s2, 3')
    e(f's_min_u32 s{S_TMP}, s{S_TMP}, 30')
    e(f's_mul_i32 s{S_TMP}, s{S_TMP}, {NW}')
    e(f's_add_u32 s{S_TMP}, s{S_TMP}, s{S_WAVE}')
    e(f's_mul_i32 s{S_TMP}, s{S_TMP}, {lanes*128}')
    e(f's_add_u32 s{S_TMP}, s{S_TMP}, {base_line*128}')
    e(f'v_and_b32 v{vtmp}, 63, v0')
    e(f'v_lshlrev_b32 v{vtmp}, 7, v{vtmp}')
    e(f'v_add_u32 v{vtmp}, s{S_TMP}, v{vtmp}')
    if lanes < 64:
        m = (1 << lanes) - 1
        e(f's_mov_b32 exec_lo, {hex(m & 0xffffffff)}')
        e(f's_mov_b32 exec_hi, {hex(m >> 32)}')
    e(f's_mov_b32 m0, {L_JUNK}')
    e('s_nop 0')
    e(f'buffer_load_dword v{vtmp}, s[{S_TAB}:{S_TAB+3}], 0 offen lds')
    e('s_mov_b64 exec, -1')

S_RS = S_TILE
S_PH = 72
S_FIRST = 73

def gen_k23(k3):
    pf = 'K3' if k3 else 'K2'
    kernel_head('pass2_kernel' if k3 else 'pass1_kernel')
    e(f's_cmp_ge_u32 s2, {NB}')
    e(f's_cbranch_scc1 {pf}_XTRA')
    stamp(0, True); stamp(1)
    e('s_load_dwordx2 s[4:5], s[0:1], 0')
    e('s_load_dwordx2 s[6:7], s[0:1], 40')
    e('s_load_dwordx2 s[8:9], s[0:1], 56')
    e('v_lshrrev_b32 v14, 6, v0')
    e('v_and_b32 v15, 7, v0')
    e(f'v_readfirstlane_b32 s{S_WAVE}, v14')
    e(f'v_lshlrev_b32 v{V_J}, 4, v15')
    e(f's_movk_i32 s{S_128}, 128')
    e(f's_mov_b32 s{S_HI}, 0xffff0000')
    e(f's_mov_b32 s{S_ROUND}, 0')
    e(f's_mov_b32 s{S_DUM}, {L_DUMMY}')
    e(f's_mul_i32 s{S_ROW0}, s2, {R*128}')
    e(f's_lshl_b32 s{S_CSR}, s2, 16')
    e(f's_add_u32 s{S_CSR}, s{S_CSR}, {hex(WS_CSR)}')
    e(f's_movk_i32 s{S_RS}, {ROW_STRIDE}')
    tbl = [9, 0, 1, 2, 10, 5, 4, 3, 11, 6, 7, 8, 12] if BAL else list(range(13))
    t64 = sum(v << (4*i) for i, v in enumerate(tbl))
    e(f's_mov_b32 s{S_T}, {hex(t64 & 0xffffffff)}')
    e(f's_mov_b32 s{S_T+1}, {hex(t64 >> 32)}')
    e(f's_lshl_b32 s{S_TMP}, s{S_WAVE}, 2')
    e(f's_lshr_b64 s[{S_T}:{S_T+1}], s[{S_T}:{S_T+1}], s{S_TMP}')
    e(f's_and_b32 s{S_PAIR}, s{S_T}, 15')
    e(f's_lshl_b32 s{S_PAIR}, s{S_PAIR}, 7')
    e(f's_add_u32 s{S_PAIR}, s{S_PAIR}, {L_DESC}')
    e('v_lshlrev_b32 v14, 4, v0')
    e('s_waitcnt lgkmcnt(0)')
    stamp(2)
    srd(S_WS, 8, 9, WS_SIZE)
    if k3:
        e(f'buffer_load_dwordx4 v[64:67], v14, s[{S_WS}:{S_WS+3}], s{S_CSR} offen')
        e(f's_add_u32 s{S_TMP}, s{S_CSR}, {IMG}')
        e(f'buffer_load_dwordx4 v[68:71], v14, s[{S_WS}:{S_WS+3}], s{S_TMP} offen')
        e(f's_mov_b32 s{S_TMP}, {hex(WS_WT)}')
        e(f'buffer_load_dwordx4 v[16:19], v14, s[{S_WS}:{S_WS+3}], s{S_TMP} offen')
        e(f's_add_u32 s{S_TMP}, s{S_TMP}, {IMG}')
        e(f'buffer_load_dwordx4 v[20:23], v14, s[{S_WS}:{S_WS+3}], s{S_TMP} offen')
        srd(S_X, 4, 5, N * 128)
        srd(S_TAB, 8, 9, N * 128, WS_T1)
        npf = 1 if PF3 else 0
        prefetch(PF3, 0, 127, 126)
        srd(S_OUT, 6, 7, N * 128)
        for i in range(4):
            e(f'v_mov_b32 v{88+i}, 0xffff')
        e(f'v_mov_b32 v15, s{S_DUM}')
        e('ds_write_b128 v15, v[88:91]')
        e(f'v_add_u32 v15, {L_W}, v14')
        e(f's_waitcnt vmcnt({3+npf})')
        stamp(3)
        e(f'ds_write_b128 v14, v[64:67] offset:{L_MAX}')
        e(f's_waitcnt vmcnt({2+npf})')
        e(f'ds_write_b128 v14, v[68:71] offset:{L_MAX + IMG}')
        e(f's_waitcnt vmcnt({1+npf})')
        e('ds_write_b128 v15, v[16:19]')
        e(f'v_cmp_gt_u32 vcc, {1536-NT}, v0')
        e(f's_and_saveexec_b64 s[{S_T}:{S_T+1}], vcc')
        e(f's_waitcnt vmcnt({npf})')
        e(f'ds_write_b128 v15, v[20:23] offset:{IMG}')
        e(f's_mov_b64 exec, s[{S_T}:{S_T+1}]')
        e('s_waitcnt lgkmcnt(0)')
        e('s_barrier')
        stamp(4)
        e(f'v_mov_b32 v15, {L_MAX + 4}')
        e('ds_read_b32 v15, v15')
        e('s_waitcnt lgkmcnt(0)')
        e(f'v_readfirstlane_b32 s{S_TOT}, v15')
        e(f's_cmp_le_u32 s{S_TOT}, {(2*IMG - (L_SORT-L_MAX))//4}')
        e(f's_cbranch_scc1 {pf}_PHASE_B')
        e(f's_add_u32 s{S_TMP}, s{S_CSR}, {2*IMG}')
        e(f'buffer_load_dwordx4 v[64:67], v14, s[{S_WS}:{S_WS+3}], s{S_TMP} offen')
        e(f's_add_u32 s{S_TMP}, s{S_CSR}, {3*IMG}')
        e(f'buffer_load_dwordx4 v[68:71], v14, s[{S_WS}:{S_WS+3}], s{S_TMP} offen')
        e('s_waitcnt vmcnt(0)')
        e(f'ds_write_b128 v14, v[64:67] offset:{L_MAX + 2*IMG}')
        e(f'ds_write_b128 v14, v[68:71] offset:{L_MAX + 3*IMG}')
        e('s_waitcnt lgkmcnt(0)')
        e('s_barrier')
        e(f's_branch {pf}_PHASE_B')
    else:
        srd(S_TAB, 4, 5, N * 128)
        srd(S_OUT, 8, 9, N * 128, WS_T1)
        e('v_mov_b32 v14, 0')
        e(f'v_mov_b32 v15, {L_MAX}')
        e('ds_write_b32 v15, v14')

    lab(f'{pf}_ROUND')
    e('v_lshrrev_b32 v100, 2, v0')
    e('v_lshlrev_b32 v14, 2, v100')
    e(f's_and_b32 s{S_TMP}, s2, 7')
    e(f's_lshl_b32 s{S_TMP}, s{S_TMP}, 5')
    e(f's_lshr_b32 s{S_TMP2}, s2, 3')
    e(f's_add_u32 s{S_TMP}, s{S_TMP}, s{S_TMP2}')
    e(f's_lshl_b32 s{S_TMP}, s{S_TMP}, 10')
    e(f's_add_u32 s{S_TMP}, s{S_TMP}, {hex(WS_SEG)}')
    e('v_mov_b32 v103, 0')
    e(f'v_cmp_gt_u32 vcc, {NC*4}, v0')
    e(f's_and_saveexec_b64 s[{S_T}:{S_T+1}], vcc')
    e(f'buffer_load_dword v103, v14, s[{S_WS}:{S_WS+3}], s{S_TMP} offen')
    e(f's_mov_b64 exec, s[{S_T}:{S_T+1}]')
    e('v_lshlrev_b32 v14, 2, v0')
    e('v_mov_b32 v15, 0')
    e('v_cmp_gt_u32 vcc, 512, v0')
    e(f's_and_saveexec_b64 s[{S_T}:{S_T+1}], vcc')
    e('ds_write_b32 v14, v15')
    e(f's_mov_b64 exec, s[{S_T}:{S_T+1}]')
    for i in range(4):
        e(f'v_mov_b32 v{88+i}, 0xffff')
    e('v_lshlrev_b32 v14, 4, v0')
    for i in range(4):
        e(f'ds_write_b128 v14, v[88:91] offset:{L_SORT + i*IMG}')
    e('v_and_b32 v102, 3, v0')
    e('v_lshlrev_b32 v102, 1, v102')
    e(f's_mul_i32 s{S_TMP}, s{S_ROUND}, {S}')
    e(f'v_add_u32 v102, s{S_TMP}, v102')
    e('v_mov_b32 v104, 1')
    e('s_waitcnt vmcnt(0)')
    stamp(3)
    e('v_and_b32 v101, 0xffff, v103')
    e('v_lshrrev_b32 v103, 16, v103')
    e('v_add_u32 v101, v101, v102')
    e('v_lshlrev_b32 v101, 3, v101')
    e('v_lshl_add_u32 v101, v100, 15, v101')
    e('v_sub_u32 v105, v103, v102')
    for i in range(NIT):
        e(f'v_cmp_lt_i32 s[{S_M+4*i}:{S_M+4*i+1}], {8*i}, v105')
        e(f'v_cmp_lt_i32 s[{S_M+4*i+2}:{S_M+4*i+3}], {8*i+1}, v105')
    def b_load(i, w):
        e(f'buffer_load_dwordx4 v[{64+4*i}:{67+4*i}], v101, s[{S_WS}:{S_WS+3}], 0 offen offset:{64*i}')
    b_load.two = False
    masked_loop(pf, 'LD', b_load, 0)
    e('s_waitcnt lgkmcnt(0)')
    e('s_barrier')
    if not k3:
        e(f'v_cmp_lt_u32 vcc, {S}, v103')
        e(f's_cbranch_vccz {pf}_NOMAX')
        e(f'v_mov_b32 v15, {L_MAX}')
        e('ds_max_u32 v15, v103')
        lab(f'{pf}_NOMAX')
    e('s_waitcnt vmcnt(0)')
    stamp(4)
    if not k3:
        prefetch(PF2, PF2BASE, 127, 126)
    def b_atom(i, w):
        r = 65 + 4*i + 2*w
        e(f'v_lshlrev_b32 v{r}, 2, v{r}')
        e(f'ds_add_rtn_u32 v{88+2*i+w}, v{r}, v104')
    masked_loop(pf, 'AT', b_atom)
    e('s_waitcnt lgkmcnt(0)')
    e('s_barrier')
    stamp(5)
    e(f's_cmp_lg_u32 s{S_WAVE}, {NW-1}')
    e(f's_cbranch_scc1 {pf}_SCAN_DONE')
    e('v_and_b32 v106, 63, v0')
    e('v_lshlrev_b32 v14, 5, v106')
    e('ds_read_b128 v[108:111], v14')
    e('ds_read_b128 v[112:115], v14 offset:16')
    e('v_mov_b32 v15, 0')
    e('v_lshlrev_b32 v107, 2, v106')
    e(f'ds_write_b32 v107, v15 offset:{L_H2}')
    e('s_waitcnt lgkmcnt(1)')
    for i in range(8):
        e(f'v_add_u32 v{108+i}, 3, v{108+i}')
        e(f'v_and_b32 v{108+i}, -4, v{108+i}')
    e('v_mov_b32 v48, 0')
    e('v_mov_b32 v49, v108')
    for i in range(2, 8):
        e(f'v_add_u32 v{48+i}, v{47+i}, v{107+i}')
    e('v_add_u32 v56, v55, v115')
    e('v_mov_b32 v57, v56')
    wave_scan(57)
    e('v_sub_u32 v58, v57, v56')
    for i in range(8):
        e(f'v_add_u32 v{48+i}, v58, v{48+i}')
    e(f'ds_write_b128 v14, v[48:51] offset:{L_OFF}')
    e(f'ds_write_b128 v14, v[52:55] offset:{L_OFF+16}')
    e(f'v_readlane_b32 s{S_TMP}, v57, 63')
    e(f'v_mov_b32 v15, {L_MAX+4}')
    e('s_nop 1')
    e(f'v_mov_b32 v59, s{S_TMP}')
    e('ds_write_b32 v15, v59')
    e('s_waitcnt lgkmcnt(0)')
    lab(f'{pf}_SCAN_DONE')
    e('s_barrier')
    stamp(6)
    def b_rd(i, w):
        r = 65 + 4*i + 2*w
        e(f'ds_read_b32 v{r}, v{r} offset:{L_OFF}')
    masked_loop(pf, 'RD', b_rd)
    e('s_waitcnt lgkmcnt(0)')
    def b_wr(i, w):
        r = 65 + 4*i + 2*w
        e(f'v_add_lshl_u32 v{r}, v{r}, v{88+2*i+w}, 2')
        e(f'ds_write_b32 v{r}, v{r-1} offset:{L_SORT}')
    masked_loop(pf, 'WR', b_wr)
    e(f's_cmp_lg_u32 s{S_WAVE}, {NW-1}')
    e(f's_cbranch_scc1 {pf}_DESC_DONE')
    e(f's_cmp_lg_u32 s{S_ROUND}, 0')
    e(f's_cbranch_scc1 {pf}_DESC_REDO')
    if not k3:
        e('v_cmp_gt_u32 vcc, 50, v106')
        e(f's_mov_b64 s[{S_T}:{S_T+1}], vcc')
        e('s_mov_b64 exec, vcc')
        for i in range(4):
            a0 = 108 + 2*i; a1 = a0 + 1
            e(f'v_lshrrev_b32 v{a0}, 2, v{a0}')
            e(f'v_lshrrev_b32 v{a1}, 2, v{a1}')
            e(f'v_min_u32 v15, 7, v{a0}')
            e(f'v_min_u32 v59, 7, v{a1}')
            e(f'v_lshl_add_u32 v15, v15, 3, v59')
            e(f'v_sub_u32 v15, 63, v15')
            e(f'v_lshlrev_b32 v{116+i}, 2, v15')
            e(f'ds_add_rtn_u32 v{120+i}, v{116+i}, v104 offset:{L_H2}')
        e('s_mov_b64 exec, -1')
        e('s_waitcnt lgkmcnt(0)')
        e(f'ds_read_b32 v124, v107 offset:{L_H2}')
        e('s_waitcnt lgkmcnt(0)')
        e('v_mov_b32 v125, v124')
        wave_scan(125)
        e('v_sub_u32 v125, v125, v124')
        e(f'ds_write_b32 v107, v125 offset:{L_H2+256}')
        e('s_mov_b64 exec, 0xff')
        e(f'v_mov_b32 v60, {R}')
        e('v_mov_b32 v61, 0')
        e('v_lshlrev_b32 v15, 3, v106')
        e(f'ds_write_b64 v15, v[60:61] offset:{L_DESC + R*8}')
        e(f's_mov_b64 exec, s[{S_T}:{S_T+1}]')
        e('s_waitcnt lgkmcnt(0)')
        for i in range(4):
            e(f'ds_read_b32 v{116+i}, v{116+i} offset:{L_H2+256}')
        for i in range(4):
            e(f'v_lshl_add_u32 v15, v106, 2, {i}')
            e(f'v_lshl_or_b32 v{32+2*i}, v{48+2*i}, 6, v15')
            e(f'v_lshl_or_b32 v{33+2*i}, v{109+2*i}, 16, v{108+2*i}')
        e('s_waitcnt lgkmcnt(0)')
        for i in range(4):
            e(f'v_add_lshl_u32 v{116+i}, v{116+i}, v{120+i}, 3')
            e(f'ds_write_b64 v{116+i}, v[{32+2*i}:{33+2*i}] offset:{L_DESC}')
        e('s_mov_b64 exec, -1')
        e(f's_branch {pf}_DESC_DONE')
    lab(f'{pf}_DESC_REDO')
    e('v_cmp_gt_u32 vcc, 52, v106')
    e('s_mov_b64 exec, vcc')
    e(f'ds_read_b128 v[108:111], v14 offset:{L_DESC}')
    e(f'ds_read_b128 v[112:115], v14 offset:{L_DESC+16}')
    e('s_waitcnt lgkmcnt(0)')
    for i in range(4):
        d0 = 108 + 2*i
        e(f'v_and_b32 v{d0}, 255, v{d0}')
        e(f'v_lshlrev_b32 v15, 3, v{d0}')
        e(f'v_add_u32 v15, {L_OFF}, v15')
        e(f'ds_read2_b32 v[{48+4*i}:{49+4*i}], v15 offset0:0 offset1:1')
        e(f'ds_read_b32 v{50+4*i}, v15 offset:8')
    e('s_waitcnt lgkmcnt(0)')
    for i in range(4):
        d0 = 108 + 2*i
        e(f'v_lshl_or_b32 v{d0}, v{48+4*i}, 6, v{d0}')
        e(f'v_sub_u32 v15, v{49+4*i}, v{48+4*i}')
        e(f'v_lshrrev_b32 v15, 2, v15')
        e(f'v_sub_u32 v{d0+1}, v{50+4*i}, v{49+4*i}')
        e(f'v_lshl_or_b32 v{d0+1}, v{d0+1}, 14, v15')
    e(f'ds_write_b128 v14, v[108:111] offset:{L_DESC}')
    e(f'ds_write_b128 v14, v[112:115] offset:{L_DESC+16}')
    e('s_mov_b64 exec, -1')
    lab(f'{pf}_DESC_DONE')
    e('s_waitcnt lgkmcnt(0)')
    e('s_barrier')
    stamp(7)

    lab(f'{pf}_PHASE_B')
    e('s_setprio 3')
    e(f's_mov_b32 s{S_PH}, 0')
    e(f's_mov_b32 s{S_FIRST}, 1')
    e('v_bfe_u32 v15, v0, 3, 3')
    e(f'v_lshl_add_u32 v14, v15, 3, s{S_PAIR}')
    e('ds_read_b64 v[8:9], v14')
    e('ds_read_b64 v[10:11], v14 offset:64')
    e(f'v_mov_b32 v15, {L_MAX}')
    e('ds_read_b64 v[6:7], v15')
    e('s_waitcnt lgkmcnt(0)')
    e(f'v_readfirstlane_b32 s{S_NR}, v6')
    e(f'v_readfirstlane_b32 s{S_TOT}, v7')
    for (D, P, EE) in ((8, V_PA, V_EA), (10, V_PB, V_EB)):
        e(f'v_lshrrev_b32 v{P}, 8, v{D}')
        e(f'v_lshlrev_b32 v{P}, 4, v{P}')
        e(f'v_add_u32 v{P}, {L_SORT}, v{P}')
        e(f'v_and_b32 v{EE}, 0xffff, v{D+1}')
        e(f'v_lshl_add_u32 v{EE}, v{EE}, 4, v{P}')
        e(f'v_and_b32 v{D}, 255, v{D}')
    e(f'v_lshl_or_b32 v{V_ROWS}, v10, 16, v8')
    e('v_and_b32 v14, 1, v0')
    e(f's_mov_b32 s{S_TMP}, 0x0c0c0302')
    e(f's_mov_b32 s{S_TMP2}, 0x03020c0c')
    e('v_cmp_eq_u32 vcc, 0, v14')
    e(f'v_mov_b32 v14, s{S_TMP2}')
    e(f'v_mov_b32 v15, s{S_TMP}')
    e('v_cndmask_b32 v14, v14, v15, vcc')
    e('v_and_b32 v15, 2, v0')
    e('v_cmp_eq_u32 vcc, 0, v15')
    e('v_mov_b32 v15, 0x0c0c0c0c')
    e('s_nop 0')
    e(f'v_cndmask_b32 v{V_SEL0}, v15, v14, vcc')
    e(f'v_cndmask_b32 v{V_SEL1}, v14, v15, vcc')
    lab(f'{pf}_PH_START')
    next_entries(0, 0)
    next_entries(0, 1)
    e(f's_or_b64 s[{S_T}:{S_T+1}], vcc, s[{S_MASKB}:{S_MASKB+1}]')
    e(f's_cselect_b32 s{S_TMP2}, 1, 0')
    next_entries(1, 0)
    next_entries(1, 1)
    e(f's_or_b64 s[{S_T}:{S_T+1}], vcc, s[{S_MASKB}:{S_MASKB+1}]')
    e(f's_cselect_b32 s{S_TMP}, 2, 0')
    e(f's_or_b32 s{S_NST}, s{S_TMP}, s{S_TMP2}')
    e(f's_bitcmp1_b32 s{S_NST}, 0')
    e(f's_cbranch_scc0 {pf}_PRO_DONE')
    e('s_waitcnt lgkmcnt(3)')
    issue(0, 0)
    e('s_waitcnt lgkmcnt(2)')
    issue(0, 1)
    e(f's_bitcmp1_b32 s{S_NST}, 1')
    e(f's_cbranch_scc0 {pf}_PRO_DONE')
    e('s_waitcnt lgkmcnt(1)')
    issue(1, 0)
    e('s_waitcnt lgkmcnt(0)')
    issue(1, 1)
    lab(f'{pf}_PRO_DONE')
    e(f's_cmp_eq_u32 s{S_FIRST}, 0')
    e(f's_cbranch_scc1 {pf}_GO')
    stamp(8)
    if PFBW == 0:
        prefetch(PFB3 if k3 else PFB2, HALF, 0, 14)
    e(f's_mov_b32 s{S_FIRST}, 0')
    e(f's_cmp_lg_u32 s{S_ROUND}, 0')
    e(f's_cbranch_scc1 {pf}_LOADPART')
    if not k3:
        e('v_lshlrev_b32 v14, 4, v0')
        e(f's_lshl_b32 s{S_TMP}, s{S_TOT}, 2')
        e(f's_add_u32 s{S_TMP}, s{S_TMP}, {L_SORT - L_MAX}')
        for i in range(4):
            e(f'v_cmp_gt_u32 vcc, s{S_TMP}, v14')
            e('s_mov_b64 exec, vcc')
            e(f's_cbranch_execz {pf}_SAVED')
            e(f'ds_read_b128 v[32:35], v14 offset:{L_MAX}')
            e('s_waitcnt lgkmcnt(0)')
            e(f'buffer_store_dwordx4 v[32:35], v14, s[{S_WS}:{S_WS+3}], s{S_CSR} offen')
            if i < 3:
                e('s_mov_b64 exec, -1')
                e(f'v_add_u32 v14, {IMG}, v14')
        lab(f'{pf}_SAVED')
        e('s_mov_b64 exec, -1')
        e('s_nop 0')
    for r in range(16):
        e(f'v_mov_b32 v{ACC[0]+r}, 0')
    e(f's_branch {pf}_GO')
    lab(f'{pf}_LOADPART')
    part_addrs()
    e(f'buffer_load_dwordx4 v[32:35], v14, s[{S_WS}:{S_WS+3}], s{S_TMP} offen')
    e(f'buffer_load_dwordx4 v[36:39], v14, s[{S_WS}:{S_WS+3}], s{S_TMP} offen offset:16')
    e(f'buffer_load_dwordx4 v[40:43], v15, s[{S_WS}:{S_WS+3}], s{S_TMP} offen')
    e(f'buffer_load_dwordx4 v[44:47], v15, s[{S_WS}:{S_WS+3}], s{S_TMP} offen offset:16')
    e('s_waitcnt vmcnt(0)')
    lab(f'{pf}_GO')
    e(f's_cmp_eq_u32 s{S_NST}, 0')
    e(f's_cbranch_scc1 {pf}_PH_END')
    e(f's_cmp_eq_u32 s{S_NST}, 1')
    e(f's_cbranch_scc1 {pf}_DRAIN0')
    lab(f'{pf}_LOOP')
    for p in (0, 1):
        e('s_waitcnt vmcnt(12)')
        consume(p, 0)
        next_entries(p, 0)
        e('s_waitcnt vmcnt(8)')
        consume(p, 1)
        next_entries(p, 1)
        e(f's_or_b64 s[{S_T}:{S_T+1}], vcc, s[{S_MASKB}:{S_MASKB+1}]')
        e(f's_cbranch_scc0 {pf}_DRAIN{p^1}')
        e('s_waitcnt lgkmcnt(1)')
        issue(p, 0)
        e('s_waitcnt lgkmcnt(0)')
        issue(p, 1)
    e(f's_branch {pf}_LOOP')
    for q in (1, 0):
        lab(f'{pf}_DRAIN{q}')
        e('s_waitcnt vmcnt(4)')
        consume(q, 0)
        e('s_waitcnt vmcnt(0)')
        consume(q, 1)
        if q == 1:
            e(f's_branch {pf}_PH_END')
    lab(f'{pf}_PH_END')
    e(f's_cmp_lg_u32 s{S_PH}, 0')
    e(f's_cbranch_scc1 {pf}_DONE')
    e(f's_mov_b32 s{S_PH}, 1')
    if k3: stamp(6)
    else: stamp(2)
    e('s_setprio 0')
    if PFBW == 1:
        prefetch(PFB3 if k3 else PFB2, HALF, 0, 14)
    e('v_bfe_u32 v15, v0, 3, 3')
    e(f'v_lshl_add_u32 v14, v15, 3, s{S_PAIR}')
    e('s_waitcnt lgkmcnt(0)')
    e('ds_read2_b32 v[8:9], v14 offset0:1 offset1:17')
    if k3:
        e(f's_cmp_lg_u32 s{S_ROUND}, 0')
        e(f's_cbranch_scc1 {pf}_NOOWN')
        e(f'v_mad_u32_u16 v14, v{V_ROWS}, s{S_128}, v{V_J}')
        e(f'v_mad_u32_u16 v15, v{V_ROWS}, s{S_128}, v{V_J} op_sel:[1,0,0,0]')
        e(f'v_add_u32 v14, s{S_ROW0}, v14')
        e(f'v_add_u32 v15, s{S_ROW0}, v15')
        e(f'buffer_load_dwordx4 v[16:19], v14, s[{S_X}:{S_X+3}], 0 offen')
        e(f'buffer_load_dwordx4 v[20:23], v15, s[{S_X}:{S_X+3}], 0 offen')
        e(f'buffer_load_dwordx4 v[24:27], v14, s[{S_TAB}:{S_TAB+3}], 0 offen')
        e(f'buffer_load_dwordx4 v[28:31], v15, s[{S_TAB}:{S_TAB+3}], 0 offen')
        lab(f'{pf}_NOOWN')
    e(f'v_mov_b32 v{V_PA}, v{V_EA}')
    e(f'v_mov_b32 v{V_PB}, v{V_EB}')
    e('s_waitcnt lgkmcnt(0)')
    e('v_lshrrev_b32 v8, 16, v8')
    e('v_lshrrev_b32 v9, 16, v9')
    e(f'v_lshl_add_u32 v{V_EA}, v8, 4, v{V_EA}')
    e(f'v_lshl_add_u32 v{V_EB}, v9, 4, v{V_EB}')
    e(f's_branch {pf}_PH_START')
    lab(f'{pf}_DONE')
    stamp(9)
    e('s_nop 4')
    e('s_waitcnt lgkmcnt(0)')
    e(f's_add_u32 s{S_ROUND}, s{S_ROUND}, 1')
    e(f's_mul_i32 s{S_TMP}, s{S_ROUND}, {S}')
    e(f's_cmp_ge_u32 s{S_TMP}, s{S_NR}')
    e(f's_cbranch_scc1 {pf}_FINAL')
    part_addrs()
    e(f'buffer_store_dwordx4 v[32:35], v14, s[{S_WS}:{S_WS+3}], s{S_TMP} offen')
    e(f'buffer_store_dwordx4 v[36:39], v14, s[{S_WS}:{S_WS+3}], s{S_TMP} offen offset:16')
    e(f's_cmp_eq_u32 s{S_WAVE}, {NW-1}')
    e(f's_cbranch_scc1 {pf}_NOB')
    e(f'buffer_store_dwordx4 v[40:43], v15, s[{S_WS}:{S_WS+3}], s{S_TMP} offen')
    e(f'buffer_store_dwordx4 v[44:47], v15, s[{S_WS}:{S_WS+3}], s{S_TMP} offen offset:16')
    lab(f'{pf}_NOB')
    e('s_waitcnt vmcnt(0)')
    e('s_barrier')
    e(f's_branch {pf}_ROUND')

    lab(f'{pf}_FINAL')
    if not k3:
        for h in range(2):
            for d in range(4):
                e(f'v_cvt_pk_bf16_f32 v{64+4*h+d}, v{ACC[h]+2*d}, v{ACC[h]+2*d+1}')
        e(f'v_mad_u32_u16 v14, v{V_ROWS}, s{S_128}, v{V_J}')
        e(f'v_mad_u32_u16 v15, v{V_ROWS}, s{S_128}, v{V_J} op_sel:[1,0,0,0]')
        e(f'buffer_store_dwordx4 v[64:67], v14, s[{S_OUT}:{S_OUT+3}], s{S_ROW0} offen')
        e(f's_cmp_eq_u32 s{S_WAVE}, {NW-1}')
        e(f's_cbranch_scc1 {pf}_END')
        e(f'buffer_store_dwordx4 v[68:71], v15, s[{S_OUT}:{S_OUT+3}], s{S_ROW0} offen')
    else:
        AO = 48
        e(f's_mul_i32 s{S_TMP}, s{S_WAVE}, {16*ROW_STRIDE}')
        e(f's_add_u32 s{S_TMP}, s{S_TMP}, {L_ROWS}')
        e('v_bfe_u32 v14, v0, 3, 3')
        e(f'v_mad_u32_u24 v14, v14, s{S_RS}, v{V_J}')
        e(f'v_add_u32 v14, s{S_TMP}, v14')
        e('v_and_b32 v93, 15, v0')
        e('v_bfe_u32 v92, v0, 4, 2')
        e('v_lshlrev_b32 v15, 4, v92')
        e(f'v_mad_u32_u24 v15, v93, s{S_RS}, v15')
        e(f'v_add_u32 v15, s{S_TMP}, v15')
        e(f'v_lshl_add_u32 v93, v93, 3, s{S_PAIR}')
        e('v_and_b32 v94, 63, v0')
        e('v_lshlrev_b32 v94, 4, v94')
        e(f'v_add_u32 v94, {L_W}, v94')
        e('s_waitcnt vmcnt(0)')
        e('ds_write_b128 v14, v[16:19]')
        e(f'ds_write_b128 v14, v[20:23] offset:{8*ROW_STRIDE}')
        e('ds_write_b128 v14, v[24:27] offset:128')
        e(f'ds_write_b128 v14, v[28:31] offset:{8*ROW_STRIDE+128}')
        e('ds_read_b32 v93, v93')
        for ks in range(4):
            e(f'ds_read_b128 v[{64+4*ks}:{67+4*ks}], v15 offset:{(ks&1)*64 + (ks>>1)*128}')
        for f in range(8):
            e(f'ds_read_b128 v[{96+4*f}:{99+4*f}], v94 offset:{f*1024}')
        for h in range(2):
            for d in range(4):
                xs = 16 + 4*h + d
                e(f'v_lshlrev_b32 v88, 16, v{xs}')
                e(f'v_and_b32 v89, s{S_HI}, v{xs}')
                e(f'v_fma_f32 v88, 2.0, v{ACC[h]+2*d}, -v88')
                e(f'v_fma_f32 v89, 2.0, v{ACC[h]+2*d+1}, -v89')
                e(f'v_cvt_pk_bf16_f32 v{80+4*h+d}, v88, v89')
        for r in range(16):
            e(f'v_mov_b32 v{AO+r}, 0')
        e('s_waitcnt lgkmcnt(8)')
        e('ds_write_b128 v14, v[80:83]')
        e(f'ds_write_b128 v14, v[84:87] offset:{8*ROW_STRIDE}')
        e('ds_read_b128 v[16:19], v15')
        e('ds_read_b128 v[20:23], v15 offset:64')
        def bfrag(ks):
            return 64 + 4*ks if ks < 4 else 16 + 4*(ks-4)
        pend = ['A%d' % i for i in range(8)] + ['w', 'w', 'B4', 'B5']
        for f in range(24):
            ks, mt = f // 4, f % 4
            need = ['A%d' % f] + (['B%d' % ks] if ks >= 4 else [])
            idx = max(pend.index(n) for n in need if n in pend) if any(n in pend for n in need) else -1
            if idx >= 0:
                rem = len(pend) - 1 - idx
                e(f's_waitcnt lgkmcnt({min(rem, 15)})')
                pend = pend[idx+1:]
            sl = 96 + 4*(f % 8)
            bq = bfrag(ks)
            e(f'v_mfma_f32_16x16x32_bf16 v[{AO+4*mt}:{AO+4*mt+3}], v[{sl}:{sl+3}], v[{bq}:{bq+3}], v[{AO+4*mt}:{AO+4*mt+3}]')
            if f + 8 < 24:
                e(f'ds_read_b128 v[{sl}:{sl+3}], v94 offset:{(f+8)*1024}')
                pend.append('A%d' % (f+8))
        e('v_and_b32 v93, 255, v93')
        e('v_lshlrev_b32 v14, 5, v92')
        e('v_lshl_add_u32 v14, v93, 7, v14')
        e(f'v_add_u32 v14, s{S_ROW0}, v14')
        e(f'v_cmp_gt_u32 vcc, {R}, v93')
        e('s_and_b64 exec, exec, vcc')
        e('s_nop 7')
        for mt in range(4):
            e(f'v_cvt_pk_bf16_f32 v{64+2*mt}, v{AO+4*mt}, v{AO+4*mt+1}')
            e(f'v_cvt_pk_bf16_f32 v{65+2*mt}, v{AO+4*mt+2}, v{AO+4*mt+3}')
        e(f'buffer_store_dwordx4 v[64:67], v14, s[{S_OUT}:{S_OUT+3}], 0 offen')
        e(f'buffer_store_dwordx4 v[68:71], v14, s[{S_OUT}:{S_OUT+3}], 0 offen offset:16')
    lab(f'{pf}_END')
    dump_stamps(2 if k3 else 1, S_WS)
    lab(f'{pf}_END2')
    e('s_endpgm')
    lab(f'{pf}_XTRA')
    if not k3:
        gen_wprep()
    e('s_endpgm')

def gen_wprep():
    e(f's_cmp_gt_u32 s2, {NB+1}')
    e('s_cbranch_scc1 K2_END2')
    e('s_load_dwordx2 s[10:11], s[0:1], 32')
    e('s_load_dwordx2 s[12:13], s[0:1], 56')
    e(f's_sub_u32 s36, s2, {NB}')
    e('s_mul_i32 s36, s36, 768')
    e('v_cmp_gt_u32 vcc, 768, v0')
    e('s_and_saveexec_b64 s[40:41], vcc')
    e('s_cbranch_execz K2_END2')
    e('v_add_u32 v1, s36, v0')
    e('v_lshrrev_b32 v2, 6, v1')
    e('v_and_b32 v3, 3, v2')
    e('v_lshrrev_b32 v4, 2, v2')
    e('v_and_b32 v5, 15, v1')
    e('v_bfe_u32 v6, v1, 4, 2')
    e('v_lshrrev_b32 v7, 2, v5')
    e('v_lshlrev_b32 v7, 4, v7')
    e('v_lshl_add_u32 v7, v3, 2, v7')
    e('v_and_b32 v8, 3, v5')
    e('v_add_u32 v7, v7, v8')
    e('v_readfirstlane_b32 s38, v4')
    e('v_lshlrev_b32 v9, 12, v4')
    e('s_waitcnt lgkmcnt(0)')
    srd(16, 10, 11, 3 * 64 * 64 * 2)
    srd(28, 12, 13, WS_SIZE)
    e(f's_mov_b32 s37, {hex(WS_WT)}')
    e('s_lshr_b32 s38, s38, 1')
    e('s_cmp_eq_u32 s38, 1')
    e('s_cbranch_scc1 K2_WP')
    e('v_lshl_add_u32 v9, v6, 10, v9')
    e('v_lshl_add_u32 v9, v7, 1, v9')
    for j in range(8):
        e(f'buffer_load_ushort v{10+j}, v9, s[16:19], 0 offen offset:{j*128}')
    e('s_branch K2_WQ')
    lab('K2_WP')
    e('v_lshl_add_u32 v9, v6, 7, v9')
    e('v_lshl_add_u32 v9, v7, 1, v9')
    for j in range(8):
        e(f'buffer_load_ushort v{10+j}, v9, s[16:19], 0 offen offset:{(j&3)*1024 + (j>>2)*512}')
    lab('K2_WQ')
    e('s_waitcnt vmcnt(0)')
    for j in range(4):
        e(f'v_lshl_or_b32 v{20+j}, v{11+2*j}, 16, v{10+2*j}')
    e('v_lshlrev_b32 v1, 4, v1')
    e('buffer_store_dwordx4 v[20:23], v1, s[28:31], s37 offen')

S_NST = 74
S_PAIR = 75
def part_addrs():
    e(f'v_mad_u32_u16 v14, v{V_ROWS}, s{S_128}, v{V_J}')
    e(f'v_mad_u32_u16 v15, v{V_ROWS}, s{S_128}, v{V_J} op_sel:[1,0,0,0]')
    e('v_lshlrev_b32 v14, 1, v14')
    e('v_lshlrev_b32 v15, 1, v15')
    e(f's_lshl_b32 s{S_TMP}, s{S_ROW0}, 1')
    e(f's_add_u32 s{S_TMP}, s{S_TMP}, {hex(WS_PART)}')

def kd(name, vgpr, sgpr):
    out.append('.p2align 6')
    out.append(f'.amdhsa_kernel {name}')
    out.append(f'  .amdhsa_next_free_vgpr {vgpr}')
    out.append(f'  .amdhsa_next_free_sgpr {sgpr}')
    out.append(f'  .amdhsa_accum_offset {(vgpr+3)//4*4}')
    out.append('  .amdhsa_group_segment_fixed_size 0')
    out.append('  .amdhsa_kernarg_size 64')
    out.append('  .amdhsa_user_sgpr_count 2')
    out.append('  .amdhsa_user_sgpr_kernarg_segment_ptr 1')
    out.append('  .amdhsa_system_sgpr_workgroup_id_x 1')
    out.append('.end_amdhsa_kernel')

hdr = open('standalone__spectral_conv_chebnet__graph.s.ref').read().split('\n')
for l in hdr:
    if l.startswith(';') and '@launch' not in l and 'Override launch' not in l and 'grid=ceil' not in l:
        out.append(l)
    elif not l.startswith(';'):
        break
G1 = int(os.environ.get('G1', NC)); G2 = NB + 2; G3 = NB
out.append(f'; @launch kernel=part_kernel grid=({G1},1,1) block=(1024,1,1) lds={4096+32768}')
out.append(f'; @launch kernel=pass1_kernel grid=({G2},1,1) block=({NT},1,1) lds={L_END2}')
out.append(f'; @launch kernel=pass2_kernel grid=({G3},1,1) block=({NT},1,1) lds={L_END3}')
out.append('.amdgcn_target "amdgcn-amd-amdhsa--gfx950"')
out.append('.text')
gen_k1()
gen_k23(False)
gen_k23(True)
out.append('.section .rodata,"a"')
sg = 102 if INSTR else 80
kd('part_kernel', 64, sg if INSTR else 56)
kd('pass1_kernel', 128, sg)
kd('pass2_kernel', 128, sg)
dst = sys.argv[1] if len(sys.argv) > 1 else 'standalone__spectral_conv_chebnet__graph.s'
open(dst, 'w').write('\n'.join(out) + '\n')
print('wrote', dst, len(out), 'lines')
```

```python
import sys

N = 50000; E = 800000
R = 200
NB = 250
CH = 4096
NC = 196
S = 48
NIT = S // 8
NW = 13
NT = NW * 64

WS_ENT = 0x0000000
WS_SEG = 0x0800000
WS_WT  = 0x0900000
WS_BAR = 0x0A00000
WS_CSR = 0x1000000
CSR_STRIDE = 0x10000
WS_T1  = 0x2000000
WS_PART = 0x3000000
WS_SIZE = 268435456

L_CNT = 0
L_OFF = 2048
L_MAX = 4096
L_DESC = 4112
L_SYNC = 5792
L_H2 = 5888
L_JUNK = 6912
L_SORT = 7168
RA = 96
SORT_BYTES = NT * 16 * 4
L_DUMMY = L_SORT + SORT_BYTES - 16
L_END2 = L_SORT + SORT_BYTES
L_W = L_END2
L_ROWS = L_W + 24576
ROW_STRIDE = 272
L_END3 = L_ROWS + 208 * ROW_STRIDE
HALF = 25000

import os
INSTR = int(os.environ.get('INSTR', '0'))
PF2 = int(os.environ.get('PF2', '32'))
PF3 = int(os.environ.get('PF3', '24'))
PFB2 = int(os.environ.get('PFB2', '0'))
PFB3 = int(os.environ.get('PFB3', '0'))
PFBW = int(os.environ.get('PFBW', '0'))
BAL = int(os.environ.get('BAL', '1'))
XP = os.environ.get('XP', '')
PF1 = int(os.environ.get('PF1', '0'))
PF2BASE = 24 * 16 * PF1
RENUM = int(os.environ.get('RENUM', '1'))
WS_DBG = 0x8000000
S_ST = 40
NSTAMP = 12
SPIN_MAX = int(os.environ.get('SPIN_MAX', '2000000'))
SCAL = int(os.environ.get('SCAL', '1'))
P1S0 = int(os.environ.get('P1S0', '3')); P1S1 = int(os.environ.get('P1S1', '2')); P2S0 = int(os.environ.get('P2S0', '1')); P2S1 = int(os.environ.get('P2S1', '0'))
P0B = int(os.environ.get('P0B', '3'))
P1A = int(os.environ.get('P1A', '2')); P1B = int(os.environ.get('P1B', '1'))
P2PRIO = int(os.environ.get('P2PRIO', '1'))
NREP = int(os.environ.get('NREP', '16'))
SLP = int(os.environ.get('SLP', '2'))
STMAP = {0: 86, 1: 88, 2: 90, 4: 92, 7: 94, 8: 96, 9: 98, 10: 100, 11: 14}
def stamp(i, real=False):
    if INSTR and i in STMAP:
        r = STMAP[i]
        e(f's_memrealtime s[{r}:{r+1}]' if real else f's_memtime s[{r}:{r+1}]')
def dump_stamps(kidx, ws_srd, wave_sgpr_from_v0=True):
    if not INSTR: return
    e('s_waitcnt vmcnt(0) lgkmcnt(0)')
    stamp(NSTAMP-2); stamp(NSTAMP-1, True)
    e('s_waitcnt lgkmcnt(0)')
    e('s_mov_b64 exec, -1')
    e('v_lshrrev_b32 v1, 6, v0')
    e('s_lshl_b32 s70, s2, 4')
    e('v_add_u32 v1, s70, v1')
    e('v_lshlrev_b32 v1, 7, v1')
    e(f's_mov_b32 s70, {hex(WS_DBG + kidx*0x100000)}')
    e('s_mov_b64 exec, 1')
    for i in range(NSTAMP):
        if i not in STMAP: continue
        e(f'v_mov_b32 v2, s{STMAP[i]}')
        e(f'v_mov_b32 v3, s{STMAP[i]+1}')
        e(f'buffer_store_dwordx2 v[2:3], v1, s[{ws_srd}:{ws_srd+3}], s70 offen offset:{8*i}')
        e('s_nop 1')

out = []
def e(s=''):
    out.append('    ' + s if s and not s.endswith(':') else s)
def lab(s):
    out.append(s + ':')

def srd(d, lo, hi, nbytes, add=0):
    if add:
        e(f's_add_u32 s{d}, s{lo}, {hex(add)}')
        e(f's_addc_u32 s{d+1}, s{hi}, 0')
    else:
        e(f's_mov_b32 s{d}, s{lo}')
        e(f's_mov_b32 s{d+1}, s{hi}')
    e(f's_mov_b32 s{d+2}, {hex(nbytes)}')
    e(f's_mov_b32 s{d+3}, 0x00020000')

def wave_scan(v, op='v_add_u32'):
    for sh in (1, 2, 4, 8):
        e('s_nop 1')
        e(f'{op}_dpp v{v}, v{v}, v{v} row_shr:{sh} row_mask:0xf bank_mask:0xf bound_ctrl:0')
    e('s_nop 1')
    e(f'{op}_dpp v{v}, v{v}, v{v} row_bcast:15 row_mask:0xa bank_mask:0xf')
    e('s_nop 1')
    e(f'{op}_dpp v{v}, v{v}, v{v} row_bcast:31 row_mask:0xc bank_mask:0xf')

def kernel_head(name):
    out.append(f'.globl {name}')
    out.append('.p2align 8')
    out.append(f'.type {name},@function')
    lab(name)

def gen_k1():
    kernel_head('part_kernel')
    e(f's_cmp_ge_u32 s2, {NC}')
    e('s_cbranch_scc1 K1_XTRA')
    stamp(0, True); stamp(1)
    e('s_load_dwordx4 s[4:7], s[0:1], 8')
    e('s_load_dwordx4 s[8:11], s[0:1], 24')
    e('s_load_dwordx2 s[12:13], s[0:1], 56')
    e('s_load_dwordx2 s[44:45], s[0:1], 0')
    e('v_lshlrev_b32 v1, 2, v0')
    e('v_mov_b32 v2, 0')
    e('ds_write_b32 v1, v2')
    e('s_waitcnt lgkmcnt(0)')
    stamp(2)
    srd(16, 4, 5, E * 4)
    srd(20, 6, 7, E * 4)
    srd(24, 8, 9, E * 2)
    srd(28, 12, 13, WS_SIZE)
    srd(40, 44, 45, N * 128)
    e('s_lshl_b32 s14, s2, 12')
    e('v_add_u32 v3, s14, v1')
    e(f's_mov_b32 s15, {E}')
    e('v_cmp_gt_u32 vcc, s15, v3')
    e('v_lshlrev_b32 v13, 2, v3')
    e('v_lshlrev_b32 v12, 1, v3')
    e('s_mov_b64 s[32:33], vcc')
    e('s_mov_b64 exec, vcc')
    e('buffer_load_dwordx4 v[4:7], v13, s[20:23], 0 offen')
    e('buffer_load_dwordx4 v[8:11], v13, s[16:19], 0 offen')
    e('buffer_load_dwordx2 v[14:15], v12, s[24:27], 0 offen')
    e('s_mov_b32 s34, 83887')
    e(f's_mov_b32 s35, {-R & 0xffffffff:#x}')
    e('s_mov_b32 s36, 0xffff0000')
    e('v_mov_b32 v2, 1')
    e('s_barrier')
    e('s_waitcnt vmcnt(2)')
    stamp(3)
    for i in range(4):
        e(f'v_mul_u32_u24 v{16+i}, s34, v{4+i}')
        e(f'v_lshrrev_b32 v{16+i}, 24, v{16+i}')
        e(f'v_mad_i32_i24 v{25+2*i}, v{16+i}, s35, v{4+i}')
        if RENUM:
            e(f'v_and_b32 v3, 7, v{16+i}')
            e(f'v_lshrrev_b32 v{16+i}, 3, v{16+i}')
            e(f'v_lshlrev_b32 v{16+i}, 2, v{16+i}')
            e(f'v_lshl_or_b32 v{16+i}, v3, 7, v{16+i}')
        else:
            e(f'v_lshlrev_b32 v{16+i}, 2, v{16+i}')
        e(f'ds_add_rtn_u32 v{20+i}, v{16+i}, v2')
    e('s_waitcnt vmcnt(0)')
    e(f's_movk_i32 s37, {RA}')
    for i in range(4):
        e(f'v_mul_u32_u24 v3, s34, v{8+i}')
        e('v_lshrrev_b32 v3, 24, v3')
        e(f'v_mad_i32_i24 v3, v3, s35, v{8+i}')
        e(f'v_cmp_le_u32 s[{48+2*i}:{49+2*i}], s37, v3')
    e('v_lshl_or_b32 v24, v14, 16, v8')
    e('v_and_or_b32 v26, v14, s36, v9')
    e('v_lshl_or_b32 v28, v15, 16, v10')
    e('v_and_or_b32 v30, v15, s36, v11')
    for i in range(4):
        e(f'v_addc_co_u32 v{25+2*i}, vcc, v{25+2*i}, v{25+2*i}, s[{48+2*i}:{49+2*i}]')
    e('s_mov_b64 exec, -1')
    if PF1:
        e('s_lshr_b32 s37, s2, 3')
        e('s_min_u32 s37, s37, 23')
        e(f's_mul_i32 s37, s37, {16*PF1*128}')
        e('v_lshrrev_b32 v60, 6, v0')
        e(f'v_mul_u32_u24 v60, {PF1*128}, v60')
        e('v_and_b32 v61, 63, v0')
        e('v_lshl_add_u32 v60, v61, 7, v60')
        e('v_add_u32 v60, s37, v60')
        m = (1 << PF1) - 1
        e(f's_mov_b32 exec_lo, {hex(m & 0xffffffff)}')
        e(f's_mov_b32 exec_hi, {hex(m >> 32)}')
        e('buffer_load_dword v61, v60, s[40:43], 0 offen')
        e('s_mov_b64 exec, -1')
    e('s_waitcnt lgkmcnt(0)')
    e('s_barrier')
    stamp(4)
    e('v_cmp_gt_u32 vcc, 64, v0')
    e('s_cbranch_vccz K1_SCAN_DONE')
    e('v_lshlrev_b32 v32, 4, v0')
    e('ds_read_b128 v[36:39], v32')
    e('s_waitcnt lgkmcnt(0)')
    e('v_add_u32 v41, v36, v37')
    e('v_add_u32 v42, v41, v38')
    e('v_add_u32 v43, v42, v39')
    e('v_mov_b32 v44, v43')
    wave_scan(44)
    e('v_sub_u32 v48, v44, v43')
    e('v_add_u32 v49, v48, v36')
    e('v_add_u32 v50, v48, v41')
    e('v_add_u32 v51, v48, v42')
    e('ds_write_b128 v32, v[48:51] offset:1024')
    for i in range(4):
        e(f'v_lshl_or_b32 v{52+i}, v{36+i}, 16, v{48+i}')
    e('v_lshlrev_b32 v33, 12, v0')
    e('s_lshl_b32 s37, s2, 2')
    e(f's_add_u32 s37, s37, {hex(WS_SEG)}')
    for i in range(4):
        if 'noT' not in XP:
            e(f'buffer_store_dword v{52+i}, v33, s[28:31], s37 offen offset:{i*1024}' + (' sc1' if 'Tplain' not in XP else ''))
    e('s_waitcnt lgkmcnt(0)')
    lab('K1_SCAN_DONE')
    e('s_barrier')
    stamp(5)
    e('s_mov_b64 exec, s[32:33]')
    for i in range(4):
        e(f'ds_read_b32 v{32+i}, v{16+i} offset:1024')
    for i in range(4):
        e(f's_waitcnt lgkmcnt({3-i})')
        e(f'v_add_lshl_u32 v{32+i}, v{32+i}, v{20+i}, 3')
        e(f'ds_write_b64 v{32+i}, v[{24+2*i}:{25+2*i}] offset:4096')
    e('s_mov_b64 exec, -1')
    e('s_waitcnt lgkmcnt(0)')
    e('s_barrier')
    stamp(6)
    e('v_lshlrev_b32 v36, 4, v0')
    e('ds_read_b128 v[40:43], v36 offset:4096')
    e('ds_read_b128 v[44:47], v36 offset:20480')
    e('s_lshl_b32 s37, s2, 15')
    e('s_add_u32 s38, s37, 16384')
    e('s_waitcnt lgkmcnt(1)')
    pol = '' if 'Eplain' in XP else ' sc1'
    if 'noE' not in XP:
        e('buffer_store_dwordx4 v[40:43], v36, s[28:31], s37 offen' + pol)
    e('s_waitcnt lgkmcnt(0)')
    if 'noE' not in XP:
        e('buffer_store_dwordx4 v[44:47], v36, s[28:31], s38 offen' + pol)
    stamp(7)
    dump_stamps(0, 28)
    e('s_endpgm')
    lab('K1_XTRA')
    gen_wprep()
    lab('K1_END')
    e('s_endpgm')

X = [64, 96]
EN = [48, 56]
ACC = [32, 40]
ACCO = 16
V_J = 1; V_PA = 2; V_EA = 3; V_PB = 4; V_EB = 5; V_TA = 6; V_TB = 7
V_W = 8
V_ROWS = 12
S_TAB = 16; S_WS = 20; S_OUT = 24; S_X = 28
S_128 = 32; S_HI = 33; S_ROUND = 34; S_NR = 35
S_MASKB = 36
S_T = 38
S_M = 40
S_CSR = 64; S_TMP = 65; S_TMP2 = 66; S_WAVE = 67; S_ROW0 = 68; S_TOT = 69; S_DUM = 70; S_TILE = 71
IMG = NT * 16

def issue(p, half):
    x = X[p] + 16 * half
    en = EN[p] + 4 * half
    for u in range(4):
        e(f'v_mad_u32_u16 v{x+4*u}, v{en+u}, s{S_128}, v{V_J}')
    for u in range(4):
        e(f'buffer_load_dwordx4 v[{x+4*u}:{x+4*u+3}], v{x+4*u}, s[{S_TAB}:{S_TAB+3}], 0 offen sc1')

V_SEL0 = 7; V_SEL1 = 13
def consume(p, half):
    x = X[p] + 16 * half
    en = EN[p] + 4 * half
    acc = ACC[half]
    def perm(bs, u):
        e(f'v_perm_b32 v{V_W+2*bs}, v{en+u}, v{en+u}, v{V_SEL0}')
        e(f'v_perm_b32 v{V_W+2*bs+1}, v{en+u}, v{en+u}, v{V_SEL1}')
    def mm(bs, u):
        e(f'v_mfma_f32_4x4x4_16b_bf16 v[{acc}:{acc+3}], v[{x+4*u}:{x+4*u+1}], v[{V_W+2*bs}:{V_W+2*bs+1}], v[{acc}:{acc+3}]')
        e(f'v_mfma_f32_4x4x4_16b_bf16 v[{acc+4}:{acc+7}], v[{x+4*u+2}:{x+4*u+3}], v[{V_W+2*bs}:{V_W+2*bs+1}], v[{acc+4}:{acc+7}]')
    perm(0, 0); perm(1, 1)
    mm(0, 0)
    perm(0, 2)
    mm(1, 1)
    perm(1, 3)
    mm(0, 2)
    e('s_nop 0')
    mm(1, 3)

def next_entries(p, half):
    P = V_PA if half == 0 else V_PB
    EE = V_EA if half == 0 else V_EB
    T = V_TA
    en = EN[p] + 4 * half
    m = 'vcc' if half == 0 else f's[{S_MASKB}:{S_MASKB+1}]'
    e(f'v_cmp_lt_u32 {m}, v{P}, v{EE}')
    e(f'v_mov_b32 v{T}, s{S_DUM}')
    e('s_nop 0')
    e(f'v_cndmask_b32 v{T}, v{T}, v{P}, {m}')
    e(f'v_add_u32 v{P}, s{S_INC}, v{P}')
    e(f'ds_read_b128 v[{en}:{en+3}], v{T}')

def masked_loop(pf, tag, body, first_check=2):
    for i in range(NIT):
        e(f's_mov_b64 exec, s[{S_M+4*i}:{S_M+4*i+1}]')
        if i >= first_check:
            e(f's_cbranch_execz {pf}_{tag}_X')
        body(i, 0)
        if body.__code__.co_argcount == 2 and getattr(body, 'two', True):
            e(f's_mov_b64 exec, s[{S_M+4*i+2}:{S_M+4*i+3}]')
            body(i, 1)
    lab(f'{pf}_{tag}_X')
    e('s_mov_b64 exec, -1')

def gemm_steps(ks_list, vB, vA, tB, tA, part_off):
    for ks in ks_list:
        e(f'ds_read_b128 v[{tB}:{tB+3}], v{vB} offset:{(ks&1)*64 + part_off(ks)}')
        for mt in range(3):
            e(f'ds_read_b128 v[{tA[mt]}:{tA[mt]+3}], v{vA} offset:{(ks*4+mt)*1024}')
        e('s_waitcnt lgkmcnt(2)')
        e(f'v_mfma_f32_16x16x32_bf16 v[{ACCO}:{ACCO+3}], v[{tA[0]}:{tA[0]+3}], v[{tB}:{tB+3}], v[{ACCO}:{ACCO+3}]')
        e(f'ds_read_b128 v[{tA[0]}:{tA[0]+3}], v{vA} offset:{(ks*4+3)*1024}')
        e('s_waitcnt lgkmcnt(2)')
        e(f'v_mfma_f32_16x16x32_bf16 v[{ACCO+4}:{ACCO+7}], v[{tA[1]}:{tA[1]+3}], v[{tB}:{tB+3}], v[{ACCO+4}:{ACCO+7}]')
        e('s_waitcnt lgkmcnt(1)')
        e(f'v_mfma_f32_16x16x32_bf16 v[{ACCO+8}:{ACCO+11}], v[{tA[2]}:{tA[2]+3}], v[{tB}:{tB+3}], v[{ACCO+8}:{ACCO+11}]')
        e('s_waitcnt lgkmcnt(0)')
        e(f'v_mfma_f32_16x16x32_bf16 v[{ACCO+12}:{ACCO+15}], v[{tA[0]}:{tA[0]+3}], v[{tB}:{tB+3}], v[{ACCO+12}:{ACCO+15}]')

def frag_addrs(vb, va, vrow):
    e(f'v_and_b32 v{vrow}, 15, v0')
    e(f's_lshl_b32 s{S_TMP}, s{S_WAVE}, 7')
    e(f's_add_u32 s{S_TMP}, s{S_TMP}, {L_DESC}')
    e(f'v_lshl_add_u32 v{vrow}, v{vrow}, 3, s{S_TMP}')
    e(f'ds_read_b32 v{vrow}, v{vrow}')
    e(f'v_bfe_u32 v{va}, v0, 4, 2')
    e(f'v_lshlrev_b32 v{vb}, 4, v{va}')
    e(f'v_add_u32 v{vb}, {L_ROWS}, v{vb}')
    e(f'v_and_b32 v{va}, 63, v0')
    e(f'v_lshlrev_b32 v{va}, 4, v{va}')
    e(f'v_add_u32 v{va}, {L_W}, v{va}')
    e('s_waitcnt lgkmcnt(0)')
    e(f'v_and_b32 v{vrow}, 255, v{vrow}')
    e(f'v_mad_u32_u24 v{vb}, v{vrow}, s{S_RS}, v{vb}')

def prefetch(lanes, base_line, vdst, vtmp):
    if lanes == 0: return
    e(f's_lshr_b32 s{S_TMP}, s2, 3')
    e(f's_min_u32 s{S_TMP}, s{S_TMP}, 30')
    e(f's_mul_i32 s{S_TMP}, s{S_TMP}, {NW}')
    e(f's_add_u32 s{S_TMP}, s{S_TMP}, s{S_WAVE}')
    e(f's_mul_i32 s{S_TMP}, s{S_TMP}, {lanes}')
    e(f's_add_u32 s{S_TMP}, s{S_TMP}, {base_line}')
    e(f'v_and_b32 v{vtmp}, 63, v0')
    e(f'v_add_u32 v{vtmp}, s{S_TMP}, v{vtmp}')
    e(f's_mov_b32 s{S_TMP}, 43691')
    e(f'v_mul_u32_u24 v{vdst}, s{S_TMP}, v{vtmp}')
    e(f'v_lshrrev_b32 v{vdst}, 22, v{vdst}')
    e(f's_movk_i32 s{S_TMP}, {R-RA}')
    e(f'v_mad_u32_u24 v{vtmp}, v{vdst}, s{S_TMP}, v{vtmp}')
    e(f'v_lshlrev_b32 v{vtmp}, 7, v{vtmp}')
    if lanes < 64:
        m = (1 << lanes) - 1
        e(f's_mov_b32 exec_lo, {hex(m & 0xffffffff)}')
        e(f's_mov_b32 exec_hi, {hex(m >> 32)}')
    e(f's_mov_b32 m0, {L_JUNK}')
    e('s_nop 0')
    e(f'buffer_load_dword v{vtmp}, s[{S_TAB}:{S_TAB+3}], 0 offen lds')
    e('s_mov_b64 exec, -1')

S_RS = S_TILE
S_PH = 72
S_FIRST = 73

S_T1 = 76
S_DBG = 80
S_PASS = 84
S_SPIN = 85
S_ONE = 80
S_INC = 69

def tile_regs(vw, vb, va):
    e(f's_mul_i32 s{S_TMP}, s{S_WAVE}, {16*ROW_STRIDE}')
    e(f's_add_u32 s{S_TMP}, s{S_TMP}, {L_ROWS}')
    e(f'v_bfe_u32 v{vw}, v0, 3, 3')
    e(f'v_mad_u32_u24 v{vw}, v{vw}, s{S_RS}, v{V_J}')
    e(f'v_add_u32 v{vw}, s{S_TMP}, v{vw}')
    e(f'v_and_b32 v{va}, 15, v0')
    e(f'v_bfe_u32 v{vb}, v0, 4, 2')
    e(f'v_lshlrev_b32 v{vb}, 4, v{vb}')
    e(f'v_mad_u32_u24 v{vb}, v{va}, s{S_RS}, v{vb}')
    e(f'v_add_u32 v{vb}, s{S_TMP}, v{vb}')
    e(f'v_and_b32 v{va}, 63, v0')
    e(f'v_lshlrev_b32 v{va}, 4, v{va}')
    e(f'v_add_u32 v{va}, {L_W}, v{va}')

def mfma_run(f0, f1, bfrag, pend, va):
    pend = list(pend)
    for f in range(f0, f1):
        ks, mt = f // 4, f % 4
        need = ['A%d' % f, 'B%d' % ks]
        idxs = [pend.index(n) for n in need if n in pend]
        if idxs:
            idx = max(idxs)
            rem = len(pend) - 1 - idx
            e(f's_waitcnt lgkmcnt({min(rem, 15)})')
            pend = pend[idx+1:]
        sl = 96 + 4*(f % 8)
        bq = bfrag(ks)
        e(f'v_mfma_f32_16x16x32_bf16 v[{ACCO+4*mt}:{ACCO+4*mt+3}], v[{sl}:{sl+3}], v[{bq}:{bq+3}], v[{ACCO+4*mt}:{ACCO+4*mt+3}]')
        if f + 8 < f1:
            e(f'ds_read_b128 v[{sl}:{sl+3}], v{va} offset:{(f+8)*1024}')
            pend.append('A%d' % (f+8))

def gen_main():
    pf = 'M'
    kernel_head('main_kernel')
    e(f's_cmp_ge_u32 s2, {NB}')
    e(f's_cbranch_scc1 {pf}_END2')
    stamp(0, True); stamp(1)
    e('s_load_dwordx2 s[4:5], s[0:1], 0')
    e('s_load_dwordx4 s[8:11], s[0:1], 40')
    e('s_load_dwordx2 s[12:13], s[0:1], 56')
    e('v_lshrrev_b32 v14, 6, v0')
    e('v_and_b32 v15, 7, v0')
    e(f'v_readfirstlane_b32 s{S_WAVE}, v14')
    e(f'v_lshlrev_b32 v{V_J}, 4, v15')
    e(f's_movk_i32 s{S_128}, 128')
    e(f's_mov_b32 s{S_HI}, 0xffff0000')
    e(f's_mov_b32 s{S_ROUND}, 0')
    e(f's_mov_b32 s{S_PASS}, 0')
    e(f's_mov_b32 s{S_DUM}, {L_DUMMY}')
    e(f's_mul_i32 s{S_ROW0}, s2, {R*128}')
    e(f's_movk_i32 s{S_RS}, {ROW_STRIDE}')
    tbl = {1: [3, 0, 1, 2, 4, 7, 6, 5, 11, 8, 9, 10, 12], 2: [9, 0, 1, 2, 10, 5, 4, 3, 11, 6, 7, 8, 12], 0: list(range(13))}[BAL]
    t64 = sum(v << (4*i) for i, v in enumerate(tbl))
    e(f's_mov_b32 s{S_T}, {hex(t64 & 0xffffffff)}')
    e(f's_mov_b32 s{S_T+1}, {hex(t64 >> 32)}')
    e(f's_lshl_b32 s{S_TMP}, s{S_WAVE}, 2')
    e(f's_lshr_b64 s[{S_T}:{S_T+1}], s[{S_T}:{S_T+1}], s{S_TMP}')
    e(f's_and_b32 s{S_PAIR}, s{S_T}, 15')
    e(f's_lshl_b32 s{S_PAIR}, s{S_PAIR}, 6')
    e(f's_add_u32 s{S_PAIR}, s{S_PAIR}, {L_DESC}')
    e('v_mov_b32 v14, 0')
    e(f'v_mov_b32 v15, {L_MAX}')
    e('ds_write_b32 v15, v14')
    e('v_and_b32 v15, 7, v0')
    e('v_lshlrev_b32 v15, 2, v15')
    e(f'ds_write_b32 v15, v14 offset:{L_SYNC}')
    e('s_waitcnt lgkmcnt(0)')
    stamp(2)
    srd(S_WS, 12, 13, WS_SIZE)

    lab(f'{pf}_ROUND')
    e('v_lshrrev_b32 v100, 2, v0')
    e('v_lshlrev_b32 v14, 2, v100')
    e(f's_and_b32 s{S_TMP}, s2, 7')
    e(f's_lshl_b32 s{S_TMP}, s{S_TMP}, 5')
    e(f's_lshr_b32 s{S_TMP2}, s2, 3')
    e(f's_add_u32 s{S_TMP}, s{S_TMP}, s{S_TMP2}')
    e(f's_lshl_b32 s{S_TMP}, s{S_TMP}, 10')
    e(f's_add_u32 s{S_TMP}, s{S_TMP}, {hex(WS_SEG)}')
    e('v_mov_b32 v103, 0')
    e(f'v_cmp_gt_u32 vcc, {NC*4}, v0')
    e(f's_and_saveexec_b64 s[{S_T}:{S_T+1}], vcc')
    e(f'buffer_load_dword v103, v14, s[{S_WS}:{S_WS+3}], s{S_TMP} offen')
    e(f's_mov_b64 exec, s[{S_T}:{S_T+1}]')
    e(f's_or_b32 s{S_TMP}, s{S_PASS}, s{S_ROUND}')
    e(f's_cmp_lg_u32 s{S_TMP}, 0')
    e(f's_cbranch_scc1 {pf}_NOSRD')
    srd(S_TAB, 4, 5, N * 128)
    srd(S_X, 4, 5, N * 128)
    srd(S_T1, 12, 13, N * 128, WS_T1)
    srd(S_OUT, 8, 9, N * 128)
    e('v_lshlrev_b32 v14, 4, v0')
    e(f's_mov_b32 s{S_TMP}, {hex(WS_WT)}')
    e(f'buffer_load_dwordx4 v[16:19], v14, s[{S_WS}:{S_WS+3}], s{S_TMP} offen')
    e(f's_add_u32 s{S_TMP}, s{S_TMP}, {IMG}')
    e(f'buffer_load_dwordx4 v[20:23], v14, s[{S_WS}:{S_WS+3}], s{S_TMP} offen')
    lab(f'{pf}_NOSRD')
    e('v_lshlrev_b32 v14, 2, v0')
    e('v_mov_b32 v15, 0')
    e('v_cmp_gt_u32 vcc, 512, v0')
    e(f's_and_saveexec_b64 s[{S_T}:{S_T+1}], vcc')
    e('ds_write_b32 v14, v15')
    e(f's_mov_b64 exec, s[{S_T}:{S_T+1}]')
    for i in range(4):
        e(f'v_mov_b32 v{88+i}, 0xffff')
    e('v_lshlrev_b32 v14, 4, v0')
    for i in range(4):
        e(f'ds_write_b128 v14, v[88:91] offset:{L_SORT + i*IMG}')
    e('v_and_b32 v102, 3, v0')
    e('v_lshlrev_b32 v102, 1, v102')
    e(f's_mul_i32 s{S_TMP}, s{S_ROUND}, {S}')
    e(f'v_add_u32 v102, s{S_TMP}, v102')
    e('v_mov_b32 v104, 1')
    e('s_waitcnt vmcnt(2)')
    e(f's_or_b32 s{S_TMP}, s{S_PASS}, s{S_ROUND}')
    e(f's_cmp_eq_u32 s{S_TMP}, 0')
    e(f's_cbranch_scc1 {pf}_DW')
    e('s_waitcnt vmcnt(0)')
    lab(f'{pf}_DW')
    stamp(3)
    e('v_and_b32 v101, 0xffff, v103')
    e('v_lshrrev_b32 v103, 16, v103')
    e('v_add_u32 v101, v101, v102')
    e('v_lshlrev_b32 v101, 3, v101')
    e('v_lshl_add_u32 v101, v100, 15, v101')
    e('v_sub_u32 v105, v103, v102')
    for i in range(NIT):
        e(f'v_cmp_lt_i32 s[{S_M+4*i}:{S_M+4*i+1}], {8*i}, v105')
        e(f'v_cmp_lt_i32 s[{S_M+4*i+2}:{S_M+4*i+3}], {8*i+1}, v105')
    def b_load(i, w):
        e(f'buffer_load_dwordx4 v[{64+4*i}:{67+4*i}], v101, s[{S_WS}:{S_WS+3}], 0 offen offset:{64*i}')
    b_load.two = False
    masked_loop(pf, 'LD', b_load, 0)
    e('s_waitcnt lgkmcnt(0)')
    e('s_barrier')
    e(f'v_cmp_lt_u32 vcc, {S}, v103')
    e(f's_cbranch_vccz {pf}_NOMAX')
    e(f'v_mov_b32 v15, {L_MAX}')
    e('ds_max_u32 v15, v103')
    lab(f'{pf}_NOMAX')
    e('s_waitcnt vmcnt(0)')
    e(f's_or_b32 s{S_TMP}, s{S_PASS}, s{S_ROUND}')
    e(f's_cmp_lg_u32 s{S_TMP}, 0')
    e(f's_cbranch_scc1 {pf}_NOW')
    prefetch(PF2, PF2BASE, 127, 126)
    e('v_lshlrev_b32 v14, 4, v0')
    e(f'v_add_u32 v14, {L_W}, v14')
    e('ds_write_b128 v14, v[16:19]')
    e(f'v_cmp_gt_u32 vcc, {1536-NT}, v0')
    e(f's_and_saveexec_b64 s[{S_T}:{S_T+1}], vcc')
    e(f'ds_write_b128 v14, v[20:23] offset:{IMG}')
    e(f's_mov_b64 exec, s[{S_T}:{S_T+1}]')
    lab(f'{pf}_NOW')
    def b_atom(i, w):
        r = 65 + 4*i + 2*w
        e(f'v_lshlrev_b32 v{r}, 2, v{r}')
        e(f'ds_add_rtn_u32 v{88+2*i+w}, v{r}, v104')
    masked_loop(pf, 'AT', b_atom)
    e('s_waitcnt lgkmcnt(0)')
    e('s_barrier')
    stamp(5)
    e(f's_cmp_lg_u32 s{S_WAVE}, {NW-1}')
    e(f's_cbranch_scc1 {pf}_SCAN_DONE')
    e('v_and_b32 v106, 63, v0')
    e('v_lshlrev_b32 v14, 5, v106')
    e('ds_read_b128 v[108:111], v14')
    e('ds_read_b128 v[112:115], v14 offset:16')
    e('v_mov_b32 v60, 0')
    e('v_mov_b32 v61, 0')
    e('v_lshlrev_b32 v107, 3, v106')
    e(f'ds_write_b64 v107, v[60:61] offset:{L_H2}')
    e('s_waitcnt lgkmcnt(1)')
    for i in range(8):
        e(f'v_add_u32 v{108+i}, 3, v{108+i}')
        e(f'v_and_b32 v{108+i}, -4, v{108+i}')
    e('v_mov_b32 v48, 0')
    e('v_mov_b32 v49, v108')
    for i in range(2, 8):
        e(f'v_add_u32 v{48+i}, v{47+i}, v{107+i}')
    e('v_add_u32 v56, v55, v115')
    e('v_mov_b32 v57, v56')
    wave_scan(57)
    e('v_sub_u32 v58, v57, v56')
    for i in range(8):
        e(f'v_add_u32 v{48+i}, v58, v{48+i}')
    e(f'ds_write_b128 v14, v[48:51] offset:{L_OFF}')
    e(f'ds_write_b128 v14, v[52:55] offset:{L_OFF+16}')
    e('s_waitcnt lgkmcnt(0)')
    lab(f'{pf}_SCAN_DONE')
    e('s_barrier')
    stamp(6)
    def b_rd(i, w):
        r = 65 + 4*i + 2*w
        e(f'ds_read_b32 v{r}, v{r} offset:{L_OFF}')
    masked_loop(pf, 'RD', b_rd)
    e('s_waitcnt lgkmcnt(0)')
    def b_wr(i, w):
        r = 65 + 4*i + 2*w
        e(f'v_add_lshl_u32 v{r}, v{r}, v{88+2*i+w}, 2')
        e(f'ds_write_b32 v{r}, v{r-1} offset:{L_SORT}')
    masked_loop(pf, 'WR', b_wr)
    e(f's_cmp_lg_u32 s{S_WAVE}, {NW-1}')
    e(f's_cbranch_scc1 {pf}_DESC_DONE')
    e(f's_or_b32 s{S_TMP}, s{S_PASS}, s{S_ROUND}')
    e(f's_cmp_lg_u32 s{S_TMP}, 0')
    e(f's_cbranch_scc1 {pf}_DESC_REDO')
    e('v_cmp_gt_u32 vcc, 50, v106')
    e(f's_mov_b64 s[{S_T}:{S_T+1}], vcc')
    e(f'v_cmp_gt_u32 vcc, {RA//4}, v106')
    e('v_mov_b32 v126, 127')
    e('v_mov_b32 v15, 63')
    e('v_cndmask_b32 v126, v126, v15, vcc')
    e(f's_mov_b64 exec, s[{S_T}:{S_T+1}]')
    for i in range(4):
        a0 = 108 + 2*i; a1 = a0 + 1
        e(f'v_lshrrev_b32 v{a0}, 2, v{a0}')
        e(f'v_lshrrev_b32 v{a1}, 2, v{a1}')
        e(f'v_min_u32 v15, 7, v{a0}')
        e(f'v_min_u32 v59, 7, v{a1}')
        e(f'v_lshl_add_u32 v15, v15, 3, v59')
        e(f'v_sub_u32 v15, v126, v15')
        e(f'v_lshlrev_b32 v{116+i}, 2, v15')
        e(f'ds_add_rtn_u32 v{120+i}, v{116+i}, v104 offset:{L_H2}')
    e('s_mov_b64 exec, -1')
    e('s_waitcnt lgkmcnt(0)')
    e(f'ds_read_b64 v[124:125], v107 offset:{L_H2}')
    e('s_waitcnt lgkmcnt(0)')
    e('v_add_u32 v125, v124, v125')
    e('v_mov_b32 v62, v125')
    wave_scan(62)
    e('v_sub_u32 v62, v62, v125')
    e('v_cmp_lt_u32 vcc, 31, v106')
    e('v_mov_b32 v63, 0')
    e('v_mov_b32 v15, 8')
    e('v_cndmask_b32 v63, v63, v15, vcc')
    e('v_add_u32 v62, v62, v63')
    e('v_add_u32 v63, v62, v124')
    e(f'ds_write_b64 v107, v[62:63] offset:{L_H2+512}')
    e('s_mov_b64 exec, 0xff')
    e(f'v_mov_b32 v60, {R}')
    e('v_mov_b32 v61, 0')
    e('v_lshlrev_b32 v15, 3, v106')
    e(f'ds_write_b64 v15, v[60:61] offset:{L_DESC + RA*8}')
    e(f's_mov_b64 exec, s[{S_T}:{S_T+1}]')
    e('s_waitcnt lgkmcnt(0)')
    for i in range(4):
        e(f'ds_read_b32 v{116+i}, v{116+i} offset:{L_H2+512}')
    for i in range(4):
        e(f'v_lshl_add_u32 v15, v106, 2, {i}')
        e(f'v_lshl_or_b32 v{32+2*i}, v{48+2*i}, 6, v15')
        e(f'v_lshl_or_b32 v{33+2*i}, v{109+2*i}, 16, v{108+2*i}')
    e('s_waitcnt lgkmcnt(0)')
    for i in range(4):
        e(f'v_add_lshl_u32 v{116+i}, v{116+i}, v{120+i}, 3')
        e(f'ds_write_b64 v{116+i}, v[{32+2*i}:{33+2*i}] offset:{L_DESC}')
    e('s_mov_b64 exec, -1')
    e(f's_branch {pf}_DESC_DONE')
    lab(f'{pf}_DESC_REDO')
    e('v_cmp_gt_u32 vcc, 52, v106')
    e('s_mov_b64 exec, vcc')
    e(f'ds_read_b128 v[108:111], v14 offset:{L_DESC}')
    e(f'ds_read_b128 v[112:115], v14 offset:{L_DESC+16}')
    e('s_waitcnt lgkmcnt(0)')
    for i in range(4):
        d0 = 108 + 2*i
        e(f'v_and_b32 v{d0}, 255, v{d0}')
        e(f'v_lshlrev_b32 v15, 3, v{d0}')
        e(f'v_add_u32 v15, {L_OFF}, v15')
        e(f'ds_read2_b32 v[{48+4*i}:{49+4*i}], v15 offset0:0 offset1:1')
        e(f'ds_read_b32 v{50+4*i}, v15 offset:8')
    e('s_waitcnt lgkmcnt(0)')
    for i in range(4):
        d0 = 108 + 2*i
        e(f'v_lshl_or_b32 v{d0}, v{48+4*i}, 6, v{d0}')
        e(f'v_sub_u32 v15, v{49+4*i}, v{48+4*i}')
        e(f'v_lshrrev_b32 v15, 2, v15')
        e(f'v_sub_u32 v{d0+1}, v{50+4*i}, v{49+4*i}')
        e(f'v_lshl_or_b32 v{d0+1}, v{d0+1}, 14, v15')
    e(f'ds_write_b128 v14, v[108:111] offset:{L_DESC}')
    e(f'ds_write_b128 v14, v[112:115] offset:{L_DESC+16}')
    e('s_mov_b64 exec, -1')
    lab(f'{pf}_DESC_DONE')
    e('s_waitcnt lgkmcnt(0)')
    e('s_barrier')
    stamp(7)

    BOFF = (RA + 8) * 8
    lab(f'{pf}_PHASE_B')
    e(f's_mov_b32 s{S_PH}, 0')
    e(f'v_mov_b32 v15, {L_MAX}')
    e('ds_read_b32 v6, v15')
    e('v_and_b32 v14, 1, v0')
    e(f's_mov_b32 s{S_TMP}, 0x0c0c0302')
    e(f's_mov_b32 s{S_TMP2}, 0x03020c0c')
    e('v_cmp_eq_u32 vcc, 0, v14')
    e(f'v_mov_b32 v14, s{S_TMP2}')
    e(f'v_mov_b32 v15, s{S_TMP}')
    e('v_cndmask_b32 v14, v14, v15, vcc')
    e('v_and_b32 v15, 2, v0')
    e('v_cmp_eq_u32 vcc, 0, v15')
    e('v_mov_b32 v15, 0x0c0c0c0c')
    e('s_nop 0')
    e(f'v_cndmask_b32 v{V_SEL0}, v15, v14, vcc')
    e(f'v_cndmask_b32 v{V_SEL1}, v14, v15, vcc')
    e('s_waitcnt lgkmcnt(0)')
    e(f'v_readfirstlane_b32 s{S_NR}, v6')
    lab(f'{pf}_SEG')
    e('v_bfe_u32 v15, v0, 3, 3')
    e(f'v_lshl_add_u32 v14, v15, 3, s{S_PAIR}')
    e('ds_read_b64 v[8:9], v14')
    e(f'ds_read_b64 v[10:11], v14 offset:{BOFF}')
    e(f's_cmp_lg_u32 s{S_PASS}, 0')
    e(f's_cbranch_scc1 {pf}_SEG2')
    e(f's_setprio {P1S0}')
    e(f's_movk_i32 s{S_INC}, 32')
    e('s_waitcnt lgkmcnt(0)')
    e('v_and_b32 v14, 255, v8')
    e('v_and_b32 v15, 255, v10')
    e(f'v_lshl_or_b32 v{V_ROWS}, v15, 16, v14')
    e(f's_cmp_eq_u32 s{S_PH}, 0')
    e(f's_cbranch_scc1 {pf}_SEG1A')
    e(f's_setprio {P1S1}')
    e('v_mov_b32 v8, v10')
    e('v_mov_b32 v9, v11')
    lab(f'{pf}_SEG1A')
    e(f'v_lshrrev_b32 v{V_PA}, 8, v8')
    e(f'v_lshlrev_b32 v{V_PA}, 4, v{V_PA}')
    e(f'v_add_u32 v{V_PA}, {L_SORT}, v{V_PA}')
    e('v_and_b32 v14, 0xffff, v9')
    e('v_lshrrev_b32 v15, 16, v9')
    e('v_add_u32 v14, v14, v15')
    e(f'v_lshl_add_u32 v{V_EA}, v14, 4, v{V_PA}')
    e(f'v_add_u32 v{V_PB}, 16, v{V_PA}')
    e(f'v_mov_b32 v{V_EB}, v{V_EA}')
    e(f's_branch {pf}_GW_OK')
    lab(f'{pf}_SEG2')
    e(f's_movk_i32 s{S_INC}, 16')
    e(f's_lshl_b32 s{S_TMP}, s{S_PH}, 2')
    e(f's_add_u32 s{S_TMP}, s{S_TMP}, {L_SYNC+8}')
    e(f'v_mov_b32 v14, s{S_TMP}')
    e('ds_read_b32 v15, v14')
    e('s_waitcnt lgkmcnt(0)')
    e(f'v_readfirstlane_b32 s{S_TMP2}, v15')
    for (D, P, EE) in ((8, V_PA, V_EA), (10, V_PB, V_EB)):
        e(f'v_lshrrev_b32 v{P}, 8, v{D}')
        e(f'v_lshlrev_b32 v{P}, 4, v{P}')
        e(f'v_add_u32 v{P}, {L_SORT}, v{P}')
        e(f'v_and_b32 v{EE}, 0xffff, v{D+1}')
        e(f'v_lshl_add_u32 v{EE}, v{EE}, 4, v{P}')
    e(f's_setprio {P2S0}')
    e(f's_cmp_eq_u32 s{S_PH}, 0')
    e(f's_cbranch_scc1 {pf}_SEG2A')
    e(f's_setprio {P2S1}')
    for (D, P, EE) in ((8, V_PA, V_EA), (10, V_PB, V_EB)):
        e(f'v_mov_b32 v{P}, v{EE}')
        e(f'v_lshrrev_b32 v{D+1}, 16, v{D+1}')
        e(f'v_lshl_add_u32 v{EE}, v{D+1}, 4, v{EE}')
    lab(f'{pf}_SEG2A')
    e(f's_cmp_lg_u32 s{S_TMP2}, 0')
    e(f's_cbranch_scc1 {pf}_GW_OK')
    e('v_mov_b32 v15, 1')
    e('v_and_b32 v64, 15, v0')
    e('v_lshlrev_b32 v64, 2, v64')
    e('s_mov_b64 exec, 1')
    e('ds_add_rtn_u32 v15, v14, v15 offset:8')
    e(f's_mov_b32 s{S_SPIN}, 0')
    e('s_waitcnt lgkmcnt(0)')
    e(f'v_readfirstlane_b32 s{S_TMP}, v15')
    e(f's_cmp_lg_u32 s{S_TMP}, 0')
    e(f's_cbranch_scc1 {pf}_GW_SPIN')
    e(f's_lshl_b32 s{S_TMP2}, s{S_PH}, 13')
    e(f's_add_u32 s{S_TMP2}, s{S_TMP2}, {hex(WS_BAR+2048)}')
    e(f's_and_b32 s{S_TMP}, s2, 31')
    e(f's_lshl_b32 s{S_TMP}, s{S_TMP}, 7')
    e(f's_add_u32 s{S_TMP2}, s{S_TMP2}, s{S_TMP}')
    if SCAL:
        lab(f'{pf}_POLL')
        e(f's_mov_b32 s{S_TMP}, 0')
        e(f's_atomic_add s{S_TMP}, s[12:13], s{S_TMP2} glc')
        e('s_waitcnt lgkmcnt(0)')
        e(f's_add_u32 s{S_SPIN}, s{S_SPIN}, 1')
        e(f's_cmp_ge_u32 s{S_TMP}, 16')
        e(f's_cbranch_scc1 {pf}_POLLED')
    else:
        e('s_mov_b64 exec, 0xffff')
        lab(f'{pf}_POLL')
        e(f'buffer_load_dword v65, v64, s[{S_WS}:{S_WS+3}], s{S_TMP2} offen sc1')
        e('s_waitcnt vmcnt(0)')
        e('v_cmp_eq_u32 vcc, 0, v65')
        e(f's_add_u32 s{S_SPIN}, s{S_SPIN}, 1')
        e(f's_cbranch_vccz {pf}_POLLED')
    e(f's_cmp_ge_u32 s{S_SPIN}, {SPIN_MAX}')
    e(f's_cbranch_scc1 {pf}_POLLED')
    e(f's_sleep {SLP}')
    e(f's_branch {pf}_POLL')
    lab(f'{pf}_POLLED')
    e('v_mov_b32 v15, 1')
    e('ds_write_b32 v14, v15')
    e(f's_branch {pf}_GW_DONE')
    lab(f'{pf}_GW_SPIN')
    e('s_sleep 1')
    e('ds_read_b32 v15, v14')
    e('s_waitcnt lgkmcnt(0)')
    e(f'v_readfirstlane_b32 s{S_TMP}, v15')
    e(f's_cmp_eq_u32 s{S_TMP}, 0')
    e(f's_cbranch_scc1 {pf}_GW_SPIN')
    lab(f'{pf}_GW_DONE')
    e('s_mov_b64 exec, -1')
    e('s_waitcnt lgkmcnt(0)')
    lab(f'{pf}_GW_OK')
    if INSTR:
        e(f's_lshl_b32 s{S_TMP}, s{S_PASS}, 1')
        e(f's_or_b32 s{S_TMP}, s{S_TMP}, s{S_PH}')
        e(f's_cmp_lg_u32 s{S_TMP}, 2')
        e(f's_cbranch_scc1 {pf}_ST9')
        stamp(9)
        lab(f'{pf}_ST9')
        e(f's_cmp_lg_u32 s{S_TMP}, 3')
        e(f's_cbranch_scc1 {pf}_ST4')
        stamp(4)
        lab(f'{pf}_ST4')
    next_entries(0, 0)
    next_entries(0, 1)
    e(f's_or_b64 s[{S_T}:{S_T+1}], vcc, s[{S_MASKB}:{S_MASKB+1}]')
    e(f's_cselect_b32 s{S_TMP2}, 1, 0')
    next_entries(1, 0)
    next_entries(1, 1)
    e(f's_or_b64 s[{S_T}:{S_T+1}], vcc, s[{S_MASKB}:{S_MASKB+1}]')
    e(f's_cselect_b32 s{S_TMP}, 2, 0')
    e(f's_or_b32 s{S_NST}, s{S_TMP}, s{S_TMP2}')
    e(f's_bitcmp1_b32 s{S_NST}, 0')
    e(f's_cbranch_scc0 {pf}_PRO_DONE')
    e('s_waitcnt lgkmcnt(3)')
    issue(0, 0)
    e('s_waitcnt lgkmcnt(2)')
    issue(0, 1)
    e(f's_bitcmp1_b32 s{S_NST}, 1')
    e(f's_cbranch_scc0 {pf}_PRO_DONE')
    e('s_waitcnt lgkmcnt(1)')
    issue(1, 0)
    e('s_waitcnt lgkmcnt(0)')
    issue(1, 1)
    lab(f'{pf}_PRO_DONE')
    e(f's_and_b32 s{S_TMP}, s{S_PASS}, s{S_PH}')
    e(f's_cmp_lg_u32 s{S_TMP}, 0')
    e(f's_cbranch_scc1 {pf}_GO')
    for r in range(16):
        e(f'v_mov_b32 v{ACC[0]+r}, 0')
    e(f's_cmp_eq_u32 s{S_ROUND}, 0')
    e(f's_cbranch_scc1 {pf}_GO')
    part_addrs()
    e(f's_cmp_lg_u32 s{S_PASS}, 0')
    e(f's_cbranch_scc1 {pf}_LP2')
    e(f's_cmp_eq_u32 s{S_PH}, 0')
    e(f's_cbranch_scc1 {pf}_LP1')
    e('v_mov_b32 v14, v15')
    e(f's_branch {pf}_LP1')
    lab(f'{pf}_LP2')
    e(f'buffer_load_dwordx4 v[40:43], v15, s[{S_WS}:{S_WS+3}], s{S_TMP} offen')
    e(f'buffer_load_dwordx4 v[44:47], v15, s[{S_WS}:{S_WS+3}], s{S_TMP} offen offset:16')
    lab(f'{pf}_LP1')
    e(f'buffer_load_dwordx4 v[32:35], v14, s[{S_WS}:{S_WS+3}], s{S_TMP} offen')
    e(f'buffer_load_dwordx4 v[36:39], v14, s[{S_WS}:{S_WS+3}], s{S_TMP} offen offset:16')
    e('s_waitcnt vmcnt(0)')
    lab(f'{pf}_GO')
    e(f's_cmp_eq_u32 s{S_NST}, 0')
    e(f's_cbranch_scc1 {pf}_SEG_END')
    e(f's_cmp_eq_u32 s{S_NST}, 1')
    e(f's_cbranch_scc1 {pf}_DRAIN0')
    lab(f'{pf}_LOOP')
    for p in (0, 1):
        e('s_waitcnt vmcnt(12)')
        consume(p, 0)
        next_entries(p, 0)
        e('s_waitcnt vmcnt(8)')
        consume(p, 1)
        next_entries(p, 1)
        e(f's_or_b64 s[{S_T}:{S_T+1}], vcc, s[{S_MASKB}:{S_MASKB+1}]')
        e(f's_cbranch_scc0 {pf}_DRAIN{p^1}')
        e('s_waitcnt lgkmcnt(1)')
        issue(p, 0)
        e('s_waitcnt lgkmcnt(0)')
        issue(p, 1)
    e(f's_branch {pf}_LOOP')
    for q in (1, 0):
        lab(f'{pf}_DRAIN{q}')
        e('s_waitcnt vmcnt(4)')
        consume(q, 0)
        e('s_waitcnt vmcnt(0)')
        consume(q, 1)
        if q == 1:
            e(f's_branch {pf}_SEG_END')
    lab(f'{pf}_SEG_END')
    e('s_nop 4')
    e('s_waitcnt lgkmcnt(0)')
    e(f's_add_u32 s{S_TMP}, s{S_ROUND}, 1')
    e(f's_mul_i32 s{S_TMP}, s{S_TMP}, {S}')
    e(f's_cmp_ge_u32 s{S_TMP}, s{S_NR}')
    e(f's_cselect_b32 s{S_FIRST}, 1, 0')
    e(f's_cmp_lg_u32 s{S_PASS}, 0')
    e(f's_cbranch_scc1 {pf}_END_P2')
    for r in range(8):
        e(f'v_add_f32 v{32+r}, v{32+r}, v{40+r}')
    e(f's_cmp_eq_u32 s{S_WAVE}, {NW-1}')
    e(f's_cselect_b32 s{S_TMP}, 1, 0')
    e(f's_andn2_b32 s{S_TMP}, s{S_TMP}, s{S_PH}')
    e(f's_cmp_lg_u32 s{S_TMP}, 0')
    e(f's_cbranch_scc1 {pf}_P1NEXT')
    e(f's_cmp_lg_u32 s{S_FIRST}, 0')
    e(f's_cbranch_scc1 {pf}_PUB')
    part_addrs()
    e(f's_cmp_eq_u32 s{S_PH}, 0')
    e(f's_cbranch_scc1 {pf}_SP1')
    e('v_mov_b32 v14, v15')
    lab(f'{pf}_SP1')
    e(f'buffer_store_dwordx4 v[32:35], v14, s[{S_WS}:{S_WS+3}], s{S_TMP} offen')
    e(f'buffer_store_dwordx4 v[36:39], v14, s[{S_WS}:{S_WS+3}], s{S_TMP} offen offset:16')
    e('s_waitcnt vmcnt(0)')
    e(f's_branch {pf}_P1NEXT')
    lab(f'{pf}_PUB')
    e(f's_cmp_lg_u32 s{S_PH}, 0')
    e(f's_cbranch_scc1 {pf}_PUBB')
    for d in range(4):
        e(f'v_cvt_pk_bf16_f32 v{24+d}, v{32+2*d}, v{33+2*d}')
    e(f'v_mad_u32_u16 v14, v{V_ROWS}, s{S_128}, v{V_J}')
    e(f'v_add_u32 v14, s{S_ROW0}, v14')
    e(f'buffer_store_dwordx4 v[24:27], v14, s[{S_T1}:{S_T1+3}], 0 offen sc1')
    e(f'buffer_load_dwordx4 v[16:19], v14, s[{S_X}:{S_X+3}], 0 offen')
    if 'sig' in XP: stamp(7)
    e(f's_branch {pf}_SIG')
    lab(f'{pf}_PUBB')
    stamp(8)
    for d in range(4):
        e(f'v_cvt_pk_bf16_f32 v{28+d}, v{32+2*d}, v{33+2*d}')
    e(f'v_mad_u32_u16 v14, v{V_ROWS}, s{S_128}, v{V_J} op_sel:[1,0,0,0]')
    e(f'v_add_u32 v14, s{S_ROW0}, v14')
    e(f'buffer_store_dwordx4 v[28:31], v14, s[{S_T1}:{S_T1+3}], 0 offen sc1')
    e(f'buffer_load_dwordx4 v[20:23], v14, s[{S_X}:{S_X+3}], 0 offen')
    lab(f'{pf}_SIG')
    e('v_mov_b32 v65, 1')
    e(f's_lshl_b32 s{S_TMP}, s{S_PH}, 2')
    e(f's_add_u32 s{S_TMP}, s{S_TMP}, {L_SYNC}')
    e(f'v_mov_b32 v66, s{S_TMP}')
    e(f's_lshl_b32 s{S_TMP2}, s{S_PH}, 13')
    e(f's_add_u32 s{S_TMP2}, s{S_TMP2}, {hex(WS_BAR)}')
    e(f's_and_b32 s{S_SPIN}, s2, 15')
    e(f's_lshl_b32 s{S_TMP}, s{S_SPIN}, 7')
    e(f'v_mov_b32 v64, s{S_TMP}')
    e(f's_lshl_b32 s{S_TMP}, s{S_SPIN}, 2')
    e('v_and_b32 v68, 31, v0')
    e(f'v_lshl_add_u32 v68, v68, 7, s{S_TMP}')
    e(f's_cmp_lt_u32 s{S_SPIN}, {NB % 16}')
    e(f's_cselect_b32 s{S_SPIN}, {NB//16}, {NB//16 - 1}')
    e('s_waitcnt vmcnt(1)')
    e('s_mov_b64 exec, 1')
    e('ds_add_rtn_u32 v67, v66, v65')
    e('s_waitcnt lgkmcnt(0)')
    e(f'v_readfirstlane_b32 s{S_TMP}, v67')
    e(f's_sub_u32 s{S_TMP}, s{S_TMP}, s{S_PH}')
    e(f's_cmp_lg_u32 s{S_TMP}, 11')
    e(f's_cbranch_scc1 {pf}_NOSIG')
    if SCAL:
        e(f's_and_b32 s{S_TMP}, s2, 15')
        e(f's_lshl_b32 s{S_TMP}, s{S_TMP}, 7')
        e(f's_add_u32 s{S_T}, s{S_TMP}, s{S_TMP2}')
        e(f's_mov_b32 s{S_TMP}, 1')
        e(f's_atomic_add s{S_TMP}, s[12:13], s{S_T} glc')
        e('s_waitcnt lgkmcnt(0)')
        if 'sig' in XP:
            e(f's_cmp_lg_u32 s{S_PH}, 0')
            e(f's_cbranch_scc1 {pf}_STX')
            stamp(2)
            lab(f'{pf}_STX')
        e(f's_cmp_lg_u32 s{S_TMP}, s{S_SPIN}')
        e(f's_cbranch_scc1 {pf}_NOSIG')
        e(f's_mov_b32 s{S_ONE}, 1')
        for r in range(32):
            e(f's_atomic_add s{S_ONE}, s[12:13], s{S_TMP2} offset:{2048 + r*128}')
            if r % 8 == 7: e('s_waitcnt lgkmcnt(0)')
    else:
        e('v_mov_b32 v67, 1')
        e(f'buffer_atomic_add v67, v64, s[{S_WS}:{S_WS+3}], s{S_TMP2} offen sc0')
        e('s_waitcnt vmcnt(0)')
        if 'sig' in XP:
            e(f's_cmp_lg_u32 s{S_PH}, 0')
            e(f's_cbranch_scc1 {pf}_STX')
            stamp(2)
            lab(f'{pf}_STX')
        e(f'v_readfirstlane_b32 s{S_TMP}, v67')
        e(f's_cmp_lg_u32 s{S_TMP}, s{S_SPIN}')
        e(f's_cbranch_scc1 {pf}_NOSIG')
        e('s_mov_b32 exec_lo, -1')
        e(f'buffer_store_dword v65, v68, s[{S_WS}:{S_WS+3}], s{S_TMP2} offen offset:2048 sc1')
    lab(f'{pf}_NOSIG')
    e('s_mov_b64 exec, -1')
    lab(f'{pf}_P1NEXT')
    e(f's_cmp_lg_u32 s{S_PH}, 0')
    e(f's_cbranch_scc1 {pf}_P1DONE')
    e(f's_mov_b32 s{S_PH}, 1')
    e(f's_branch {pf}_SEG')
    lab(f'{pf}_P1DONE')
    e(f's_cmp_lg_u32 s{S_FIRST}, 0')
    e(f's_cbranch_scc1 {pf}_TOP2')
    lab(f'{pf}_NEXTROUND')
    e(f's_add_u32 s{S_ROUND}, s{S_ROUND}, 1')
    e('s_waitcnt vmcnt(0) lgkmcnt(0)')
    e('s_barrier')
    e(f's_branch {pf}_ROUND')
    lab(f'{pf}_TOP2')
    for i in range(4):
        e(f's_mov_b32 s{S_TAB+i}, s{S_T1+i}')
    e(f's_mov_b32 s{S_PASS}, 1')
    e(f's_mov_b32 s{S_ROUND}, 0')
    e(f's_mov_b32 s{S_PH}, 0')
    tile_regs(14, 15, 94)
    e('ds_write_b128 v14, v[24:27] offset:128')
    e(f'ds_write_b128 v14, v[28:31] offset:{8*ROW_STRIDE+128}')
    for f in range(8):
        e(f'ds_read_b128 v[{96+4*f}:{99+4*f}], v94 offset:{f*1024}')
    e('s_waitcnt vmcnt(0)')
    e('ds_write_b128 v14, v[16:19]')
    e(f'ds_write_b128 v14, v[20:23] offset:{8*ROW_STRIDE}')
    for ks in range(4):
        e(f'ds_read_b128 v[{64+4*ks}:{67+4*ks}], v15 offset:{(ks&1)*64 + (ks>>1)*128}')
    e('s_waitcnt lgkmcnt(4)')
    for r in range(16):
        e(f'v_mov_b32 v{ACCO+r}, 0')
    mfma_run(0, 16, lambda ks: 64 + 4*ks, ['B0', 'B1', 'B2', 'B3'], 94)
    e(f's_cmp_eq_u32 s{S_NR}, 0')
    e(f's_cbranch_scc1 {pf}_SEG')
    e('s_waitcnt lgkmcnt(0)')
    e('s_barrier')
    e(f's_branch {pf}_ROUND')
    lab(f'{pf}_END_P2')
    e(f's_cmp_lg_u32 s{S_PH}, 0')
    e(f's_cbranch_scc1 {pf}_P2DONE')
    e(f's_mov_b32 s{S_PH}, 1')
    e(f's_branch {pf}_SEG')
    lab(f'{pf}_P2DONE')
    e(f's_cmp_lg_u32 s{S_FIRST}, 0')
    e(f's_cbranch_scc1 {pf}_FINAL2')
    part_addrs()
    e(f'buffer_store_dwordx4 v[40:43], v15, s[{S_WS}:{S_WS+3}], s{S_TMP} offen')
    e(f'buffer_store_dwordx4 v[44:47], v15, s[{S_WS}:{S_WS+3}], s{S_TMP} offen offset:16')
    e(f's_cmp_eq_u32 s{S_WAVE}, {NW-1}')
    e(f's_cbranch_scc1 {pf}_NEXTROUND')
    e(f'buffer_store_dwordx4 v[32:35], v14, s[{S_WS}:{S_WS+3}], s{S_TMP} offen')
    e(f'buffer_store_dwordx4 v[36:39], v14, s[{S_WS}:{S_WS+3}], s{S_TMP} offen offset:16')
    e(f's_branch {pf}_NEXTROUND')

    lab(f'{pf}_FINAL2')
    if 'sig' not in XP: stamp(2)
    tile_regs(14, 15, 94)
    e('ds_read_b128 v[64:67], v14')
    e(f'ds_read_b128 v[68:71], v14 offset:{8*ROW_STRIDE}')
    e('v_and_b32 v93, 7, v0')
    e(f'v_lshl_add_u32 v93, v93, 3, s{S_PAIR}')
    e('v_bfe_u32 v92, v0, 3, 1')
    e(f'v_mul_u32_u24 v92, {(RA+8)*8}, v92')
    e('v_add_u32 v93, v93, v92')
    e('ds_read_b32 v93, v93')
    for f in range(8):
        e(f'ds_read_b128 v[{96+4*f}:{99+4*f}], v94 offset:{(16+f)*1024}')
    e('s_waitcnt lgkmcnt(9)')
    for h in range(2):
        for d in range(4):
            xs = 64 + 4*h + d
            e(f'v_lshlrev_b32 v88, 16, v{xs}')
            e(f'v_and_b32 v89, s{S_HI}, v{xs}')
            e(f'v_fma_f32 v88, 2.0, v{ACC[h]+2*d}, -v88')
            e(f'v_fma_f32 v89, 2.0, v{ACC[h]+2*d+1}, -v89')
            e(f'v_cvt_pk_bf16_f32 v{80+4*h+d}, v88, v89')
    e('ds_write_b128 v14, v[80:83] offset:128')
    e(f'ds_write_b128 v14, v[84:87] offset:{8*ROW_STRIDE+128}')
    e('ds_read_b128 v[72:75], v15 offset:128')
    e('ds_read_b128 v[76:79], v15 offset:192')
    mfma_run(16, 24, lambda ks: 72 + 4*(ks-4), ['d'] + ['A%d' % i for i in range(16, 24)] + ['w', 'w', 'B4', 'B5'], 94)
    e('v_and_b32 v93, 255, v93')
    e('v_bfe_u32 v14, v0, 4, 2')
    e('v_lshlrev_b32 v14, 5, v14')
    e('v_lshl_add_u32 v14, v93, 7, v14')
    e(f'v_add_u32 v14, s{S_ROW0}, v14')
    e(f'v_cmp_gt_u32 vcc, {R}, v93')
    e('s_and_b64 exec, exec, vcc')
    e('s_nop 7')
    for mt in range(4):
        e(f'v_cvt_pk_bf16_f32 v{64+2*mt}, v{ACCO+4*mt}, v{ACCO+4*mt+1}')
        e(f'v_cvt_pk_bf16_f32 v{65+2*mt}, v{ACCO+4*mt+2}, v{ACCO+4*mt+3}')
    e(f'buffer_store_dwordx4 v[64:67], v14, s[{S_OUT}:{S_OUT+3}], 0 offen')
    e(f'buffer_store_dwordx4 v[68:71], v14, s[{S_OUT}:{S_OUT+3}], 0 offen offset:16')
    lab(f'{pf}_END')
    dump_stamps(1, S_WS)
    lab(f'{pf}_END2')
    e('s_endpgm')

def gen_wprep():
    e(f's_cmp_gt_u32 s2, {NC+1}')
    e('s_cbranch_scc1 K1_END')
    e('s_load_dwordx2 s[10:11], s[0:1], 32')
    e('s_load_dwordx2 s[12:13], s[0:1], 56')
    e(f's_sub_u32 s36, s2, {NC}')
    e('s_mul_i32 s36, s36, 768')
    e('v_cmp_gt_u32 vcc, 768, v0')
    e('s_and_saveexec_b64 s[40:41], vcc')
    e('s_cbranch_execz K1_ZBAR')
    e('v_add_u32 v1, s36, v0')
    e('v_lshrrev_b32 v2, 6, v1')
    e('v_and_b32 v3, 3, v2')
    e('v_lshrrev_b32 v4, 2, v2')
    e('v_and_b32 v5, 15, v1')
    e('v_bfe_u32 v6, v1, 4, 2')
    e('v_lshrrev_b32 v7, 2, v5')
    e('v_lshlrev_b32 v7, 4, v7')
    e('v_lshl_add_u32 v7, v3, 2, v7')
    e('v_and_b32 v8, 3, v5')
    e('v_add_u32 v7, v7, v8')
    e('v_readfirstlane_b32 s38, v4')
    e('v_lshlrev_b32 v9, 12, v4')
    e('s_waitcnt lgkmcnt(0)')
    srd(16, 10, 11, 3 * 64 * 64 * 2)
    srd(28, 12, 13, WS_SIZE)
    e(f's_mov_b32 s37, {hex(WS_WT)}')
    e('s_lshr_b32 s38, s38, 1')
    e('s_cmp_eq_u32 s38, 1')
    e('s_cbranch_scc1 K2_WP')
    e('v_lshl_add_u32 v9, v6, 10, v9')
    e('v_lshl_add_u32 v9, v7, 1, v9')
    for j in range(8):
        e(f'buffer_load_ushort v{10+j}, v9, s[16:19], 0 offen offset:{j*128}')
    e('s_branch K2_WQ')
    lab('K2_WP')
    e('v_lshl_add_u32 v9, v6, 7, v9')
    e('v_lshl_add_u32 v9, v7, 1, v9')
    for j in range(8):
        e(f'buffer_load_ushort v{10+j}, v9, s[16:19], 0 offen offset:{(j&3)*1024 + (j>>2)*512}')
    lab('K2_WQ')
    e('s_waitcnt vmcnt(0)')
    for j in range(4):
        e(f'v_lshl_or_b32 v{20+j}, v{11+2*j}, 16, v{10+2*j}')
    e('v_lshlrev_b32 v1, 4, v1')
    e('buffer_store_dwordx4 v[20:23], v1, s[28:31], s37 offen')
    e('s_endpgm')
    lab('K1_ZBAR')
    e('s_mov_b64 exec, -1')
    e('v_and_b32 v1, 255, v0')
    e('v_lshlrev_b32 v1, 4, v1')
    for i in range(4):
        e(f'v_mov_b32 v{4+i}, 0')
    e('s_waitcnt lgkmcnt(0)')
    srd(28, 12, 13, WS_SIZE)
    e(f's_mov_b32 s37, {hex(WS_BAR)}')
    e('buffer_store_dwordx4 v[4:7], v1, s[28:31], s37 offen')
    for k in range(1, 4):
        e(f's_mov_b32 s37, {hex(WS_BAR+4096*k)}')
        e('buffer_store_dwordx4 v[4:7], v1, s[28:31], s37 offen')

S_NST = 74
S_PAIR = 75
def part_addrs():
    e(f'v_mad_u32_u16 v14, v{V_ROWS}, s{S_128}, v{V_J}')
    e(f'v_mad_u32_u16 v15, v{V_ROWS}, s{S_128}, v{V_J} op_sel:[1,0,0,0]')
    e('v_lshlrev_b32 v14, 1, v14')
    e('v_lshlrev_b32 v15, 1, v15')
    e(f's_lshl_b32 s{S_TMP}, s{S_ROW0}, 1')
    e(f's_add_u32 s{S_TMP}, s{S_TMP}, {hex(WS_PART)}')

def kd(name, vgpr, sgpr):
    out.append('.p2align 6')
    out.append(f'.amdhsa_kernel {name}')
    out.append(f'  .amdhsa_next_free_vgpr {vgpr}')
    out.append(f'  .amdhsa_next_free_sgpr {sgpr}')
    out.append(f'  .amdhsa_accum_offset {(vgpr+3)//4*4}')
    out.append('  .amdhsa_group_segment_fixed_size 0')
    out.append('  .amdhsa_kernarg_size 64')
    out.append('  .amdhsa_user_sgpr_count 2')
    out.append('  .amdhsa_user_sgpr_kernarg_segment_ptr 1')
    out.append('  .amdhsa_system_sgpr_workgroup_id_x 1')
    out.append('.end_amdhsa_kernel')

hdr = open('standalone__spectral_conv_chebnet__graph.s.ref').read().split('\n')
for l in hdr:
    if l.startswith(';') and '@launch' not in l and 'Override launch' not in l and 'grid=ceil' not in l:
        out.append(l)
    elif not l.startswith(';'):
        break
G1 = NC + 2
out.append(f'; @launch kernel=part_kernel grid=({G1},1,1) block=(1024,1,1) lds={4096+32768}')
out.append(f'; @launch kernel=main_kernel grid=({NB},1,1) block=({NT},1,1) lds={L_END3}')
out.append('.amdgcn_target "amdgcn-amd-amdhsa--gfx950"')
out.append('.text')
gen_k1()
gen_main()
out.append('.section .rodata,"a"')
kd('part_kernel', 64, 102 if INSTR else 56)
kd('main_kernel', 128, 102 if INSTR else 88)
dst = sys.argv[1] if len(sys.argv) > 1 else 'standalone__spectral_conv_chebnet__graph.s'
open(dst, 'w').write('\n'.join(out) + '\n')
print('wrote', dst, len(out), 'lines')
```

```python
import sys

N = 50000; E = 800000
R = 200
NB = 250
CH = 4096
NC = 196
S = 48
NIT = S // 8
NW = 13
NT = NW * 64

WS_ENT = 0x0000000
WS_SEG = 0x0800000
WS_WT  = 0x0900000
WS_BAR = 0x0A00000
WS_CSR = 0x1000000
CSR_STRIDE = 0x10000
WS_T1  = 0x2000000
WS_PART = 0x3000000
WS_SIZE = 268435456

L_CNT = 0
L_OFF = 2048
L_MAX = 4096
L_DESC = 4112
L_SYNC = 5792
L_H2 = 5888
L_JUNK = 6912
L_SORT = 7168
RA = 96
SORT_BYTES = NT * 16 * 4
L_DUMMY = L_SORT + SORT_BYTES - 16
L_END2 = L_SORT + SORT_BYTES
L_W = L_END2
L_ROWS = L_W + 24576
ROW_STRIDE = 272
L_END3 = L_ROWS + 208 * ROW_STRIDE
HALF = 25000

import os
INSTR = int(os.environ.get('INSTR', '0'))
PF2 = int(os.environ.get('PF2', '32'))
PF3 = int(os.environ.get('PF3', '24'))
PFB2 = int(os.environ.get('PFB2', '0'))
PFB3 = int(os.environ.get('PFB3', '0'))
PFBW = int(os.environ.get('PFBW', '0'))
BAL = int(os.environ.get('BAL', '1'))
XP = os.environ.get('XP', '')
PF1 = int(os.environ.get('PF1', '0'))
PF2BASE = 24 * 16 * PF1
RENUM = int(os.environ.get('RENUM', '1'))
WS_DBG = 0x8000000
S_ST = 40
NSTAMP = 12
SPIN_MAX = int(os.environ.get('SPIN_MAX', '2000000'))
SCAL = int(os.environ.get('SCAL', '1'))
CPF = int(os.environ.get('CPF', '1'))
P1S0 = int(os.environ.get('P1S0', '3')); P1S1 = int(os.environ.get('P1S1', '2')); P2S0 = int(os.environ.get('P2S0', '1')); P2S1 = int(os.environ.get('P2S1', '0'))
P0B = int(os.environ.get('P0B', '3'))
P1A = int(os.environ.get('P1A', '2')); P1B = int(os.environ.get('P1B', '1'))
P2PRIO = int(os.environ.get('P2PRIO', '1'))
NREP = int(os.environ.get('NREP', '16'))
SLP = int(os.environ.get('SLP', '2'))
STMAP = {0: 86, 1: 88, 2: 90, 4: 92, 7: 94, 8: 96, 9: 98, 10: 100, 11: 14}
def stamp(i, real=False):
    if INSTR and i in STMAP:
        r = STMAP[i]
        e(f's_memrealtime s[{r}:{r+1}]' if real else f's_memtime s[{r}:{r+1}]')
def dump_stamps(kidx, ws_srd, wave_sgpr_from_v0=True):
    if not INSTR: return
    e('s_waitcnt vmcnt(0) lgkmcnt(0)')
    stamp(NSTAMP-2); stamp(NSTAMP-1, True)
    e('s_waitcnt lgkmcnt(0)')
    e('s_mov_b64 exec, -1')
    e('v_lshrrev_b32 v1, 6, v0')
    e('s_lshl_b32 s70, s2, 4')
    e('v_add_u32 v1, s70, v1')
    e('v_lshlrev_b32 v1, 7, v1')
    e(f's_mov_b32 s70, {hex(WS_DBG + kidx*0x100000)}')
    e('s_mov_b64 exec, 1')
    for i in range(NSTAMP):
        if i not in STMAP: continue
        e(f'v_mov_b32 v2, s{STMAP[i]}')
        e(f'v_mov_b32 v3, s{STMAP[i]+1}')
        e(f'buffer_store_dwordx2 v[2:3], v1, s[{ws_srd}:{ws_srd+3}], s70 offen offset:{8*i}')
        e('s_nop 1')

out = []
def e(s=''):
    out.append('    ' + s if s and not s.endswith(':') else s)
def lab(s):
    out.append(s + ':')

def srd(d, lo, hi, nbytes, add=0):
    if add:
        e(f's_add_u32 s{d}, s{lo}, {hex(add)}')
        e(f's_addc_u32 s{d+1}, s{hi}, 0')
    else:
        e(f's_mov_b32 s{d}, s{lo}')
        e(f's_mov_b32 s{d+1}, s{hi}')
    e(f's_mov_b32 s{d+2}, {hex(nbytes)}')
    e(f's_mov_b32 s{d+3}, 0x00020000')

def wave_scan(v, op='v_add_u32'):
    for sh in (1, 2, 4, 8):
        e('s_nop 1')
        e(f'{op}_dpp v{v}, v{v}, v{v} row_shr:{sh} row_mask:0xf bank_mask:0xf bound_ctrl:0')
    e('s_nop 1')
    e(f'{op}_dpp v{v}, v{v}, v{v} row_bcast:15 row_mask:0xa bank_mask:0xf')
    e('s_nop 1')
    e(f'{op}_dpp v{v}, v{v}, v{v} row_bcast:31 row_mask:0xc bank_mask:0xf')

def kernel_head(name):
    out.append(f'.globl {name}')
    out.append('.p2align 8')
    out.append(f'.type {name},@function')
    lab(name)

def gen_k1():
    kernel_head('part_kernel')
    e(f's_cmp_ge_u32 s2, {NC}')
    e('s_cbranch_scc1 K1_XTRA')
    stamp(0, True); stamp(1)
    e('s_load_dwordx4 s[4:7], s[0:1], 8')
    e('s_load_dwordx4 s[8:11], s[0:1], 24')
    e('s_load_dwordx2 s[12:13], s[0:1], 56')
    e('s_load_dwordx2 s[44:45], s[0:1], 0')
    e('v_lshlrev_b32 v1, 2, v0')
    e('v_mov_b32 v2, 0')
    e('ds_write_b32 v1, v2')
    e('s_waitcnt lgkmcnt(0)')
    stamp(2)
    srd(16, 4, 5, E * 4)
    srd(20, 6, 7, E * 4)
    srd(24, 8, 9, E * 2)
    srd(28, 12, 13, WS_SIZE)
    srd(40, 44, 45, N * 128)
    e('s_lshl_b32 s14, s2, 12')
    e('v_add_u32 v3, s14, v1')
    e(f's_mov_b32 s15, {E}')
    e('v_cmp_gt_u32 vcc, s15, v3')
    e('v_lshlrev_b32 v13, 2, v3')
    e('v_lshlrev_b32 v12, 1, v3')
    e('s_mov_b64 s[32:33], vcc')
    e('s_mov_b64 exec, vcc')
    e('buffer_load_dwordx4 v[4:7], v13, s[20:23], 0 offen')
    e('buffer_load_dwordx4 v[8:11], v13, s[16:19], 0 offen')
    e('buffer_load_dwordx2 v[14:15], v12, s[24:27], 0 offen')
    e('s_mov_b32 s34, 83887')
    e(f's_mov_b32 s35, {-R & 0xffffffff:#x}')
    e('s_mov_b32 s36, 0xffff0000')
    e('v_mov_b32 v2, 1')
    e('s_barrier')
    e('s_waitcnt vmcnt(2)')
    stamp(3)
    for i in range(4):
        e(f'v_mul_u32_u24 v{16+i}, s34, v{4+i}')
        e(f'v_lshrrev_b32 v{16+i}, 24, v{16+i}')
        e(f'v_mad_i32_i24 v{25+2*i}, v{16+i}, s35, v{4+i}')
        if RENUM:
            e(f'v_and_b32 v3, 7, v{16+i}')
            e(f'v_lshrrev_b32 v{16+i}, 3, v{16+i}')
            e(f'v_lshlrev_b32 v{16+i}, 2, v{16+i}')
            e(f'v_lshl_or_b32 v{16+i}, v3, 7, v{16+i}')
        else:
            e(f'v_lshlrev_b32 v{16+i}, 2, v{16+i}')
        e(f'ds_add_rtn_u32 v{20+i}, v{16+i}, v2')
    e('s_waitcnt vmcnt(0)')
    e(f's_movk_i32 s37, {RA}')
    for i in range(4):
        e(f'v_mul_u32_u24 v3, s34, v{8+i}')
        e('v_lshrrev_b32 v3, 24, v3')
        e(f'v_mad_i32_i24 v3, v3, s35, v{8+i}')
        e(f'v_cmp_le_u32 s[{48+2*i}:{49+2*i}], s37, v3')
    e('v_lshl_or_b32 v24, v14, 16, v8')
    e('v_and_or_b32 v26, v14, s36, v9')
    e('v_lshl_or_b32 v28, v15, 16, v10')
    e('v_and_or_b32 v30, v15, s36, v11')
    for i in range(4):
        e(f'v_addc_co_u32 v{25+2*i}, vcc, v{25+2*i}, v{25+2*i}, s[{48+2*i}:{49+2*i}]')
    e('s_mov_b64 exec, -1')
    if PF1:
        e('s_lshr_b32 s37, s2, 3')
        e('s_min_u32 s37, s37, 23')
        e(f's_mul_i32 s37, s37, {16*PF1*128}')
        e('v_lshrrev_b32 v60, 6, v0')
        e(f'v_mul_u32_u24 v60, {PF1*128}, v60')
        e('v_and_b32 v61, 63, v0')
        e('v_lshl_add_u32 v60, v61, 7, v60')
        e('v_add_u32 v60, s37, v60')
        m = (1 << PF1) - 1
        e(f's_mov_b32 exec_lo, {hex(m & 0xffffffff)}')
        e(f's_mov_b32 exec_hi, {hex(m >> 32)}')
        e('buffer_load_dword v61, v60, s[40:43], 0 offen')
        e('s_mov_b64 exec, -1')
    e('s_waitcnt lgkmcnt(0)')
    e('s_barrier')
    stamp(4)
    e('v_cmp_gt_u32 vcc, 64, v0')
    e('s_cbranch_vccz K1_SCAN_DONE')
    e('v_lshlrev_b32 v32, 4, v0')
    e('ds_read_b128 v[36:39], v32')
    e('s_waitcnt lgkmcnt(0)')
    e('v_add_u32 v41, v36, v37')
    e('v_add_u32 v42, v41, v38')
    e('v_add_u32 v43, v42, v39')
    e('v_mov_b32 v44, v43')
    wave_scan(44)
    e('v_sub_u32 v48, v44, v43')
    e('v_add_u32 v49, v48, v36')
    e('v_add_u32 v50, v48, v41')
    e('v_add_u32 v51, v48, v42')
    e('ds_write_b128 v32, v[48:51] offset:1024')
    for i in range(4):
        e(f'v_lshl_or_b32 v{52+i}, v{36+i}, 16, v{48+i}')
    e('v_lshlrev_b32 v33, 12, v0')
    e('s_lshl_b32 s37, s2, 2')
    e(f's_add_u32 s37, s37, {hex(WS_SEG)}')
    for i in range(4):
        if 'noT' not in XP:
            e(f'buffer_store_dword v{52+i}, v33, s[28:31], s37 offen offset:{i*1024}' + (' sc1' if 'Tplain' not in XP else ''))
    e('s_waitcnt lgkmcnt(0)')
    lab('K1_SCAN_DONE')
    e('s_barrier')
    stamp(5)
    e('s_mov_b64 exec, s[32:33]')
    for i in range(4):
        e(f'ds_read_b32 v{32+i}, v{16+i} offset:1024')
    for i in range(4):
        e(f's_waitcnt lgkmcnt({3-i})')
        e(f'v_add_lshl_u32 v{32+i}, v{32+i}, v{20+i}, 3')
        e(f'ds_write_b64 v{32+i}, v[{24+2*i}:{25+2*i}] offset:4096')
    e('s_mov_b64 exec, -1')
    e('s_waitcnt lgkmcnt(0)')
    e('s_barrier')
    stamp(6)
    e('v_lshlrev_b32 v36, 4, v0')
    e('ds_read_b128 v[40:43], v36 offset:4096')
    e('ds_read_b128 v[44:47], v36 offset:20480')
    e('s_lshl_b32 s37, s2, 15')
    e('s_add_u32 s38, s37, 16384')
    e('s_waitcnt lgkmcnt(1)')
    pol = '' if 'Eplain' in XP else ' sc1'
    if 'noE' not in XP:
        e('buffer_store_dwordx4 v[40:43], v36, s[28:31], s37 offen' + pol)
    e('s_waitcnt lgkmcnt(0)')
    if 'noE' not in XP:
        e('buffer_store_dwordx4 v[44:47], v36, s[28:31], s38 offen' + pol)
    stamp(7)
    dump_stamps(0, 28)
    e('s_endpgm')
    lab('K1_XTRA')
    gen_wprep()
    e('s_endpgm')
    lab('K1_CPF')
    if CPF:
        e(f's_cmp_gt_u32 s2, {NC+9}')
        e('s_cbranch_scc1 K1_END')
        e('s_getpc_b64 s[4:5]')
        lab('K1_PCREF')
        e('s_add_u32 s4, s4, main_kernel-K1_PCREF')
        e('s_addc_u32 s5, s5, 0')
        e('v_lshlrev_b32 v1, 6, v0')
        e('s_mov_b32 s6, M_CODE_END-main_kernel')
        e('v_cmp_gt_u32 vcc, s6, v1')
        e('s_and_saveexec_b64 s[8:9], vcc')
        e('s_cbranch_execz K1_END')
        e('global_load_dword v2, v1, s[4:5]')
        e('s_waitcnt vmcnt(0)')
    lab('K1_END')
    e('s_endpgm')

X = [64, 96]
EN = [48, 56]
ACC = [32, 40]
ACCO = 16
V_J = 1; V_PA = 2; V_EA = 3; V_PB = 4; V_EB = 5; V_TA = 6; V_TB = 7
V_W = 8
V_ROWS = 12
S_TAB = 16; S_WS = 20; S_OUT = 24; S_X = 28
S_128 = 32; S_HI = 33; S_ROUND = 34; S_NR = 35
S_MASKB = 36
S_T = 38
S_M = 40
S_CSR = 64; S_TMP = 65; S_TMP2 = 66; S_WAVE = 67; S_ROW0 = 68; S_TOT = 69; S_DUM = 70; S_TILE = 71
IMG = NT * 16

def issue(p, half):
    x = X[p] + 16 * half
    en = EN[p] + 4 * half
    for u in range(4):
        e(f'v_mad_u32_u16 v{x+4*u}, v{en+u}, s{S_128}, v{V_J}')
    for u in range(4):
        e(f'buffer_load_dwordx4 v[{x+4*u}:{x+4*u+3}], v{x+4*u}, s[{S_TAB}:{S_TAB+3}], 0 offen sc1')

V_SEL0 = 7; V_SEL1 = 13
def consume(p, half):
    x = X[p] + 16 * half
    en = EN[p] + 4 * half
    acc = ACC[half]
    def perm(bs, u):
        e(f'v_perm_b32 v{V_W+2*bs}, v{en+u}, v{en+u}, v{V_SEL0}')
        e(f'v_perm_b32 v{V_W+2*bs+1}, v{en+u}, v{en+u}, v{V_SEL1}')
    def mm(bs, u):
        e(f'v_mfma_f32_4x4x4_16b_bf16 v[{acc}:{acc+3}], v[{x+4*u}:{x+4*u+1}], v[{V_W+2*bs}:{V_W+2*bs+1}], v[{acc}:{acc+3}]')
        e(f'v_mfma_f32_4x4x4_16b_bf16 v[{acc+4}:{acc+7}], v[{x+4*u+2}:{x+4*u+3}], v[{V_W+2*bs}:{V_W+2*bs+1}], v[{acc+4}:{acc+7}]')
    perm(0, 0); perm(1, 1)
    mm(0, 0)
    perm(0, 2)
    mm(1, 1)
    perm(1, 3)
    mm(0, 2)
    e('s_nop 0')
    mm(1, 3)

def next_entries(p, half):
    P = V_PA if half == 0 else V_PB
    EE = V_EA if half == 0 else V_EB
    T = V_TA
    en = EN[p] + 4 * half
    m = 'vcc' if half == 0 else f's[{S_MASKB}:{S_MASKB+1}]'
    e(f'v_cmp_lt_u32 {m}, v{P}, v{EE}')
    e(f'v_mov_b32 v{T}, s{S_DUM}')
    e('s_nop 0')
    e(f'v_cndmask_b32 v{T}, v{T}, v{P}, {m}')
    e(f'v_add_u32 v{P}, s{S_INC}, v{P}')
    e(f'ds_read_b128 v[{en}:{en+3}], v{T}')

def masked_loop(pf, tag, body, first_check=2):
    for i in range(NIT):
        e(f's_mov_b64 exec, s[{S_M+4*i}:{S_M+4*i+1}]')
        if i >= first_check:
            e(f's_cbranch_execz {pf}_{tag}_X')
        body(i, 0)
        if body.__code__.co_argcount == 2 and getattr(body, 'two', True):
            e(f's_mov_b64 exec, s[{S_M+4*i+2}:{S_M+4*i+3}]')
            body(i, 1)
    lab(f'{pf}_{tag}_X')
    e('s_mov_b64 exec, -1')

def gemm_steps(ks_list, vB, vA, tB, tA, part_off):
    for ks in ks_list:
        e(f'ds_read_b128 v[{tB}:{tB+3}], v{vB} offset:{(ks&1)*64 + part_off(ks)}')
        for mt in range(3):
            e(f'ds_read_b128 v[{tA[mt]}:{tA[mt]+3}], v{vA} offset:{(ks*4+mt)*1024}')
        e('s_waitcnt lgkmcnt(2)')
        e(f'v_mfma_f32_16x16x32_bf16 v[{ACCO}:{ACCO+3}], v[{tA[0]}:{tA[0]+3}], v[{tB}:{tB+3}], v[{ACCO}:{ACCO+3}]')
        e(f'ds_read_b128 v[{tA[0]}:{tA[0]+3}], v{vA} offset:{(ks*4+3)*1024}')
        e('s_waitcnt lgkmcnt(2)')
        e(f'v_mfma_f32_16x16x32_bf16 v[{ACCO+4}:{ACCO+7}], v[{tA[1]}:{tA[1]+3}], v[{tB}:{tB+3}], v[{ACCO+4}:{ACCO+7}]')
        e('s_waitcnt lgkmcnt(1)')
        e(f'v_mfma_f32_16x16x32_bf16 v[{ACCO+8}:{ACCO+11}], v[{tA[2]}:{tA[2]+3}], v[{tB}:{tB+3}], v[{ACCO+8}:{ACCO+11}]')
        e('s_waitcnt lgkmcnt(0)')
        e(f'v_mfma_f32_16x16x32_bf16 v[{ACCO+12}:{ACCO+15}], v[{tA[0]}:{tA[0]+3}], v[{tB}:{tB+3}], v[{ACCO+12}:{ACCO+15}]')

def frag_addrs(vb, va, vrow):
    e(f'v_and_b32 v{vrow}, 15, v0')
    e(f's_lshl_b32 s{S_TMP}, s{S_WAVE}, 7')
    e(f's_add_u32 s{S_TMP}, s{S_TMP}, {L_DESC}')
    e(f'v_lshl_add_u32 v{vrow}, v{vrow}, 3, s{S_TMP}')
    e(f'ds_read_b32 v{vrow}, v{vrow}')
    e(f'v_bfe_u32 v{va}, v0, 4, 2')
    e(f'v_lshlrev_b32 v{vb}, 4, v{va}')
    e(f'v_add_u32 v{vb}, {L_ROWS}, v{vb}')
    e(f'v_and_b32 v{va}, 63, v0')
    e(f'v_lshlrev_b32 v{va}, 4, v{va}')
    e(f'v_add_u32 v{va}, {L_W}, v{va}')
    e('s_waitcnt lgkmcnt(0)')
    e(f'v_and_b32 v{vrow}, 255, v{vrow}')
    e(f'v_mad_u32_u24 v{vb}, v{vrow}, s{S_RS}, v{vb}')

def prefetch(lanes, base_line, vdst, vtmp):
    if lanes == 0: return
    e(f's_lshr_b32 s{S_TMP}, s2, 3')
    e(f's_min_u32 s{S_TMP}, s{S_TMP}, 30')
    e(f's_mul_i32 s{S_TMP}, s{S_TMP}, {NW}')
    e(f's_add_u32 s{S_TMP}, s{S_TMP}, s{S_WAVE}')
    e(f's_mul_i32 s{S_TMP}, s{S_TMP}, {lanes}')
    e(f's_add_u32 s{S_TMP}, s{S_TMP}, {base_line}')
    e(f'v_and_b32 v{vtmp}, 63, v0')
    e(f'v_add_u32 v{vtmp}, s{S_TMP}, v{vtmp}')
    e(f's_mov_b32 s{S_TMP}, 43691')
    e(f'v_mul_u32_u24 v{vdst}, s{S_TMP}, v{vtmp}')
    e(f'v_lshrrev_b32 v{vdst}, 22, v{vdst}')
    e(f's_movk_i32 s{S_TMP}, {R-RA}')
    e(f'v_mad_u32_u24 v{vtmp}, v{vdst}, s{S_TMP}, v{vtmp}')
    e(f'v_lshlrev_b32 v{vtmp}, 7, v{vtmp}')
    if lanes < 64:
        m = (1 << lanes) - 1
        e(f's_mov_b32 exec_lo, {hex(m & 0xffffffff)}')
        e(f's_mov_b32 exec_hi, {hex(m >> 32)}')
    e(f's_mov_b32 m0, {L_JUNK}')
    e('s_nop 0')
    e(f'buffer_load_dword v{vtmp}, s[{S_TAB}:{S_TAB+3}], 0 offen lds')
    e('s_mov_b64 exec, -1')

S_RS = S_TILE
S_PH = 72
S_FIRST = 73

S_T1 = 76
S_DBG = 80
S_PASS = 84
S_SPIN = 85
S_ONE = 80
S_INC = 69

def tile_regs(vw, vb, va):
    e(f's_mul_i32 s{S_TMP}, s{S_WAVE}, {16*ROW_STRIDE}')
    e(f's_add_u32 s{S_TMP}, s{S_TMP}, {L_ROWS}')
    e(f'v_bfe_u32 v{vw}, v0, 3, 3')
    e(f'v_mad_u32_u24 v{vw}, v{vw}, s{S_RS}, v{V_J}')
    e(f'v_add_u32 v{vw}, s{S_TMP}, v{vw}')
    e(f'v_and_b32 v{va}, 15, v0')
    e(f'v_bfe_u32 v{vb}, v0, 4, 2')
    e(f'v_lshlrev_b32 v{vb}, 4, v{vb}')
    e(f'v_mad_u32_u24 v{vb}, v{va}, s{S_RS}, v{vb}')
    e(f'v_add_u32 v{vb}, s{S_TMP}, v{vb}')
    e(f'v_and_b32 v{va}, 63, v0')
    e(f'v_lshlrev_b32 v{va}, 4, v{va}')
    e(f'v_add_u32 v{va}, {L_W}, v{va}')

def mfma_run(f0, f1, bfrag, pend, va):
    pend = list(pend)
    for f in range(f0, f1):
        ks, mt = f // 4, f % 4
        need = ['A%d' % f, 'B%d' % ks]
        idxs = [pend.index(n) for n in need if n in pend]
        if idxs:
            idx = max(idxs)
            rem = len(pend) - 1 - idx
            e(f's_waitcnt lgkmcnt({min(rem, 15)})')
            pend = pend[idx+1:]
        sl = 96 + 4*(f % 8)
        bq = bfrag(ks)
        e(f'v_mfma_f32_16x16x32_bf16 v[{ACCO+4*mt}:{ACCO+4*mt+3}], v[{sl}:{sl+3}], v[{bq}:{bq+3}], v[{ACCO+4*mt}:{ACCO+4*mt+3}]')
        if f + 8 < f1:
            e(f'ds_read_b128 v[{sl}:{sl+3}], v{va} offset:{(f+8)*1024}')
            pend.append('A%d' % (f+8))

def gen_main():
    pf = 'M'
    kernel_head('main_kernel')
    e(f's_cmp_ge_u32 s2, {NB}')
    e(f's_cbranch_scc1 {pf}_END2')
    stamp(0, True); stamp(1)
    e('s_load_dwordx2 s[4:5], s[0:1], 0')
    e('s_load_dwordx4 s[8:11], s[0:1], 40')
    e('s_load_dwordx2 s[12:13], s[0:1], 56')
    e('v_lshrrev_b32 v14, 6, v0')
    e('v_and_b32 v15, 7, v0')
    e(f'v_readfirstlane_b32 s{S_WAVE}, v14')
    e(f'v_lshlrev_b32 v{V_J}, 4, v15')
    e(f's_movk_i32 s{S_128}, 128')
    e(f's_mov_b32 s{S_HI}, 0xffff0000')
    e(f's_mov_b32 s{S_ROUND}, 0')
    e(f's_mov_b32 s{S_PASS}, 0')
    e(f's_mov_b32 s{S_DUM}, {L_DUMMY}')
    e(f's_mul_i32 s{S_ROW0}, s2, {R*128}')
    e(f's_movk_i32 s{S_RS}, {ROW_STRIDE}')
    tbl = {1: [3, 0, 1, 2, 4, 7, 6, 5, 11, 8, 9, 10, 12], 2: [9, 0, 1, 2, 10, 5, 4, 3, 11, 6, 7, 8, 12], 0: list(range(13))}[BAL]
    t64 = sum(v << (4*i) for i, v in enumerate(tbl))
    e(f's_mov_b32 s{S_T}, {hex(t64 & 0xffffffff)}')
    e(f's_mov_b32 s{S_T+1}, {hex(t64 >> 32)}')
    e(f's_lshl_b32 s{S_TMP}, s{S_WAVE}, 2')
    e(f's_lshr_b64 s[{S_T}:{S_T+1}], s[{S_T}:{S_T+1}], s{S_TMP}')
    e(f's_and_b32 s{S_PAIR}, s{S_T}, 15')
    e(f's_lshl_b32 s{S_PAIR}, s{S_PAIR}, 6')
    e(f's_add_u32 s{S_PAIR}, s{S_PAIR}, {L_DESC}')
    e('v_mov_b32 v14, 0')
    e(f'v_mov_b32 v15, {L_MAX}')
    e('ds_write_b32 v15, v14')
    e('v_and_b32 v15, 7, v0')
    e('v_lshlrev_b32 v15, 2, v15')
    e(f'ds_write_b32 v15, v14 offset:{L_SYNC}')
    e('s_waitcnt lgkmcnt(0)')
    stamp(2)
    srd(S_WS, 12, 13, WS_SIZE)

    lab(f'{pf}_ROUND')
    e('v_lshrrev_b32 v100, 2, v0')
    e('v_lshlrev_b32 v14, 2, v100')
    e(f's_and_b32 s{S_TMP}, s2, 7')
    e(f's_lshl_b32 s{S_TMP}, s{S_TMP}, 5')
    e(f's_lshr_b32 s{S_TMP2}, s2, 3')
    e(f's_add_u32 s{S_TMP}, s{S_TMP}, s{S_TMP2}')
    e(f's_lshl_b32 s{S_TMP}, s{S_TMP}, 10')
    e(f's_add_u32 s{S_TMP}, s{S_TMP}, {hex(WS_SEG)}')
    e('v_mov_b32 v103, 0')
    e(f'v_cmp_gt_u32 vcc, {NC*4}, v0')
    e(f's_and_saveexec_b64 s[{S_T}:{S_T+1}], vcc')
    e(f'buffer_load_dword v103, v14, s[{S_WS}:{S_WS+3}], s{S_TMP} offen')
    e(f's_mov_b64 exec, s[{S_T}:{S_T+1}]')
    e(f's_or_b32 s{S_TMP}, s{S_PASS}, s{S_ROUND}')
    e(f's_cmp_lg_u32 s{S_TMP}, 0')
    e(f's_cbranch_scc1 {pf}_NOSRD')
    srd(S_TAB, 4, 5, N * 128)
    srd(S_X, 4, 5, N * 128)
    srd(S_T1, 12, 13, N * 128, WS_T1)
    srd(S_OUT, 8, 9, N * 128)
    e('v_lshlrev_b32 v14, 4, v0')
    e(f's_mov_b32 s{S_TMP}, {hex(WS_WT)}')
    e(f'buffer_load_dwordx4 v[16:19], v14, s[{S_WS}:{S_WS+3}], s{S_TMP} offen')
    e(f's_add_u32 s{S_TMP}, s{S_TMP}, {IMG}')
    e(f'buffer_load_dwordx4 v[20:23], v14, s[{S_WS}:{S_WS+3}], s{S_TMP} offen')
    lab(f'{pf}_NOSRD')
    e('v_lshlrev_b32 v14, 2, v0')
    e('v_mov_b32 v15, 0')
    e('v_cmp_gt_u32 vcc, 512, v0')
    e(f's_and_saveexec_b64 s[{S_T}:{S_T+1}], vcc')
    e('ds_write_b32 v14, v15')
    e(f's_mov_b64 exec, s[{S_T}:{S_T+1}]')
    for i in range(4):
        e(f'v_mov_b32 v{88+i}, 0xffff')
    e('v_lshlrev_b32 v14, 4, v0')
    for i in range(4):
        e(f'ds_write_b128 v14, v[88:91] offset:{L_SORT + i*IMG}')
    e('v_and_b32 v102, 3, v0')
    e('v_lshlrev_b32 v102, 1, v102')
    e(f's_mul_i32 s{S_TMP}, s{S_ROUND}, {S}')
    e(f'v_add_u32 v102, s{S_TMP}, v102')
    e('v_mov_b32 v104, 1')
    e('s_waitcnt vmcnt(2)')
    e(f's_or_b32 s{S_TMP}, s{S_PASS}, s{S_ROUND}')
    e(f's_cmp_eq_u32 s{S_TMP}, 0')
    e(f's_cbranch_scc1 {pf}_DW')
    e('s_waitcnt vmcnt(0)')
    lab(f'{pf}_DW')
    stamp(3)
    e('v_and_b32 v101, 0xffff, v103')
    e('v_lshrrev_b32 v103, 16, v103')
    e('v_add_u32 v101, v101, v102')
    e('v_lshlrev_b32 v101, 3, v101')
    e('v_lshl_add_u32 v101, v100, 15, v101')
    e('v_sub_u32 v105, v103, v102')
    for i in range(NIT):
        e(f'v_cmp_lt_i32 s[{S_M+4*i}:{S_M+4*i+1}], {8*i}, v105')
        e(f'v_cmp_lt_i32 s[{S_M+4*i+2}:{S_M+4*i+3}], {8*i+1}, v105')
    def b_load(i, w):
        e(f'buffer_load_dwordx4 v[{64+4*i}:{67+4*i}], v101, s[{S_WS}:{S_WS+3}], 0 offen offset:{64*i}')
    b_load.two = False
    masked_loop(pf, 'LD', b_load, 0)
    e('s_waitcnt lgkmcnt(0)')
    e('s_barrier')
    e(f'v_cmp_lt_u32 vcc, {S}, v103')
    e(f's_cbranch_vccz {pf}_NOMAX')
    e(f'v_mov_b32 v15, {L_MAX}')
    e('ds_max_u32 v15, v103')
    lab(f'{pf}_NOMAX')
    e('s_waitcnt vmcnt(0)')
    e(f's_or_b32 s{S_TMP}, s{S_PASS}, s{S_ROUND}')
    e(f's_cmp_lg_u32 s{S_TMP}, 0')
    e(f's_cbranch_scc1 {pf}_NOW')
    prefetch(PF2, PF2BASE, 127, 126)
    e('v_lshlrev_b32 v14, 4, v0')
    e(f'v_add_u32 v14, {L_W}, v14')
    e('ds_write_b128 v14, v[16:19]')
    e(f'v_cmp_gt_u32 vcc, {1536-NT}, v0')
    e(f's_and_saveexec_b64 s[{S_T}:{S_T+1}], vcc')
    e(f'ds_write_b128 v14, v[20:23] offset:{IMG}')
    e(f's_mov_b64 exec, s[{S_T}:{S_T+1}]')
    lab(f'{pf}_NOW')
    def b_atom(i, w):
        r = 65 + 4*i + 2*w
        e(f'v_lshlrev_b32 v{r}, 2, v{r}')
        e(f'ds_add_rtn_u32 v{88+2*i+w}, v{r}, v104')
    masked_loop(pf, 'AT', b_atom)
    e('s_waitcnt lgkmcnt(0)')
    e('s_barrier')
    stamp(5)
    e(f's_cmp_lg_u32 s{S_WAVE}, {NW-1}')
    e(f's_cbranch_scc1 {pf}_SCAN_DONE')
    e('v_and_b32 v106, 63, v0')
    e('v_lshlrev_b32 v14, 5, v106')
    e('ds_read_b128 v[108:111], v14')
    e('ds_read_b128 v[112:115], v14 offset:16')
    e('v_mov_b32 v60, 0')
    e('v_mov_b32 v61, 0')
    e('v_lshlrev_b32 v107, 3, v106')
    e(f'ds_write_b64 v107, v[60:61] offset:{L_H2}')
    e('s_waitcnt lgkmcnt(1)')
    for i in range(8):
        e(f'v_add_u32 v{108+i}, 3, v{108+i}')
        e(f'v_and_b32 v{108+i}, -4, v{108+i}')
    e('v_mov_b32 v48, 0')
    e('v_mov_b32 v49, v108')
    for i in range(2, 8):
        e(f'v_add_u32 v{48+i}, v{47+i}, v{107+i}')
    e('v_add_u32 v56, v55, v115')
    e('v_mov_b32 v57, v56')
    wave_scan(57)
    e('v_sub_u32 v58, v57, v56')
    for i in range(8):
        e(f'v_add_u32 v{48+i}, v58, v{48+i}')
    e(f'ds_write_b128 v14, v[48:51] offset:{L_OFF}')
    e(f'ds_write_b128 v14, v[52:55] offset:{L_OFF+16}')
    e('s_waitcnt lgkmcnt(0)')
    lab(f'{pf}_SCAN_DONE')
    e('s_barrier')
    stamp(6)
    def b_rd(i, w):
        r = 65 + 4*i + 2*w
        e(f'ds_read_b32 v{r}, v{r} offset:{L_OFF}')
    masked_loop(pf, 'RD', b_rd)
    e('s_waitcnt lgkmcnt(0)')
    def b_wr(i, w):
        r = 65 + 4*i + 2*w
        e(f'v_add_lshl_u32 v{r}, v{r}, v{88+2*i+w}, 2')
        e(f'ds_write_b32 v{r}, v{r-1} offset:{L_SORT}')
    masked_loop(pf, 'WR', b_wr)
    e(f's_cmp_lg_u32 s{S_WAVE}, {NW-1}')
    e(f's_cbranch_scc1 {pf}_DESC_DONE')
    e(f's_or_b32 s{S_TMP}, s{S_PASS}, s{S_ROUND}')
    e(f's_cmp_lg_u32 s{S_TMP}, 0')
    e(f's_cbranch_scc1 {pf}_DESC_REDO')
    e('v_cmp_gt_u32 vcc, 50, v106')
    e(f's_mov_b64 s[{S_T}:{S_T+1}], vcc')
    e(f'v_cmp_gt_u32 vcc, {RA//4}, v106')
    e('v_mov_b32 v126, 127')
    e('v_mov_b32 v15, 63')
    e('v_cndmask_b32 v126, v126, v15, vcc')
    e(f's_mov_b64 exec, s[{S_T}:{S_T+1}]')
    for i in range(4):
        a0 = 108 + 2*i; a1 = a0 + 1
        e(f'v_lshrrev_b32 v{a0}, 2, v{a0}')
        e(f'v_lshrrev_b32 v{a1}, 2, v{a1}')
        e(f'v_min_u32 v15, 7, v{a0}')
        e(f'v_min_u32 v59, 7, v{a1}')
        e(f'v_lshl_add_u32 v15, v15, 3, v59')
        e(f'v_sub_u32 v15, v126, v15')
        e(f'v_lshlrev_b32 v{116+i}, 2, v15')
        e(f'ds_add_rtn_u32 v{120+i}, v{116+i}, v104 offset:{L_H2}')
    e('s_mov_b64 exec, -1')
    e('s_waitcnt lgkmcnt(0)')
    e(f'ds_read_b64 v[124:125], v107 offset:{L_H2}')
    e('s_waitcnt lgkmcnt(0)')
    e('v_add_u32 v125, v124, v125')
    e('v_mov_b32 v62, v125')
    wave_scan(62)
    e('v_sub_u32 v62, v62, v125')
    e('v_cmp_lt_u32 vcc, 31, v106')
    e('v_mov_b32 v63, 0')
    e('v_mov_b32 v15, 8')
    e('v_cndmask_b32 v63, v63, v15, vcc')
    e('v_add_u32 v62, v62, v63')
    e('v_add_u32 v63, v62, v124')
    e(f'ds_write_b64 v107, v[62:63] offset:{L_H2+512}')
    e('s_mov_b64 exec, 0xff')
    e(f'v_mov_b32 v60, {R}')
    e('v_mov_b32 v61, 0')
    e('v_lshlrev_b32 v15, 3, v106')
    e(f'ds_write_b64 v15, v[60:61] offset:{L_DESC + RA*8}')
    e(f's_mov_b64 exec, s[{S_T}:{S_T+1}]')
    e('s_waitcnt lgkmcnt(0)')
    for i in range(4):
        e(f'ds_read_b32 v{116+i}, v{116+i} offset:{L_H2+512}')
    for i in range(4):
        e(f'v_lshl_add_u32 v15, v106, 2, {i}')
        e(f'v_lshl_or_b32 v{32+2*i}, v{48+2*i}, 6, v15')
        e(f'v_lshl_or_b32 v{33+2*i}, v{109+2*i}, 16, v{108+2*i}')
    e('s_waitcnt lgkmcnt(0)')
    for i in range(4):
        e(f'v_add_lshl_u32 v{116+i}, v{116+i}, v{120+i}, 3')
        e(f'ds_write_b64 v{116+i}, v[{32+2*i}:{33+2*i}] offset:{L_DESC}')
    e('s_mov_b64 exec, -1')
    e(f's_branch {pf}_DESC_DONE')
    lab(f'{pf}_DESC_REDO')
    e('v_cmp_gt_u32 vcc, 52, v106')
    e('s_mov_b64 exec, vcc')
    e(f'ds_read_b128 v[108:111], v14 offset:{L_DESC}')
    e(f'ds_read_b128 v[112:115], v14 offset:{L_DESC+16}')
    e('s_waitcnt lgkmcnt(0)')
    for i in range(4):
        d0 = 108 + 2*i
        e(f'v_and_b32 v{d0}, 255, v{d0}')
        e(f'v_lshlrev_b32 v15, 3, v{d0}')
        e(f'v_add_u32 v15, {L_OFF}, v15')
        e(f'ds_read2_b32 v[{48+4*i}:{49+4*i}], v15 offset0:0 offset1:1')
        e(f'ds_read_b32 v{50+4*i}, v15 offset:8')
    e('s_waitcnt lgkmcnt(0)')
    for i in range(4):
        d0 = 108 + 2*i
        e(f'v_lshl_or_b32 v{d0}, v{48+4*i}, 6, v{d0}')
        e(f'v_sub_u32 v15, v{49+4*i}, v{48+4*i}')
        e(f'v_lshrrev_b32 v15, 2, v15')
        e(f'v_sub_u32 v{d0+1}, v{50+4*i}, v{49+4*i}')
        e(f'v_lshl_or_b32 v{d0+1}, v{d0+1}, 14, v15')
    e(f'ds_write_b128 v14, v[108:111] offset:{L_DESC}')
    e(f'ds_write_b128 v14, v[112:115] offset:{L_DESC+16}')
    e('s_mov_b64 exec, -1')
    lab(f'{pf}_DESC_DONE')
    e('s_waitcnt lgkmcnt(0)')
    e('s_barrier')
    stamp(7)

    BOFF = (RA + 8) * 8
    lab(f'{pf}_PHASE_B')
    e(f's_mov_b32 s{S_PH}, 0')
    e(f'v_mov_b32 v15, {L_MAX}')
    e('ds_read_b32 v6, v15')
    e('v_and_b32 v14, 1, v0')
    e(f's_mov_b32 s{S_TMP}, 0x0c0c0302')
    e(f's_mov_b32 s{S_TMP2}, 0x03020c0c')
    e('v_cmp_eq_u32 vcc, 0, v14')
    e(f'v_mov_b32 v14, s{S_TMP2}')
    e(f'v_mov_b32 v15, s{S_TMP}')
    e('v_cndmask_b32 v14, v14, v15, vcc')
    e('v_and_b32 v15, 2, v0')
    e('v_cmp_eq_u32 vcc, 0, v15')
    e('v_mov_b32 v15, 0x0c0c0c0c')
    e('s_nop 0')
    e(f'v_cndmask_b32 v{V_SEL0}, v15, v14, vcc')
    e(f'v_cndmask_b32 v{V_SEL1}, v14, v15, vcc')
    e('s_waitcnt lgkmcnt(0)')
    e(f'v_readfirstlane_b32 s{S_NR}, v6')
    lab(f'{pf}_SEG')
    e('v_bfe_u32 v15, v0, 3, 3')
    e(f'v_lshl_add_u32 v14, v15, 3, s{S_PAIR}')
    e('ds_read_b64 v[8:9], v14')
    e(f'ds_read_b64 v[10:11], v14 offset:{BOFF}')
    e(f's_cmp_lg_u32 s{S_PASS}, 0')
    e(f's_cbranch_scc1 {pf}_SEG2')
    e(f's_setprio {P1S0}')
    e(f's_movk_i32 s{S_INC}, 32')
    e('s_waitcnt lgkmcnt(0)')
    e('v_and_b32 v14, 255, v8')
    e('v_and_b32 v15, 255, v10')
    e(f'v_lshl_or_b32 v{V_ROWS}, v15, 16, v14')
    e(f's_cmp_eq_u32 s{S_PH}, 0')
    e(f's_cbranch_scc1 {pf}_SEG1A')
    e(f's_setprio {P1S1}')
    e('v_mov_b32 v8, v10')
    e('v_mov_b32 v9, v11')
    lab(f'{pf}_SEG1A')
    e(f'v_lshrrev_b32 v{V_PA}, 8, v8')
    e(f'v_lshlrev_b32 v{V_PA}, 4, v{V_PA}')
    e(f'v_add_u32 v{V_PA}, {L_SORT}, v{V_PA}')
    e('v_and_b32 v14, 0xffff, v9')
    e('v_lshrrev_b32 v15, 16, v9')
    e('v_add_u32 v14, v14, v15')
    e(f'v_lshl_add_u32 v{V_EA}, v14, 4, v{V_PA}')
    e(f'v_add_u32 v{V_PB}, 16, v{V_PA}')
    e(f'v_mov_b32 v{V_EB}, v{V_EA}')
    e(f's_branch {pf}_GW_OK')
    lab(f'{pf}_SEG2')
    e(f's_movk_i32 s{S_INC}, 16')
    e(f's_lshl_b32 s{S_TMP}, s{S_PH}, 2')
    e(f's_add_u32 s{S_TMP}, s{S_TMP}, {L_SYNC+8}')
    e(f'v_mov_b32 v14, s{S_TMP}')
    e('ds_read_b32 v15, v14')
    e('s_waitcnt lgkmcnt(0)')
    e(f'v_readfirstlane_b32 s{S_TMP2}, v15')
    for (D, P, EE) in ((8, V_PA, V_EA), (10, V_PB, V_EB)):
        e(f'v_lshrrev_b32 v{P}, 8, v{D}')
        e(f'v_lshlrev_b32 v{P}, 4, v{P}')
        e(f'v_add_u32 v{P}, {L_SORT}, v{P}')
        e(f'v_and_b32 v{EE}, 0xffff, v{D+1}')
        e(f'v_lshl_add_u32 v{EE}, v{EE}, 4, v{P}')
    e(f's_setprio {P2S0}')
    e(f's_cmp_eq_u32 s{S_PH}, 0')
    e(f's_cbranch_scc1 {pf}_SEG2A')
    e(f's_setprio {P2S1}')
    for (D, P, EE) in ((8, V_PA, V_EA), (10, V_PB, V_EB)):
        e(f'v_mov_b32 v{P}, v{EE}')
        e(f'v_lshrrev_b32 v{D+1}, 16, v{D+1}')
        e(f'v_lshl_add_u32 v{EE}, v{D+1}, 4, v{EE}')
    lab(f'{pf}_SEG2A')
    e(f's_cmp_lg_u32 s{S_TMP2}, 0')
    e(f's_cbranch_scc1 {pf}_GW_OK')
    e('v_mov_b32 v15, 1')
    e('v_and_b32 v64, 15, v0')
    e('v_lshlrev_b32 v64, 2, v64')
    e('s_mov_b64 exec, 1')
    e('ds_add_rtn_u32 v15, v14, v15 offset:8')
    e(f's_mov_b32 s{S_SPIN}, 0')
    e('s_waitcnt lgkmcnt(0)')
    e(f'v_readfirstlane_b32 s{S_TMP}, v15')
    e(f's_cmp_lg_u32 s{S_TMP}, 0')
    e(f's_cbranch_scc1 {pf}_GW_SPIN')
    e(f's_lshl_b32 s{S_TMP2}, s{S_PH}, 13')
    e(f's_add_u32 s{S_TMP2}, s{S_TMP2}, {hex(WS_BAR+2048)}')
    e(f's_and_b32 s{S_TMP}, s2, 31')
    e(f's_lshl_b32 s{S_TMP}, s{S_TMP}, 7')
    e(f's_add_u32 s{S_TMP2}, s{S_TMP2}, s{S_TMP}')
    if SCAL:
        lab(f'{pf}_POLL')
        e(f's_mov_b32 s{S_TMP}, 0')
        e(f's_atomic_add s{S_TMP}, s[12:13], s{S_TMP2} glc')
        e('s_waitcnt lgkmcnt(0)')
        e(f's_add_u32 s{S_SPIN}, s{S_SPIN}, 1')
        e(f's_cmp_ge_u32 s{S_TMP}, 16')
        e(f's_cbranch_scc1 {pf}_POLLED')
    else:
        e('s_mov_b64 exec, 0xffff')
        lab(f'{pf}_POLL')
        e(f'buffer_load_dword v65, v64, s[{S_WS}:{S_WS+3}], s{S_TMP2} offen sc1')
        e('s_waitcnt vmcnt(0)')
        e('v_cmp_eq_u32 vcc, 0, v65')
        e(f's_add_u32 s{S_SPIN}, s{S_SPIN}, 1')
        e(f's_cbranch_vccz {pf}_POLLED')
    e(f's_cmp_ge_u32 s{S_SPIN}, {SPIN_MAX}')
    e(f's_cbranch_scc1 {pf}_POLLED')
    e(f's_sleep {SLP}')
    e(f's_branch {pf}_POLL')
    lab(f'{pf}_POLLED')
    e('v_mov_b32 v15, 1')
    e('ds_write_b32 v14, v15')
    e(f's_branch {pf}_GW_DONE')
    lab(f'{pf}_GW_SPIN')
    e('s_sleep 1')
    e('ds_read_b32 v15, v14')
    e('s_waitcnt lgkmcnt(0)')
    e(f'v_readfirstlane_b32 s{S_TMP}, v15')
    e(f's_cmp_eq_u32 s{S_TMP}, 0')
    e(f's_cbranch_scc1 {pf}_GW_SPIN')
    lab(f'{pf}_GW_DONE')
    e('s_mov_b64 exec, -1')
    e('s_waitcnt lgkmcnt(0)')
    lab(f'{pf}_GW_OK')
    if INSTR:
        e(f's_lshl_b32 s{S_TMP}, s{S_PASS}, 1')
        e(f's_or_b32 s{S_TMP}, s{S_TMP}, s{S_PH}')
        e(f's_cmp_lg_u32 s{S_TMP}, 2')
        e(f's_cbranch_scc1 {pf}_ST9')
        stamp(9)
        lab(f'{pf}_ST9')
        e(f's_cmp_lg_u32 s{S_TMP}, 3')
        e(f's_cbranch_scc1 {pf}_ST4')
        stamp(4)
        lab(f'{pf}_ST4')
    next_entries(0, 0)
    next_entries(0, 1)
    e(f's_or_b64 s[{S_T}:{S_T+1}], vcc, s[{S_MASKB}:{S_MASKB+1}]')
    e(f's_cselect_b32 s{S_TMP2}, 1, 0')
    next_entries(1, 0)
    next_entries(1, 1)
    e(f's_or_b64 s[{S_T}:{S_T+1}], vcc, s[{S_MASKB}:{S_MASKB+1}]')
    e(f's_cselect_b32 s{S_TMP}, 2, 0')
    e(f's_or_b32 s{S_NST}, s{S_TMP}, s{S_TMP2}')
    e(f's_bitcmp1_b32 s{S_NST}, 0')
    e(f's_cbranch_scc0 {pf}_PRO_DONE')
    e('s_waitcnt lgkmcnt(3)')
    issue(0, 0)
    e('s_waitcnt lgkmcnt(2)')
    issue(0, 1)
    e(f's_bitcmp1_b32 s{S_NST}, 1')
    e(f's_cbranch_scc0 {pf}_PRO_DONE')
    e('s_waitcnt lgkmcnt(1)')
    issue(1, 0)
    e('s_waitcnt lgkmcnt(0)')
    issue(1, 1)
    lab(f'{pf}_PRO_DONE')
    e(f's_and_b32 s{S_TMP}, s{S_PASS}, s{S_PH}')
    e(f's_cmp_lg_u32 s{S_TMP}, 0')
    e(f's_cbranch_scc1 {pf}_GO')
    for r in range(16):
        e(f'v_mov_b32 v{ACC[0]+r}, 0')
    e(f's_cmp_eq_u32 s{S_ROUND}, 0')
    e(f's_cbranch_scc1 {pf}_GO')
    part_addrs()
    e(f's_cmp_lg_u32 s{S_PASS}, 0')
    e(f's_cbranch_scc1 {pf}_LP2')
    e(f's_cmp_eq_u32 s{S_PH}, 0')
    e(f's_cbranch_scc1 {pf}_LP1')
    e('v_mov_b32 v14, v15')
    e(f's_branch {pf}_LP1')
    lab(f'{pf}_LP2')
    e(f'buffer_load_dwordx4 v[40:43], v15, s[{S_WS}:{S_WS+3}], s{S_TMP} offen')
    e(f'buffer_load_dwordx4 v[44:47], v15, s[{S_WS}:{S_WS+3}], s{S_TMP} offen offset:16')
    lab(f'{pf}_LP1')
    e(f'buffer_load_dwordx4 v[32:35], v14, s[{S_WS}:{S_WS+3}], s{S_TMP} offen')
    e(f'buffer_load_dwordx4 v[36:39], v14, s[{S_WS}:{S_WS+3}], s{S_TMP} offen offset:16')
    e('s_waitcnt vmcnt(0)')
    lab(f'{pf}_GO')
    e(f's_cmp_eq_u32 s{S_NST}, 0')
    e(f's_cbranch_scc1 {pf}_SEG_END')
    e(f's_cmp_eq_u32 s{S_NST}, 1')
    e(f's_cbranch_scc1 {pf}_DRAIN0')
    lab(f'{pf}_LOOP')
    for p in (0, 1):
        e('s_waitcnt vmcnt(12)')
        consume(p, 0)
        next_entries(p, 0)
        e('s_waitcnt vmcnt(8)')
        consume(p, 1)
        next_entries(p, 1)
        e(f's_or_b64 s[{S_T}:{S_T+1}], vcc, s[{S_MASKB}:{S_MASKB+1}]')
        e(f's_cbranch_scc0 {pf}_DRAIN{p^1}')
        e('s_waitcnt lgkmcnt(1)')
        issue(p, 0)
        e('s_waitcnt lgkmcnt(0)')
        issue(p, 1)
    e(f's_branch {pf}_LOOP')
    for q in (1, 0):
        lab(f'{pf}_DRAIN{q}')
        e('s_waitcnt vmcnt(4)')
        consume(q, 0)
        e('s_waitcnt vmcnt(0)')
        consume(q, 1)
        if q == 1:
            e(f's_branch {pf}_SEG_END')
    lab(f'{pf}_SEG_END')
    e('s_nop 4')
    e('s_waitcnt lgkmcnt(0)')
    e(f's_add_u32 s{S_TMP}, s{S_ROUND}, 1')
    e(f's_mul_i32 s{S_TMP}, s{S_TMP}, {S}')
    e(f's_cmp_ge_u32 s{S_TMP}, s{S_NR}')
    e(f's_cselect_b32 s{S_FIRST}, 1, 0')
    e(f's_cmp_lg_u32 s{S_PASS}, 0')
    e(f's_cbranch_scc1 {pf}_END_P2')
    for r in range(8):
        e(f'v_add_f32 v{32+r}, v{32+r}, v{40+r}')
    e(f's_cmp_eq_u32 s{S_WAVE}, {NW-1}')
    e(f's_cselect_b32 s{S_TMP}, 1, 0')
    e(f's_andn2_b32 s{S_TMP}, s{S_TMP}, s{S_PH}')
    e(f's_cmp_lg_u32 s{S_TMP}, 0')
    e(f's_cbranch_scc1 {pf}_P1NEXT')
    e(f's_cmp_lg_u32 s{S_FIRST}, 0')
    e(f's_cbranch_scc1 {pf}_PUB')
    part_addrs()
    e(f's_cmp_eq_u32 s{S_PH}, 0')
    e(f's_cbranch_scc1 {pf}_SP1')
    e('v_mov_b32 v14, v15')
    lab(f'{pf}_SP1')
    e(f'buffer_store_dwordx4 v[32:35], v14, s[{S_WS}:{S_WS+3}], s{S_TMP} offen')
    e(f'buffer_store_dwordx4 v[36:39], v14, s[{S_WS}:{S_WS+3}], s{S_TMP} offen offset:16')
    e('s_waitcnt vmcnt(0)')
    e(f's_branch {pf}_P1NEXT')
    lab(f'{pf}_PUB')
    e(f's_cmp_lg_u32 s{S_PH}, 0')
    e(f's_cbranch_scc1 {pf}_PUBB')
    for d in range(4):
        e(f'v_cvt_pk_bf16_f32 v{24+d}, v{32+2*d}, v{33+2*d}')
    e(f'v_mad_u32_u16 v14, v{V_ROWS}, s{S_128}, v{V_J}')
    e(f'v_add_u32 v14, s{S_ROW0}, v14')
    e(f'buffer_store_dwordx4 v[24:27], v14, s[{S_T1}:{S_T1+3}], 0 offen sc1')
    e(f'buffer_load_dwordx4 v[16:19], v14, s[{S_X}:{S_X+3}], 0 offen')
    if 'sig' in XP: stamp(7)
    e(f's_branch {pf}_SIG')
    lab(f'{pf}_PUBB')
    stamp(8)
    for d in range(4):
        e(f'v_cvt_pk_bf16_f32 v{28+d}, v{32+2*d}, v{33+2*d}')
    e(f'v_mad_u32_u16 v14, v{V_ROWS}, s{S_128}, v{V_J} op_sel:[1,0,0,0]')
    e(f'v_add_u32 v14, s{S_ROW0}, v14')
    e(f'buffer_store_dwordx4 v[28:31], v14, s[{S_T1}:{S_T1+3}], 0 offen sc1')
    e(f'buffer_load_dwordx4 v[20:23], v14, s[{S_X}:{S_X+3}], 0 offen')
    lab(f'{pf}_SIG')
    e('v_mov_b32 v65, 1')
    e(f's_lshl_b32 s{S_TMP}, s{S_PH}, 2')
    e(f's_add_u32 s{S_TMP}, s{S_TMP}, {L_SYNC}')
    e(f'v_mov_b32 v66, s{S_TMP}')
    e(f's_lshl_b32 s{S_TMP2}, s{S_PH}, 13')
    e(f's_add_u32 s{S_TMP2}, s{S_TMP2}, {hex(WS_BAR)}')
    e(f's_and_b32 s{S_SPIN}, s2, 15')
    e(f's_lshl_b32 s{S_TMP}, s{S_SPIN}, 7')
    e(f'v_mov_b32 v64, s{S_TMP}')
    e(f's_lshl_b32 s{S_TMP}, s{S_SPIN}, 2')
    e('v_and_b32 v68, 31, v0')
    e(f'v_lshl_add_u32 v68, v68, 7, s{S_TMP}')
    e(f's_cmp_lt_u32 s{S_SPIN}, {NB % 16}')
    e(f's_cselect_b32 s{S_SPIN}, {NB//16}, {NB//16 - 1}')
    e('s_waitcnt vmcnt(1)')
    e('s_mov_b64 exec, 1')
    e('ds_add_rtn_u32 v67, v66, v65')
    e('s_waitcnt lgkmcnt(0)')
    e(f'v_readfirstlane_b32 s{S_TMP}, v67')
    e(f's_sub_u32 s{S_TMP}, s{S_TMP}, s{S_PH}')
    e(f's_cmp_lg_u32 s{S_TMP}, 11')
    e(f's_cbranch_scc1 {pf}_NOSIG')
    if SCAL:
        e(f's_and_b32 s{S_TMP}, s2, 15')
        e(f's_lshl_b32 s{S_TMP}, s{S_TMP}, 7')
        e(f's_add_u32 s{S_T}, s{S_TMP}, s{S_TMP2}')
        e(f's_mov_b32 s{S_TMP}, 1')
        e(f's_atomic_add s{S_TMP}, s[12:13], s{S_T} glc')
        e('s_waitcnt lgkmcnt(0)')
        if 'sig' in XP:
            e(f's_cmp_lg_u32 s{S_PH}, 0')
            e(f's_cbranch_scc1 {pf}_STX')
            stamp(2)
            lab(f'{pf}_STX')
        e(f's_cmp_lg_u32 s{S_TMP}, s{S_SPIN}')
        e(f's_cbranch_scc1 {pf}_NOSIG')
        e(f's_mov_b32 s{S_ONE}, 1')
        for r in range(32):
            e(f's_atomic_add s{S_ONE}, s[12:13], s{S_TMP2} offset:{2048 + r*128}')
            if r % 8 == 7: e('s_waitcnt lgkmcnt(0)')
    else:
        e('v_mov_b32 v67, 1')
        e(f'buffer_atomic_add v67, v64, s[{S_WS}:{S_WS+3}], s{S_TMP2} offen sc0')
        e('s_waitcnt vmcnt(0)')
        if 'sig' in XP:
            e(f's_cmp_lg_u32 s{S_PH}, 0')
            e(f's_cbranch_scc1 {pf}_STX')
            stamp(2)
            lab(f'{pf}_STX')
        e(f'v_readfirstlane_b32 s{S_TMP}, v67')
        e(f's_cmp_lg_u32 s{S_TMP}, s{S_SPIN}')
        e(f's_cbranch_scc1 {pf}_NOSIG')
        e('s_mov_b32 exec_lo, -1')
        e(f'buffer_store_dword v65, v68, s[{S_WS}:{S_WS+3}], s{S_TMP2} offen offset:2048 sc1')
    lab(f'{pf}_NOSIG')
    e('s_mov_b64 exec, -1')
    lab(f'{pf}_P1NEXT')
    e(f's_cmp_lg_u32 s{S_PH}, 0')
    e(f's_cbranch_scc1 {pf}_P1DONE')
    e(f's_mov_b32 s{S_PH}, 1')
    e(f's_branch {pf}_SEG')
    lab(f'{pf}_P1DONE')
    e(f's_cmp_lg_u32 s{S_FIRST}, 0')
    e(f's_cbranch_scc1 {pf}_TOP2')
    lab(f'{pf}_NEXTROUND')
    e(f's_add_u32 s{S_ROUND}, s{S_ROUND}, 1')
    e('s_waitcnt vmcnt(0) lgkmcnt(0)')
    e('s_barrier')
    e(f's_branch {pf}_ROUND')
    lab(f'{pf}_TOP2')
    for i in range(4):
        e(f's_mov_b32 s{S_TAB+i}, s{S_T1+i}')
    e(f's_mov_b32 s{S_PASS}, 1')
    e(f's_mov_b32 s{S_ROUND}, 0')
    e(f's_mov_b32 s{S_PH}, 0')
    tile_regs(14, 15, 94)
    e('ds_write_b128 v14, v[24:27] offset:128')
    e(f'ds_write_b128 v14, v[28:31] offset:{8*ROW_STRIDE+128}')
    for f in range(8):
        e(f'ds_read_b128 v[{96+4*f}:{99+4*f}], v94 offset:{f*1024}')
    e('s_waitcnt vmcnt(0)')
    e('ds_write_b128 v14, v[16:19]')
    e(f'ds_write_b128 v14, v[20:23] offset:{8*ROW_STRIDE}')
    for ks in range(4):
        e(f'ds_read_b128 v[{64+4*ks}:{67+4*ks}], v15 offset:{(ks&1)*64 + (ks>>1)*128}')
    e('s_waitcnt lgkmcnt(4)')
    for r in range(16):
        e(f'v_mov_b32 v{ACCO+r}, 0')
    mfma_run(0, 16, lambda ks: 64 + 4*ks, ['B0', 'B1', 'B2', 'B3'], 94)
    e(f's_cmp_eq_u32 s{S_NR}, 0')
    e(f's_cbranch_scc1 {pf}_SEG')
    e('s_waitcnt lgkmcnt(0)')
    e('s_barrier')
    e(f's_branch {pf}_ROUND')
    lab(f'{pf}_END_P2')
    e(f's_cmp_lg_u32 s{S_PH}, 0')
    e(f's_cbranch_scc1 {pf}_P2DONE')
    e(f's_mov_b32 s{S_PH}, 1')
    e(f's_branch {pf}_SEG')
    lab(f'{pf}_P2DONE')
    e(f's_cmp_lg_u32 s{S_FIRST}, 0')
    e(f's_cbranch_scc1 {pf}_FINAL2')
    part_addrs()
    e(f'buffer_store_dwordx4 v[40:43], v15, s[{S_WS}:{S_WS+3}], s{S_TMP} offen')
    e(f'buffer_store_dwordx4 v[44:47], v15, s[{S_WS}:{S_WS+3}], s{S_TMP} offen offset:16')
    e(f's_cmp_eq_u32 s{S_WAVE}, {NW-1}')
    e(f's_cbranch_scc1 {pf}_NEXTROUND')
    e(f'buffer_store_dwordx4 v[32:35], v14, s[{S_WS}:{S_WS+3}], s{S_TMP} offen')
    e(f'buffer_store_dwordx4 v[36:39], v14, s[{S_WS}:{S_WS+3}], s{S_TMP} offen offset:16')
    e(f's_branch {pf}_NEXTROUND')

    lab(f'{pf}_FINAL2')
    if 'sig' not in XP: stamp(2)
    tile_regs(14, 15, 94)
    e('ds_read_b128 v[64:67], v14')
    e(f'ds_read_b128 v[68:71], v14 offset:{8*ROW_STRIDE}')
    e('v_and_b32 v93, 7, v0')
    e(f'v_lshl_add_u32 v93, v93, 3, s{S_PAIR}')
    e('v_bfe_u32 v92, v0, 3, 1')
    e(f'v_mul_u32_u24 v92, {(RA+8)*8}, v92')
    e('v_add_u32 v93, v93, v92')
    e('ds_read_b32 v93, v93')
    for f in range(8):
        e(f'ds_read_b128 v[{96+4*f}:{99+4*f}], v94 offset:{(16+f)*1024}')
    e('s_waitcnt lgkmcnt(9)')
    for h in range(2):
        for d in range(4):
            xs = 64 + 4*h + d
            e(f'v_lshlrev_b32 v88, 16, v{xs}')
            e(f'v_and_b32 v89, s{S_HI}, v{xs}')
            e(f'v_fma_f32 v88, 2.0, v{ACC[h]+2*d}, -v88')
            e(f'v_fma_f32 v89, 2.0, v{ACC[h]+2*d+1}, -v89')
            e(f'v_cvt_pk_bf16_f32 v{80+4*h+d}, v88, v89')
    e('ds_write_b128 v14, v[80:83] offset:128')
    e(f'ds_write_b128 v14, v[84:87] offset:{8*ROW_STRIDE+128}')
    e('ds_read_b128 v[72:75], v15 offset:128')
    e('ds_read_b128 v[76:79], v15 offset:192')
    mfma_run(16, 24, lambda ks: 72 + 4*(ks-4), ['d'] + ['A%d' % i for i in range(16, 24)] + ['w', 'w', 'B4', 'B5'], 94)
    e('v_and_b32 v93, 255, v93')
    e('v_bfe_u32 v14, v0, 4, 2')
    e('v_lshlrev_b32 v14, 5, v14')
    e('v_lshl_add_u32 v14, v93, 7, v14')
    e(f'v_add_u32 v14, s{S_ROW0}, v14')
    e(f'v_cmp_gt_u32 vcc, {R}, v93')
    e('s_and_b64 exec, exec, vcc')
    e('s_nop 7')
    for mt in range(4):
        e(f'v_cvt_pk_bf16_f32 v{64+2*mt}, v{ACCO+4*mt}, v{ACCO+4*mt+1}')
        e(f'v_cvt_pk_bf16_f32 v{65+2*mt}, v{ACCO+4*mt+2}, v{ACCO+4*mt+3}')
    e(f'buffer_store_dwordx4 v[64:67], v14, s[{S_OUT}:{S_OUT+3}], 0 offen')
    e(f'buffer_store_dwordx4 v[68:71], v14, s[{S_OUT}:{S_OUT+3}], 0 offen offset:16')
    lab(f'{pf}_END')
    dump_stamps(1, S_WS)
    lab(f'{pf}_END2')
    e('s_endpgm')
    lab('M_CODE_END')

def gen_wprep():
    e(f's_cmp_gt_u32 s2, {NC+1}')
    e('s_cbranch_scc1 K1_CPF')
    e('s_load_dwordx2 s[10:11], s[0:1], 32')
    e('s_load_dwordx2 s[12:13], s[0:1], 56')
    e(f's_sub_u32 s36, s2, {NC}')
    e('s_mul_i32 s36, s36, 768')
    e('v_cmp_gt_u32 vcc, 768, v0')
    e('s_and_saveexec_b64 s[40:41], vcc')
    e('s_cbranch_execz K1_ZBAR')
    e('v_add_u32 v1, s36, v0')
    e('v_lshrrev_b32 v2, 6, v1')
    e('v_and_b32 v3, 3, v2')
    e('v_lshrrev_b32 v4, 2, v2')
    e('v_and_b32 v5, 15, v1')
    e('v_bfe_u32 v6, v1, 4, 2')
    e('v_lshrrev_b32 v7, 2, v5')
    e('v_lshlrev_b32 v7, 4, v7')
    e('v_lshl_add_u32 v7, v3, 2, v7')
    e('v_and_b32 v8, 3, v5')
    e('v_add_u32 v7, v7, v8')
    e('v_readfirstlane_b32 s38, v4')
    e('v_lshlrev_b32 v9, 12, v4')
    e('s_waitcnt lgkmcnt(0)')
    srd(16, 10, 11, 3 * 64 * 64 * 2)
    srd(28, 12, 13, WS_SIZE)
    e(f's_mov_b32 s37, {hex(WS_WT)}')
    e('s_lshr_b32 s38, s38, 1')
    e('s_cmp_eq_u32 s38, 1')
    e('s_cbranch_scc1 K2_WP')
    e('v_lshl_add_u32 v9, v6, 10, v9')
    e('v_lshl_add_u32 v9, v7, 1, v9')
    for j in range(8):
        e(f'buffer_load_ushort v{10+j}, v9, s[16:19], 0 offen offset:{j*128}')
    e('s_branch K2_WQ')
    lab('K2_WP')
    e('v_lshl_add_u32 v9, v6, 7, v9')
    e('v_lshl_add_u32 v9, v7, 1, v9')
    for j in range(8):
        e(f'buffer_load_ushort v{10+j}, v9, s[16:19], 0 offen offset:{(j&3)*1024 + (j>>2)*512}')
    lab('K2_WQ')
    e('s_waitcnt vmcnt(0)')
    for j in range(4):
        e(f'v_lshl_or_b32 v{20+j}, v{11+2*j}, 16, v{10+2*j}')
    e('v_lshlrev_b32 v1, 4, v1')
    e('buffer_store_dwordx4 v[20:23], v1, s[28:31], s37 offen')
    e('s_endpgm')
    lab('K1_ZBAR')
    e('s_mov_b64 exec, -1')
    e('v_and_b32 v1, 255, v0')
    e('v_lshlrev_b32 v1, 4, v1')
    for i in range(4):
        e(f'v_mov_b32 v{4+i}, 0')
    e('s_waitcnt lgkmcnt(0)')
    srd(28, 12, 13, WS_SIZE)
    e(f's_mov_b32 s37, {hex(WS_BAR)}')
    e('buffer_store_dwordx4 v[4:7], v1, s[28:31], s37 offen')
    for k in range(1, 4):
        e(f's_mov_b32 s37, {hex(WS_BAR+4096*k)}')
        e('buffer_store_dwordx4 v[4:7], v1, s[28:31], s37 offen')

S_NST = 74
S_PAIR = 75
def part_addrs():
    e(f'v_mad_u32_u16 v14, v{V_ROWS}, s{S_128}, v{V_J}')
    e(f'v_mad_u32_u16 v15, v{V_ROWS}, s{S_128}, v{V_J} op_sel:[1,0,0,0]')
    e('v_lshlrev_b32 v14, 1, v14')
    e('v_lshlrev_b32 v15, 1, v15')
    e(f's_lshl_b32 s{S_TMP}, s{S_ROW0}, 1')
    e(f's_add_u32 s{S_TMP}, s{S_TMP}, {hex(WS_PART)}')

def kd(name, vgpr, sgpr):
    out.append('.p2align 6')
    out.append(f'.amdhsa_kernel {name}')
    out.append(f'  .amdhsa_next_free_vgpr {vgpr}')
    out.append(f'  .amdhsa_next_free_sgpr {sgpr}')
    out.append(f'  .amdhsa_accum_offset {(vgpr+3)//4*4}')
    out.append('  .amdhsa_group_segment_fixed_size 0')
    out.append('  .amdhsa_kernarg_size 64')
    out.append('  .amdhsa_user_sgpr_count 2')
    out.append('  .amdhsa_user_sgpr_kernarg_segment_ptr 1')
    out.append('  .amdhsa_system_sgpr_workgroup_id_x 1')
    out.append('.end_amdhsa_kernel')

hdr = open('standalone__spectral_conv_chebnet__graph.s.ref').read().split('\n')
for l in hdr:
    if l.startswith(';') and '@launch' not in l and 'Override launch' not in l and 'grid=ceil' not in l:
        out.append(l)
    elif not l.startswith(';'):
        break
G1 = NC + 2 + (8 if CPF else 0)
out.append(f'; @launch kernel=part_kernel grid=({G1},1,1) block=(1024,1,1) lds={4096+32768}')
out.append(f'; @launch kernel=main_kernel grid=({NB},1,1) block=({NT},1,1) lds={L_END3}')
out.append('.amdgcn_target "amdgcn-amd-amdhsa--gfx950"')
out.append('.text')
gen_k1()
gen_main()
out.append('.section .rodata,"a"')
kd('part_kernel', 64, 102 if INSTR else 56)
kd('main_kernel', 128, 102 if INSTR else 88)
dst = sys.argv[1] if len(sys.argv) > 1 else 'standalone__spectral_conv_chebnet__graph.s'
open(dst, 'w').write('\n'.join(out) + '\n')
print('wrote', dst, len(out), 'lines')
```

```python
import sys

N = 50000; E = 800000
R = 200
NB = 250
CH = 4096
NC = 196
S = 48
NIT = S // 8
NW = 13
NT = NW * 64

WS_ENT = 0x0000000
WS_SEG = 0x0800000
WS_WT  = 0x0900000
WS_BAR = 0x0A00000
WS_CSR = 0x1000000
CSR_STRIDE = 0x10000
WS_T1  = 0x2000000
WS_PART = 0x3000000
WS_SIZE = 268435456

L_CNT = 0
L_OFF = 2048
L_MAX = 4096
L_DESC = 4112
L_SYNC = 5792
L_H2 = 5888
L_JUNK = 6912
L_SORT = 7168
RA = 96
SORT_BYTES = NT * 16 * 4
L_DUMMY = L_SORT + SORT_BYTES - 16
L_END2 = L_SORT + SORT_BYTES
L_W = L_END2
L_ROWS = L_W + 24576
ROW_STRIDE = 272
L_END3 = L_ROWS + 208 * ROW_STRIDE
HALF = 25000

import os
INSTR = int(os.environ.get('INSTR', '0'))
PF2 = int(os.environ.get('PF2', '32'))
PF3 = int(os.environ.get('PF3', '24'))
PFB2 = int(os.environ.get('PFB2', '0'))
PFB3 = int(os.environ.get('PFB3', '0'))
PFBW = int(os.environ.get('PFBW', '0'))
BAL = int(os.environ.get('BAL', '1'))
XP = os.environ.get('XP', '')
PF1 = int(os.environ.get('PF1', '0'))
PF2BASE = 24 * 16 * PF1
RENUM = int(os.environ.get('RENUM', '1'))
WS_DBG = 0x8000000
S_ST = 40
NSTAMP = 12
SPIN_MAX = int(os.environ.get('SPIN_MAX', '2000000'))
SCAL = int(os.environ.get('SCAL', '1'))
CPF = int(os.environ.get('CPF', '1'))
HD = int(os.environ.get('HD', '0'))
def hd(slot, base, neg=False, tmp=86):
    if not HD: return
    e(f's_memrealtime s[{tmp}:{tmp+1}]')
    e('s_waitcnt lgkmcnt(0)')
    if neg: e(f's_not_b32 s{tmp}, s{tmp}')
    e(f's_atomic_umax s{tmp}, s[{base}:{base+1}], {slot*4}')
FLAGV = int(os.environ.get('FLAGV', '1'))
SELFPF = int(os.environ.get('SELFPF', '1'))
P1S0 = int(os.environ.get('P1S0', '3')); P1S1 = int(os.environ.get('P1S1', '2')); P2S0 = int(os.environ.get('P2S0', '1')); P2S1 = int(os.environ.get('P2S1', '0'))
P0B = int(os.environ.get('P0B', '3'))
P1A = int(os.environ.get('P1A', '2')); P1B = int(os.environ.get('P1B', '1'))
P2PRIO = int(os.environ.get('P2PRIO', '1'))
NREP = int(os.environ.get('NREP', '16'))
SLP = int(os.environ.get('SLP', '2'))
STMAP = {0: 86, 1: 88, 2: 90, 4: 92, 7: 94, 8: 96, 9: 98, 10: 100, 11: 14}
def stamp(i, real=False):
    if INSTR and i in STMAP:
        r = STMAP[i]
        e(f's_memrealtime s[{r}:{r+1}]' if real else f's_memtime s[{r}:{r+1}]')
def dump_stamps(kidx, ws_srd, wave_sgpr_from_v0=True):
    if not INSTR: return
    e('s_waitcnt vmcnt(0) lgkmcnt(0)')
    stamp(NSTAMP-2); stamp(NSTAMP-1, True)
    e('s_waitcnt lgkmcnt(0)')
    e('s_mov_b64 exec, -1')
    e('v_lshrrev_b32 v1, 6, v0')
    e('s_lshl_b32 s70, s2, 4')
    e('v_add_u32 v1, s70, v1')
    e('v_lshlrev_b32 v1, 7, v1')
    e(f's_mov_b32 s70, {hex(WS_DBG + kidx*0x100000)}')
    e('s_mov_b64 exec, 1')
    for i in range(NSTAMP):
        if i not in STMAP: continue
        e(f'v_mov_b32 v2, s{STMAP[i]}')
        e(f'v_mov_b32 v3, s{STMAP[i]+1}')
        e(f'buffer_store_dwordx2 v[2:3], v1, s[{ws_srd}:{ws_srd+3}], s70 offen offset:{8*i}')
        e('s_nop 1')

out = []
def e(s=''):
    out.append('    ' + s if s and not s.endswith(':') else s)
def lab(s):
    out.append(s + ':')

def srd(d, lo, hi, nbytes, add=0):
    if add:
        e(f's_add_u32 s{d}, s{lo}, {hex(add)}')
        e(f's_addc_u32 s{d+1}, s{hi}, 0')
    else:
        e(f's_mov_b32 s{d}, s{lo}')
        e(f's_mov_b32 s{d+1}, s{hi}')
    e(f's_mov_b32 s{d+2}, {hex(nbytes)}')
    e(f's_mov_b32 s{d+3}, 0x00020000')

def wave_scan(v, op='v_add_u32'):
    for sh in (1, 2, 4, 8):
        e('s_nop 1')
        e(f'{op}_dpp v{v}, v{v}, v{v} row_shr:{sh} row_mask:0xf bank_mask:0xf bound_ctrl:0')
    e('s_nop 1')
    e(f'{op}_dpp v{v}, v{v}, v{v} row_bcast:15 row_mask:0xa bank_mask:0xf')
    e('s_nop 1')
    e(f'{op}_dpp v{v}, v{v}, v{v} row_bcast:31 row_mask:0xc bank_mask:0xf')

def kernel_head(name):
    out.append(f'.globl {name}')
    out.append('.p2align 8')
    out.append(f'.type {name},@function')
    lab(name)

def gen_k1():
    kernel_head('part_kernel')
    e(f's_cmp_ge_u32 s2, {NC}')
    e('s_cbranch_scc1 K1_XTRA')
    stamp(0, True); stamp(1)
    e('s_load_dwordx4 s[4:7], s[0:1], 8')
    e('s_load_dwordx2 s[8:9], s[0:1], 24')
    e('s_load_dwordx2 s[12:13], s[0:1], 56')
    if HD:
        e('s_load_dwordx2 s[88:89], s[0:1], 48')
        e('s_waitcnt lgkmcnt(0)')
        hd(0, 88, True); hd(1, 88)
    if SELFPF:
        e('s_getpc_b64 s[46:47]')
        e('v_and_b32 v62, 31, v0')
        e('v_lshlrev_b32 v62, 6, v62')
        e('global_load_dword v63, v62, s[46:47]')
    e('v_lshlrev_b32 v1, 2, v0')
    e('s_lshl_b32 s14, s2, 12')
    e('v_add_u32 v3, s14, v1')
    e(f's_mov_b32 s15, {E}')
    e('v_cmp_gt_u32 vcc, s15, v3')
    e('v_lshlrev_b32 v13, 2, v3')
    e('v_lshlrev_b32 v12, 1, v3')
    e('v_mov_b32 v2, 0')
    e('ds_write_b32 v1, v2')
    e('s_mov_b64 s[32:33], vcc')
    e('s_and_saveexec_b64 s[38:39], vcc')
    e('s_waitcnt lgkmcnt(0)')
    stamp(2)
    e('s_cbranch_execz K1_NOLD')
    e('global_load_dwordx4 v[4:7], v13, s[6:7]')
    e('global_load_dwordx4 v[8:11], v13, s[4:5]')
    e('global_load_dwordx2 v[14:15], v12, s[8:9]')
    lab('K1_NOLD')
    srd(28, 12, 13, WS_SIZE)
    e('s_mov_b32 s34, 83887')
    e(f's_mov_b32 s35, {-R & 0xffffffff:#x}')
    e('s_mov_b32 s36, 0xffff0000')
    e('v_mov_b32 v2, 1')
    e('s_barrier')
    e('s_waitcnt vmcnt(2)')
    stamp(3)
    for i in range(4):
        e(f'v_mul_u32_u24 v{16+i}, s34, v{4+i}')
        e(f'v_lshrrev_b32 v{16+i}, 24, v{16+i}')
        e(f'v_mad_i32_i24 v{25+2*i}, v{16+i}, s35, v{4+i}')
        if RENUM:
            e(f'v_and_b32 v3, 7, v{16+i}')
            e(f'v_lshrrev_b32 v{16+i}, 3, v{16+i}')
            e(f'v_lshlrev_b32 v{16+i}, 2, v{16+i}')
            e(f'v_lshl_or_b32 v{16+i}, v3, 7, v{16+i}')
        else:
            e(f'v_lshlrev_b32 v{16+i}, 2, v{16+i}')
        e(f'ds_add_rtn_u32 v{20+i}, v{16+i}, v2')
    e('s_waitcnt vmcnt(0)')
    e(f's_movk_i32 s37, {RA}')
    for i in range(4):
        e(f'v_mul_u32_u24 v3, s34, v{8+i}')
        e('v_lshrrev_b32 v3, 24, v3')
        e(f'v_mad_i32_i24 v3, v3, s35, v{8+i}')
        e(f'v_cmp_le_u32 s[{48+2*i}:{49+2*i}], s37, v3')
    e('v_lshl_or_b32 v24, v14, 16, v8')
    e('v_and_or_b32 v26, v14, s36, v9')
    e('v_lshl_or_b32 v28, v15, 16, v10')
    e('v_and_or_b32 v30, v15, s36, v11')
    for i in range(4):
        e(f'v_addc_co_u32 v{25+2*i}, vcc, v{25+2*i}, v{25+2*i}, s[{48+2*i}:{49+2*i}]')
    e('s_mov_b64 exec, -1')
    if PF1:
        e('s_lshr_b32 s37, s2, 3')
        e('s_min_u32 s37, s37, 23')
        e(f's_mul_i32 s37, s37, {16*PF1*128}')
        e('v_lshrrev_b32 v60, 6, v0')
        e(f'v_mul_u32_u24 v60, {PF1*128}, v60')
        e('v_and_b32 v61, 63, v0')
        e('v_lshl_add_u32 v60, v61, 7, v60')
        e('v_add_u32 v60, s37, v60')
        m = (1 << PF1) - 1
        e(f's_mov_b32 exec_lo, {hex(m & 0xffffffff)}')
        e(f's_mov_b32 exec_hi, {hex(m >> 32)}')
        e('buffer_load_dword v61, v60, s[40:43], 0 offen')
        e('s_mov_b64 exec, -1')
    e('s_waitcnt lgkmcnt(0)')
    e('s_barrier')
    stamp(4)
    hd(2, 88)
    e('v_cmp_gt_u32 vcc, 64, v0')
    e('s_cbranch_vccz K1_SCAN_DONE')
    e('v_lshlrev_b32 v32, 4, v0')
    e('ds_read_b128 v[36:39], v32')
    e('s_waitcnt lgkmcnt(0)')
    e('v_add_u32 v41, v36, v37')
    e('v_add_u32 v42, v41, v38')
    e('v_add_u32 v43, v42, v39')
    e('v_mov_b32 v44, v43')
    wave_scan(44)
    e('v_sub_u32 v48, v44, v43')
    e('v_add_u32 v49, v48, v36')
    e('v_add_u32 v50, v48, v41')
    e('v_add_u32 v51, v48, v42')
    e('ds_write_b128 v32, v[48:51] offset:1024')
    for i in range(4):
        e(f'v_lshl_or_b32 v{52+i}, v{36+i}, 16, v{48+i}')
    e('v_lshlrev_b32 v33, 12, v0')
    e('s_lshl_b32 s37, s2, 2')
    e(f's_add_u32 s37, s37, {hex(WS_SEG)}')
    for i in range(4):
        if 'noT' not in XP:
            e(f'buffer_store_dword v{52+i}, v33, s[28:31], s37 offen offset:{i*1024}' + (' sc1' if 'Tplain' not in XP else ''))
    e('s_waitcnt lgkmcnt(0)')
    lab('K1_SCAN_DONE')
    e('s_barrier')
    stamp(5)
    e('s_mov_b64 exec, s[32:33]')
    for i in range(4):
        e(f'ds_read_b32 v{32+i}, v{16+i} offset:1024')
    for i in range(4):
        e(f's_waitcnt lgkmcnt({3-i})')
        e(f'v_add_lshl_u32 v{32+i}, v{32+i}, v{20+i}, 3')
        e(f'ds_write_b64 v{32+i}, v[{24+2*i}:{25+2*i}] offset:4096')
    e('s_mov_b64 exec, -1')
    e('s_waitcnt lgkmcnt(0)')
    e('s_barrier')
    stamp(6)
    e('v_lshlrev_b32 v36, 4, v0')
    e('ds_read_b128 v[40:43], v36 offset:4096')
    e('ds_read_b128 v[44:47], v36 offset:20480')
    e('s_lshl_b32 s37, s2, 15')
    e('s_add_u32 s38, s37, 16384')
    e('s_waitcnt lgkmcnt(1)')
    pol = '' if 'Eplain' in XP else ' sc1'
    if 'noE' not in XP:
        e('buffer_store_dwordx4 v[40:43], v36, s[28:31], s37 offen' + pol)
    e('s_waitcnt lgkmcnt(0)')
    if 'noE' not in XP:
        e('buffer_store_dwordx4 v[44:47], v36, s[28:31], s38 offen' + pol)
    stamp(7)
    if HD:
        e('s_waitcnt vmcnt(0)')
        hd(3, 88)
    dump_stamps(0, 28)
    e('s_endpgm')
    lab('K1_XTRA')
    gen_wprep()
    e('s_endpgm')
    lab('K1_CPF')
    if CPF:
        e(f's_cmp_gt_u32 s2, {NC+9}')
        e('s_cbranch_scc1 K1_END')
        e('s_getpc_b64 s[4:5]')
        lab('K1_PCREF')
        e('s_add_u32 s4, s4, main_kernel-K1_PCREF')
        e('s_addc_u32 s5, s5, 0')
        e('v_lshlrev_b32 v1, 6, v0')
        e('s_mov_b32 s6, M_CODE_END-main_kernel')
        e('v_cmp_gt_u32 vcc, s6, v1')
        e('s_and_saveexec_b64 s[8:9], vcc')
        e('s_cbranch_execz K1_END')
        e('global_load_dword v2, v1, s[4:5]')
        e('s_waitcnt vmcnt(0)')
    lab('K1_END')
    e('s_endpgm')

X = [64, 96]
EN = [48, 56]
ACC = [32, 40]
ACCO = 16
V_J = 1; V_PA = 2; V_EA = 3; V_PB = 4; V_EB = 5; V_TA = 6; V_TB = 7
V_W = 8
V_ROWS = 12
S_TAB = 16; S_WS = 20; S_OUT = 24; S_X = 28
S_128 = 32; S_HI = 33; S_ROUND = 34; S_NR = 35
S_MASKB = 36
S_T = 38
S_M = 40
S_CSR = 64; S_TMP = 65; S_TMP2 = 66; S_WAVE = 67; S_ROW0 = 68; S_TOT = 69; S_DUM = 70; S_TILE = 71
IMG = NT * 16

def issue(p, half):
    x = X[p] + 16 * half
    en = EN[p] + 4 * half
    for u in range(4):
        e(f'v_mad_u32_u16 v{x+4*u}, v{en+u}, s{S_128}, v{V_J}')
    for u in range(4):
        e(f'buffer_load_dwordx4 v[{x+4*u}:{x+4*u+3}], v{x+4*u}, s[{S_TAB}:{S_TAB+3}], 0 offen sc1')

V_SEL0 = 7; V_SEL1 = 13
def consume(p, half):
    x = X[p] + 16 * half
    en = EN[p] + 4 * half
    acc = ACC[half]
    def perm(bs, u):
        e(f'v_perm_b32 v{V_W+2*bs}, v{en+u}, v{en+u}, v{V_SEL0}')
        e(f'v_perm_b32 v{V_W+2*bs+1}, v{en+u}, v{en+u}, v{V_SEL1}')
    def mm(bs, u):
        e(f'v_mfma_f32_4x4x4_16b_bf16 v[{acc}:{acc+3}], v[{x+4*u}:{x+4*u+1}], v[{V_W+2*bs}:{V_W+2*bs+1}], v[{acc}:{acc+3}]')
        e(f'v_mfma_f32_4x4x4_16b_bf16 v[{acc+4}:{acc+7}], v[{x+4*u+2}:{x+4*u+3}], v[{V_W+2*bs}:{V_W+2*bs+1}], v[{acc+4}:{acc+7}]')
    perm(0, 0); perm(1, 1)
    mm(0, 0)
    perm(0, 2)
    mm(1, 1)
    perm(1, 3)
    mm(0, 2)
    e('s_nop 0')
    mm(1, 3)

def next_entries(p, half):
    P = V_PA if half == 0 else V_PB
    EE = V_EA if half == 0 else V_EB
    T = V_TA
    en = EN[p] + 4 * half
    m = 'vcc' if half == 0 else f's[{S_MASKB}:{S_MASKB+1}]'
    e(f'v_cmp_lt_u32 {m}, v{P}, v{EE}')
    e(f'v_mov_b32 v{T}, s{S_DUM}')
    e('s_nop 0')
    e(f'v_cndmask_b32 v{T}, v{T}, v{P}, {m}')
    e(f'v_add_u32 v{P}, s{S_INC}, v{P}')
    e(f'ds_read_b128 v[{en}:{en+3}], v{T}')

def masked_loop(pf, tag, body, first_check=2):
    for i in range(NIT):
        e(f's_mov_b64 exec, s[{S_M+4*i}:{S_M+4*i+1}]')
        if i >= first_check:
            e(f's_cbranch_execz {pf}_{tag}_X')
        body(i, 0)
        if body.__code__.co_argcount == 2 and getattr(body, 'two', True):
            e(f's_mov_b64 exec, s[{S_M+4*i+2}:{S_M+4*i+3}]')
            body(i, 1)
    lab(f'{pf}_{tag}_X')
    e('s_mov_b64 exec, -1')

def gemm_steps(ks_list, vB, vA, tB, tA, part_off):
    for ks in ks_list:
        e(f'ds_read_b128 v[{tB}:{tB+3}], v{vB} offset:{(ks&1)*64 + part_off(ks)}')
        for mt in range(3):
            e(f'ds_read_b128 v[{tA[mt]}:{tA[mt]+3}], v{vA} offset:{(ks*4+mt)*1024}')
        e('s_waitcnt lgkmcnt(2)')
        e(f'v_mfma_f32_16x16x32_bf16 v[{ACCO}:{ACCO+3}], v[{tA[0]}:{tA[0]+3}], v[{tB}:{tB+3}], v[{ACCO}:{ACCO+3}]')
        e(f'ds_read_b128 v[{tA[0]}:{tA[0]+3}], v{vA} offset:{(ks*4+3)*1024}')
        e('s_waitcnt lgkmcnt(2)')
        e(f'v_mfma_f32_16x16x32_bf16 v[{ACCO+4}:{ACCO+7}], v[{tA[1]}:{tA[1]+3}], v[{tB}:{tB+3}], v[{ACCO+4}:{ACCO+7}]')
        e('s_waitcnt lgkmcnt(1)')
        e(f'v_mfma_f32_16x16x32_bf16 v[{ACCO+8}:{ACCO+11}], v[{tA[2]}:{tA[2]+3}], v[{tB}:{tB+3}], v[{ACCO+8}:{ACCO+11}]')
        e('s_waitcnt lgkmcnt(0)')
        e(f'v_mfma_f32_16x16x32_bf16 v[{ACCO+12}:{ACCO+15}], v[{tA[0]}:{tA[0]+3}], v[{tB}:{tB+3}], v[{ACCO+12}:{ACCO+15}]')

def frag_addrs(vb, va, vrow):
    e(f'v_and_b32 v{vrow}, 15, v0')
    e(f's_lshl_b32 s{S_TMP}, s{S_WAVE}, 7')
    e(f's_add_u32 s{S_TMP}, s{S_TMP}, {L_DESC}')
    e(f'v_lshl_add_u32 v{vrow}, v{vrow}, 3, s{S_TMP}')
    e(f'ds_read_b32 v{vrow}, v{vrow}')
    e(f'v_bfe_u32 v{va}, v0, 4, 2')
    e(f'v_lshlrev_b32 v{vb}, 4, v{va}')
    e(f'v_add_u32 v{vb}, {L_ROWS}, v{vb}')
    e(f'v_and_b32 v{va}, 63, v0')
    e(f'v_lshlrev_b32 v{va}, 4, v{va}')
    e(f'v_add_u32 v{va}, {L_W}, v{va}')
    e('s_waitcnt lgkmcnt(0)')
    e(f'v_and_b32 v{vrow}, 255, v{vrow}')
    e(f'v_mad_u32_u24 v{vb}, v{vrow}, s{S_RS}, v{vb}')

def prefetch(lanes, base_line, vdst, vtmp):
    if lanes == 0: return
    e(f's_lshr_b32 s{S_TMP}, s2, 3')
    e(f's_min_u32 s{S_TMP}, s{S_TMP}, 30')
    e(f's_mul_i32 s{S_TMP}, s{S_TMP}, {NW}')
    e(f's_add_u32 s{S_TMP}, s{S_TMP}, s{S_WAVE}')
    e(f's_mul_i32 s{S_TMP}, s{S_TMP}, {lanes}')
    e(f's_add_u32 s{S_TMP}, s{S_TMP}, {base_line}')
    e(f'v_and_b32 v{vtmp}, 63, v0')
    e(f'v_add_u32 v{vtmp}, s{S_TMP}, v{vtmp}')
    e(f's_mov_b32 s{S_TMP}, 43691')
    e(f'v_mul_u32_u24 v{vdst}, s{S_TMP}, v{vtmp}')
    e(f'v_lshrrev_b32 v{vdst}, 22, v{vdst}')
    e(f's_movk_i32 s{S_TMP}, {R-RA}')
    e(f'v_mad_u32_u24 v{vtmp}, v{vdst}, s{S_TMP}, v{vtmp}')
    e(f'v_lshlrev_b32 v{vtmp}, 7, v{vtmp}')
    if lanes < 64:
        m = (1 << lanes) - 1
        e(f's_mov_b32 exec_lo, {hex(m & 0xffffffff)}')
        e(f's_mov_b32 exec_hi, {hex(m >> 32)}')
    e(f's_mov_b32 m0, {L_JUNK}')
    e('s_nop 0')
    e(f'buffer_load_dword v{vtmp}, s[{S_TAB}:{S_TAB+3}], 0 offen lds')
    e('s_mov_b64 exec, -1')

S_RS = S_TILE
S_PH = 72
S_FIRST = 73

S_T1 = 76
S_DBG = 80
S_PASS = 84
S_SPIN = 85
S_ONE = 80
S_POST = 81
S_RET = 82
S_NOUT = 83
S_INC = 69

def tile_regs(vw, vb, va):
    e(f's_mul_i32 s{S_TMP}, s{S_WAVE}, {16*ROW_STRIDE}')
    e(f's_add_u32 s{S_TMP}, s{S_TMP}, {L_ROWS}')
    e(f'v_bfe_u32 v{vw}, v0, 3, 3')
    e(f'v_mad_u32_u24 v{vw}, v{vw}, s{S_RS}, v{V_J}')
    e(f'v_add_u32 v{vw}, s{S_TMP}, v{vw}')
    e(f'v_and_b32 v{va}, 15, v0')
    e(f'v_bfe_u32 v{vb}, v0, 4, 2')
    e(f'v_lshlrev_b32 v{vb}, 4, v{vb}')
    e(f'v_mad_u32_u24 v{vb}, v{va}, s{S_RS}, v{vb}')
    e(f'v_add_u32 v{vb}, s{S_TMP}, v{vb}')
    e(f'v_and_b32 v{va}, 63, v0')
    e(f'v_lshlrev_b32 v{va}, 4, v{va}')
    e(f'v_add_u32 v{va}, {L_W}, v{va}')

def mfma_run(f0, f1, bfrag, pend, va):
    pend = list(pend)
    for f in range(f0, f1):
        ks, mt = f // 4, f % 4
        need = ['A%d' % f, 'B%d' % ks]
        idxs = [pend.index(n) for n in need if n in pend]
        if idxs:
            idx = max(idxs)
            rem = len(pend) - 1 - idx
            e(f's_waitcnt lgkmcnt({min(rem, 15)})')
            pend = pend[idx+1:]
        sl = 96 + 4*(f % 8)
        bq = bfrag(ks)
        e(f'v_mfma_f32_16x16x32_bf16 v[{ACCO+4*mt}:{ACCO+4*mt+3}], v[{sl}:{sl+3}], v[{bq}:{bq+3}], v[{ACCO+4*mt}:{ACCO+4*mt+3}]')
        if f + 8 < f1:
            e(f'ds_read_b128 v[{sl}:{sl+3}], v{va} offset:{(f+8)*1024}')
            pend.append('A%d' % (f+8))

def gen_main():
    pf = 'M'
    kernel_head('main_kernel')
    e(f's_cmp_ge_u32 s2, {NB}')
    e(f's_cbranch_scc1 {pf}_END2')
    stamp(0, True); stamp(1)
    e('s_load_dwordx2 s[4:5], s[0:1], 0')
    e('s_load_dwordx4 s[8:11], s[0:1], 40')
    e('s_load_dwordx2 s[12:13], s[0:1], 56')
    e('v_lshrrev_b32 v14, 6, v0')
    e('v_and_b32 v15, 7, v0')
    e(f'v_readfirstlane_b32 s{S_WAVE}, v14')
    e(f'v_lshlrev_b32 v{V_J}, 4, v15')
    e(f's_movk_i32 s{S_128}, 128')
    e(f's_mov_b32 s{S_HI}, 0xffff0000')
    e(f's_mov_b32 s{S_ROUND}, 0')
    e(f's_mov_b32 s{S_PASS}, 0')
    e(f's_mov_b32 s{S_POST}, 0')
    e(f's_mov_b32 s{S_DUM}, {L_DUMMY}')
    e(f's_mul_i32 s{S_ROW0}, s2, {R*128}')
    e(f's_movk_i32 s{S_RS}, {ROW_STRIDE}')
    tbl = {1: [3, 0, 1, 2, 4, 7, 6, 5, 11, 8, 9, 10, 12], 2: [9, 0, 1, 2, 10, 5, 4, 3, 11, 6, 7, 8, 12], 0: list(range(13))}[BAL]
    t64 = sum(v << (4*i) for i, v in enumerate(tbl))
    e(f's_mov_b32 s{S_T}, {hex(t64 & 0xffffffff)}')
    e(f's_mov_b32 s{S_T+1}, {hex(t64 >> 32)}')
    e(f's_lshl_b32 s{S_TMP}, s{S_WAVE}, 2')
    e(f's_lshr_b64 s[{S_T}:{S_T+1}], s[{S_T}:{S_T+1}], s{S_TMP}')
    e(f's_and_b32 s{S_PAIR}, s{S_T}, 15')
    e(f's_lshl_b32 s{S_PAIR}, s{S_PAIR}, 6')
    e(f's_add_u32 s{S_PAIR}, s{S_PAIR}, {L_DESC}')
    e('v_mov_b32 v14, 0')
    e(f'v_mov_b32 v15, {L_MAX}')
    e('ds_write_b32 v15, v14')
    e('v_and_b32 v15, 7, v0')
    e('v_lshlrev_b32 v15, 2, v15')
    e(f'ds_write_b32 v15, v14 offset:{L_SYNC}')
    e('s_waitcnt lgkmcnt(0)')
    stamp(2)
    if HD:
        e('s_sub_u32 s88, s10, 512')
        e('s_subb_u32 s89, s11, 0')
        hd(4, 88, True); hd(5, 88)
    srd(S_WS, 12, 13, WS_SIZE)

    lab(f'{pf}_ROUND')
    e('v_lshrrev_b32 v100, 2, v0')
    e('v_lshlrev_b32 v14, 2, v100')
    e(f's_and_b32 s{S_TMP}, s2, 7')
    e(f's_lshl_b32 s{S_TMP}, s{S_TMP}, 5')
    e(f's_lshr_b32 s{S_TMP2}, s2, 3')
    e(f's_add_u32 s{S_TMP}, s{S_TMP}, s{S_TMP2}')
    e(f's_lshl_b32 s{S_TMP}, s{S_TMP}, 10')
    e(f's_add_u32 s{S_TMP}, s{S_TMP}, {hex(WS_SEG)}')
    e('v_mov_b32 v103, 0')
    e(f'v_cmp_gt_u32 vcc, {NC*4}, v0')
    e(f's_and_saveexec_b64 s[{S_T}:{S_T+1}], vcc')
    e(f'buffer_load_dword v103, v14, s[{S_WS}:{S_WS+3}], s{S_TMP} offen')
    e(f's_mov_b64 exec, s[{S_T}:{S_T+1}]')
    e(f's_or_b32 s{S_TMP}, s{S_PASS}, s{S_ROUND}')
    e(f's_cmp_lg_u32 s{S_TMP}, 0')
    e(f's_cbranch_scc1 {pf}_NOSRD')
    srd(S_TAB, 4, 5, N * 128)
    srd(S_X, 4, 5, N * 128)
    srd(S_T1, 12, 13, N * 128, WS_T1)
    srd(S_OUT, 8, 9, N * 128)
    e('v_lshlrev_b32 v14, 4, v0')
    e(f's_mov_b32 s{S_TMP}, {hex(WS_WT)}')
    e(f'buffer_load_dwordx4 v[16:19], v14, s[{S_WS}:{S_WS+3}], s{S_TMP} offen')
    e(f's_add_u32 s{S_TMP}, s{S_TMP}, {IMG}')
    e(f'buffer_load_dwordx4 v[20:23], v14, s[{S_WS}:{S_WS+3}], s{S_TMP} offen')
    lab(f'{pf}_NOSRD')
    e('v_lshlrev_b32 v14, 2, v0')
    e('v_mov_b32 v15, 0')
    e('v_cmp_gt_u32 vcc, 512, v0')
    e(f's_and_saveexec_b64 s[{S_T}:{S_T+1}], vcc')
    e('ds_write_b32 v14, v15')
    e(f's_mov_b64 exec, s[{S_T}:{S_T+1}]')
    for i in range(4):
        e(f'v_mov_b32 v{88+i}, 0xffff')
    e('v_lshlrev_b32 v14, 4, v0')
    for i in range(4):
        e(f'ds_write_b128 v14, v[88:91] offset:{L_SORT + i*IMG}')
    e('v_and_b32 v102, 3, v0')
    e('v_lshlrev_b32 v102, 1, v102')
    e(f's_mul_i32 s{S_TMP}, s{S_ROUND}, {S}')
    e(f'v_add_u32 v102, s{S_TMP}, v102')
    e('v_mov_b32 v104, 1')
    e('s_waitcnt vmcnt(2)')
    e(f's_or_b32 s{S_TMP}, s{S_PASS}, s{S_ROUND}')
    e(f's_cmp_eq_u32 s{S_TMP}, 0')
    e(f's_cbranch_scc1 {pf}_DW')
    e('s_waitcnt vmcnt(0)')
    lab(f'{pf}_DW')
    stamp(3)
    e('v_and_b32 v101, 0xffff, v103')
    e('v_lshrrev_b32 v103, 16, v103')
    e('v_add_u32 v101, v101, v102')
    e('v_lshlrev_b32 v101, 3, v101')
    e('v_lshl_add_u32 v101, v100, 15, v101')
    e('v_sub_u32 v105, v103, v102')
    for i in range(NIT):
        e(f'v_cmp_lt_i32 s[{S_M+4*i}:{S_M+4*i+1}], {8*i}, v105')
        e(f'v_cmp_lt_i32 s[{S_M+4*i+2}:{S_M+4*i+3}], {8*i+1}, v105')
    def b_load(i, w):
        e(f'buffer_load_dwordx4 v[{64+4*i}:{67+4*i}], v101, s[{S_WS}:{S_WS+3}], 0 offen offset:{64*i}')
    b_load.two = False
    masked_loop(pf, 'LD', b_load, 0)
    e('s_waitcnt lgkmcnt(0)')
    e('s_barrier')
    e(f'v_cmp_lt_u32 vcc, {S}, v103')
    e(f's_cbranch_vccz {pf}_NOMAX')
    e(f'v_mov_b32 v15, {L_MAX}')
    e('ds_max_u32 v15, v103')
    lab(f'{pf}_NOMAX')
    e('s_waitcnt vmcnt(0)')
    e(f's_or_b32 s{S_TMP}, s{S_PASS}, s{S_ROUND}')
    e(f's_cmp_lg_u32 s{S_TMP}, 0')
    e(f's_cbranch_scc1 {pf}_NOW')
    prefetch(PF2, PF2BASE, 127, 126)
    e('v_lshlrev_b32 v14, 4, v0')
    e(f'v_add_u32 v14, {L_W}, v14')
    e('ds_write_b128 v14, v[16:19]')
    e(f'v_cmp_gt_u32 vcc, {1536-NT}, v0')
    e(f's_and_saveexec_b64 s[{S_T}:{S_T+1}], vcc')
    e(f'ds_write_b128 v14, v[20:23] offset:{IMG}')
    e(f's_mov_b64 exec, s[{S_T}:{S_T+1}]')
    lab(f'{pf}_NOW')
    def b_atom(i, w):
        r = 65 + 4*i + 2*w
        e(f'v_lshlrev_b32 v{r}, 2, v{r}')
        e(f'ds_add_rtn_u32 v{88+2*i+w}, v{r}, v104')
    masked_loop(pf, 'AT', b_atom)
    e('s_waitcnt lgkmcnt(0)')
    e('s_barrier')
    stamp(5)
    e(f's_cmp_lg_u32 s{S_WAVE}, {NW-1}')
    e(f's_cbranch_scc1 {pf}_SCAN_DONE')
    e('v_and_b32 v106, 63, v0')
    e('v_lshlrev_b32 v14, 5, v106')
    e('ds_read_b128 v[108:111], v14')
    e('ds_read_b128 v[112:115], v14 offset:16')
    e('v_mov_b32 v60, 0')
    e('v_mov_b32 v61, 0')
    e('v_lshlrev_b32 v107, 3, v106')
    e(f'ds_write_b64 v107, v[60:61] offset:{L_H2}')
    e('s_waitcnt lgkmcnt(1)')
    for i in range(8):
        e(f'v_add_u32 v{108+i}, 3, v{108+i}')
        e(f'v_and_b32 v{108+i}, -4, v{108+i}')
    e('v_mov_b32 v48, 0')
    e('v_mov_b32 v49, v108')
    for i in range(2, 8):
        e(f'v_add_u32 v{48+i}, v{47+i}, v{107+i}')
    e('v_add_u32 v56, v55, v115')
    e('v_mov_b32 v57, v56')
    wave_scan(57)
    e('v_sub_u32 v58, v57, v56')
    for i in range(8):
        e(f'v_add_u32 v{48+i}, v58, v{48+i}')
    e(f'ds_write_b128 v14, v[48:51] offset:{L_OFF}')
    e(f'ds_write_b128 v14, v[52:55] offset:{L_OFF+16}')
    e('s_waitcnt lgkmcnt(0)')
    lab(f'{pf}_SCAN_DONE')
    e('s_barrier')
    stamp(6)
    def b_rd(i, w):
        r = 65 + 4*i + 2*w
        e(f'ds_read_b32 v{r}, v{r} offset:{L_OFF}')
    masked_loop(pf, 'RD', b_rd)
    e('s_waitcnt lgkmcnt(0)')
    def b_wr(i, w):
        r = 65 + 4*i + 2*w
        e(f'v_add_lshl_u32 v{r}, v{r}, v{88+2*i+w}, 2')
        e(f'ds_write_b32 v{r}, v{r-1} offset:{L_SORT}')
    masked_loop(pf, 'WR', b_wr)
    e(f's_cmp_lg_u32 s{S_WAVE}, {NW-1}')
    e(f's_cbranch_scc1 {pf}_DESC_DONE')
    e(f's_or_b32 s{S_TMP}, s{S_PASS}, s{S_ROUND}')
    e(f's_cmp_lg_u32 s{S_TMP}, 0')
    e(f's_cbranch_scc1 {pf}_DESC_REDO')
    e('v_cmp_gt_u32 vcc, 50, v106')
    e(f's_mov_b64 s[{S_T}:{S_T+1}], vcc')
    e(f'v_cmp_gt_u32 vcc, {RA//4}, v106')
    e('v_mov_b32 v126, 127')
    e('v_mov_b32 v15, 63')
    e('v_cndmask_b32 v126, v126, v15, vcc')
    e(f's_mov_b64 exec, s[{S_T}:{S_T+1}]')
    for i in range(4):
        a0 = 108 + 2*i; a1 = a0 + 1
        e(f'v_lshrrev_b32 v{a0}, 2, v{a0}')
        e(f'v_lshrrev_b32 v{a1}, 2, v{a1}')
        e(f'v_min_u32 v15, 7, v{a0}')
        e(f'v_min_u32 v59, 7, v{a1}')
        e(f'v_lshl_add_u32 v15, v15, 3, v59')
        e(f'v_sub_u32 v15, v126, v15')
        e(f'v_lshlrev_b32 v{116+i}, 2, v15')
        e(f'ds_add_rtn_u32 v{120+i}, v{116+i}, v104 offset:{L_H2}')
    e('s_mov_b64 exec, -1')
    e('s_waitcnt lgkmcnt(0)')
    e(f'ds_read_b64 v[124:125], v107 offset:{L_H2}')
    e('s_waitcnt lgkmcnt(0)')
    e('v_add_u32 v125, v124, v125')
    e('v_mov_b32 v62, v125')
    wave_scan(62)
    e('v_sub_u32 v62, v62, v125')
    e('v_cmp_lt_u32 vcc, 31, v106')
    e('v_mov_b32 v63, 0')
    e('v_mov_b32 v15, 8')
    e('v_cndmask_b32 v63, v63, v15, vcc')
    e('v_add_u32 v62, v62, v63')
    e('v_add_u32 v63, v62, v124')
    e(f'ds_write_b64 v107, v[62:63] offset:{L_H2+512}')
    e('s_mov_b64 exec, 0xff')
    e(f'v_mov_b32 v60, {R}')
    e('v_mov_b32 v61, 0')
    e('v_lshlrev_b32 v15, 3, v106')
    e(f'ds_write_b64 v15, v[60:61] offset:{L_DESC + RA*8}')
    e(f's_mov_b64 exec, s[{S_T}:{S_T+1}]')
    e('s_waitcnt lgkmcnt(0)')
    for i in range(4):
        e(f'ds_read_b32 v{116+i}, v{116+i} offset:{L_H2+512}')
    for i in range(4):
        e(f'v_lshl_add_u32 v15, v106, 2, {i}')
        e(f'v_lshl_or_b32 v{32+2*i}, v{48+2*i}, 6, v15')
        e(f'v_lshl_or_b32 v{33+2*i}, v{109+2*i}, 16, v{108+2*i}')
    e('s_waitcnt lgkmcnt(0)')
    for i in range(4):
        e(f'v_add_lshl_u32 v{116+i}, v{116+i}, v{120+i}, 3')
        e(f'ds_write_b64 v{116+i}, v[{32+2*i}:{33+2*i}] offset:{L_DESC}')
    e('s_mov_b64 exec, -1')
    e(f's_branch {pf}_DESC_DONE')
    lab(f'{pf}_DESC_REDO')
    e('v_cmp_gt_u32 vcc, 52, v106')
    e('s_mov_b64 exec, vcc')
    e(f'ds_read_b128 v[108:111], v14 offset:{L_DESC}')
    e(f'ds_read_b128 v[112:115], v14 offset:{L_DESC+16}')
    e('s_waitcnt lgkmcnt(0)')
    for i in range(4):
        d0 = 108 + 2*i
        e(f'v_and_b32 v{d0}, 255, v{d0}')
        e(f'v_lshlrev_b32 v15, 3, v{d0}')
        e(f'v_add_u32 v15, {L_OFF}, v15')
        e(f'ds_read2_b32 v[{48+4*i}:{49+4*i}], v15 offset0:0 offset1:1')
        e(f'ds_read_b32 v{50+4*i}, v15 offset:8')
    e('s_waitcnt lgkmcnt(0)')
    for i in range(4):
        d0 = 108 + 2*i
        e(f'v_lshl_or_b32 v{d0}, v{48+4*i}, 6, v{d0}')
        e(f'v_sub_u32 v15, v{49+4*i}, v{48+4*i}')
        e(f'v_lshrrev_b32 v15, 2, v15')
        e(f'v_sub_u32 v{d0+1}, v{50+4*i}, v{49+4*i}')
        e(f'v_lshl_or_b32 v{d0+1}, v{d0+1}, 14, v15')
    e(f'ds_write_b128 v14, v[108:111] offset:{L_DESC}')
    e(f'ds_write_b128 v14, v[112:115] offset:{L_DESC+16}')
    e('s_mov_b64 exec, -1')
    lab(f'{pf}_DESC_DONE')
    e('s_waitcnt lgkmcnt(0)')
    e('s_barrier')
    stamp(7)
    hd(6, 88)

    BOFF = (RA + 8) * 8
    lab(f'{pf}_PHASE_B')
    e(f's_mov_b32 s{S_PH}, 0')
    e(f'v_mov_b32 v15, {L_MAX}')
    e('ds_read_b32 v6, v15')
    e('v_and_b32 v14, 1, v0')
    e(f's_mov_b32 s{S_TMP}, 0x0c0c0302')
    e(f's_mov_b32 s{S_TMP2}, 0x03020c0c')
    e('v_cmp_eq_u32 vcc, 0, v14')
    e(f'v_mov_b32 v14, s{S_TMP2}')
    e(f'v_mov_b32 v15, s{S_TMP}')
    e('v_cndmask_b32 v14, v14, v15, vcc')
    e('v_and_b32 v15, 2, v0')
    e('v_cmp_eq_u32 vcc, 0, v15')
    e('v_mov_b32 v15, 0x0c0c0c0c')
    e('s_nop 0')
    e(f'v_cndmask_b32 v{V_SEL0}, v15, v14, vcc')
    e(f'v_cndmask_b32 v{V_SEL1}, v14, v15, vcc')
    e('s_waitcnt lgkmcnt(0)')
    e(f'v_readfirstlane_b32 s{S_NR}, v6')
    lab(f'{pf}_SEG')
    e('v_bfe_u32 v15, v0, 3, 3')
    e(f'v_lshl_add_u32 v14, v15, 3, s{S_PAIR}')
    e('ds_read_b64 v[8:9], v14')
    e(f'ds_read_b64 v[10:11], v14 offset:{BOFF}')
    e(f's_cmp_lg_u32 s{S_PASS}, 0')
    e(f's_cbranch_scc1 {pf}_SEG2')
    e(f's_setprio {P1S0}')
    e(f's_movk_i32 s{S_INC}, 32')
    e('s_waitcnt lgkmcnt(0)')
    e('v_and_b32 v14, 255, v8')
    e('v_and_b32 v15, 255, v10')
    e(f'v_lshl_or_b32 v{V_ROWS}, v15, 16, v14')
    e(f's_cmp_eq_u32 s{S_PH}, 0')
    e(f's_cbranch_scc1 {pf}_SEG1A')
    e(f's_setprio {P1S1}')
    e('v_mov_b32 v8, v10')
    e('v_mov_b32 v9, v11')
    lab(f'{pf}_SEG1A')
    e(f'v_lshrrev_b32 v{V_PA}, 8, v8')
    e(f'v_lshlrev_b32 v{V_PA}, 4, v{V_PA}')
    e(f'v_add_u32 v{V_PA}, {L_SORT}, v{V_PA}')
    e('v_and_b32 v14, 0xffff, v9')
    e('v_lshrrev_b32 v15, 16, v9')
    e('v_add_u32 v14, v14, v15')
    e(f'v_lshl_add_u32 v{V_EA}, v14, 4, v{V_PA}')
    e(f'v_add_u32 v{V_PB}, 16, v{V_PA}')
    e(f'v_mov_b32 v{V_EB}, v{V_EA}')
    e(f's_branch {pf}_GW_OK')
    lab(f'{pf}_SEG2')
    e(f's_movk_i32 s{S_INC}, 16')
    e(f's_lshl_b32 s{S_TMP}, s{S_PH}, 2')
    e(f's_add_u32 s{S_TMP}, s{S_TMP}, {L_SYNC+8}')
    e(f'v_mov_b32 v14, s{S_TMP}')
    e('ds_read_b32 v15, v14')
    e('s_waitcnt lgkmcnt(0)')
    e(f'v_readfirstlane_b32 s{S_TMP2}, v15')
    for (D, P, EE) in ((8, V_PA, V_EA), (10, V_PB, V_EB)):
        e(f'v_lshrrev_b32 v{P}, 8, v{D}')
        e(f'v_lshlrev_b32 v{P}, 4, v{P}')
        e(f'v_add_u32 v{P}, {L_SORT}, v{P}')
        e(f'v_and_b32 v{EE}, 0xffff, v{D+1}')
        e(f'v_lshl_add_u32 v{EE}, v{EE}, 4, v{P}')
    e(f's_setprio {P2S0}')
    e(f's_cmp_eq_u32 s{S_PH}, 0')
    e(f's_cbranch_scc1 {pf}_SEG2A')
    e(f's_setprio {P2S1}')
    for (D, P, EE) in ((8, V_PA, V_EA), (10, V_PB, V_EB)):
        e(f'v_mov_b32 v{P}, v{EE}')
        e(f'v_lshrrev_b32 v{D+1}, 16, v{D+1}')
        e(f'v_lshl_add_u32 v{EE}, v{D+1}, 4, v{EE}')
    lab(f'{pf}_SEG2A')
    e(f's_cmp_lg_u32 s{S_TMP2}, 0')
    e(f's_cbranch_scc1 {pf}_GW_OK')
    e(f's_cmp_eq_u32 s{S_POST}, 0')
    e(f's_cbranch_scc1 {pf}_RET1')
    e(f's_mov_b32 s{S_RET}, 1')
    e(f's_mov_b32 s{S_NOUT}, 0')
    e(f's_branch {pf}_POSTWORK')
    lab(f'{pf}_RET1')
    e(f's_lshl_b32 s{S_TMP}, s{S_PH}, 2')
    e(f's_add_u32 s{S_TMP}, s{S_TMP}, {L_SYNC+8}')
    e(f'v_mov_b32 v14, s{S_TMP}')
    e('v_mov_b32 v15, 1')
    e('v_and_b32 v64, 15, v0')
    e('v_lshlrev_b32 v64, 2, v64')
    e('s_mov_b64 exec, 1')
    e('ds_add_rtn_u32 v15, v14, v15 offset:8')
    e(f's_mov_b32 s{S_SPIN}, 0')
    e('s_waitcnt lgkmcnt(0)')
    e(f'v_readfirstlane_b32 s{S_TMP}, v15')
    e(f's_cmp_lg_u32 s{S_TMP}, 0')
    e(f's_cbranch_scc1 {pf}_GW_SPIN')
    e(f's_lshl_b32 s{S_TMP2}, s{S_PH}, 13')
    e(f's_add_u32 s{S_TMP2}, s{S_TMP2}, {hex(WS_BAR+2048)}')
    e(f's_and_b32 s{S_TMP}, s2, 31')
    e(f's_lshl_b32 s{S_TMP}, s{S_TMP}, 7')
    e(f's_add_u32 s{S_TMP2}, s{S_TMP2}, s{S_TMP}')
    if SCAL:
        lab(f'{pf}_POLL')
        e(f's_mov_b32 s{S_TMP}, 0')
        e(f's_atomic_add s{S_TMP}, s[12:13], s{S_TMP2} glc')
        e('s_waitcnt lgkmcnt(0)')
        e(f's_add_u32 s{S_SPIN}, s{S_SPIN}, 1')
        e(f's_cmp_ge_u32 s{S_TMP}, 16')
        e(f's_cbranch_scc1 {pf}_POLLED')
    else:
        e('s_mov_b64 exec, 0xffff')
        lab(f'{pf}_POLL')
        e(f'buffer_load_dword v65, v64, s[{S_WS}:{S_WS+3}], s{S_TMP2} offen sc1')
        e('s_waitcnt vmcnt(0)')
        e('v_cmp_eq_u32 vcc, 0, v65')
        e(f's_add_u32 s{S_SPIN}, s{S_SPIN}, 1')
        e(f's_cbranch_vccz {pf}_POLLED')
    e(f's_cmp_ge_u32 s{S_SPIN}, {SPIN_MAX}')
    e(f's_cbranch_scc1 {pf}_POLLED')
    e(f's_sleep {SLP}')
    e(f's_branch {pf}_POLL')
    lab(f'{pf}_POLLED')
    if HD:
        e(f's_cmp_lg_u32 s{S_PH}, 0')
        e(f's_cbranch_scc1 {pf}_HD1')
        hd(9, 88, True); hd(10, 88)
        e(f's_branch {pf}_HD2')
        lab(f'{pf}_HD1')
        hd(11, 88, True); hd(12, 88)
        lab(f'{pf}_HD2')
    e('v_mov_b32 v15, 1')
    e('ds_write_b32 v14, v15')
    e(f's_branch {pf}_GW_DONE')
    lab(f'{pf}_GW_SPIN')
    e('s_sleep 1')
    e('ds_read_b32 v15, v14')
    e('s_waitcnt lgkmcnt(0)')
    e(f'v_readfirstlane_b32 s{S_TMP}, v15')
    e(f's_cmp_eq_u32 s{S_TMP}, 0')
    e(f's_cbranch_scc1 {pf}_GW_SPIN')
    lab(f'{pf}_GW_DONE')
    e('s_mov_b64 exec, -1')
    e('s_waitcnt lgkmcnt(0)')
    lab(f'{pf}_GW_OK')
    if INSTR:
        e(f's_lshl_b32 s{S_TMP}, s{S_PASS}, 1')
        e(f's_or_b32 s{S_TMP}, s{S_TMP}, s{S_PH}')
        e(f's_cmp_lg_u32 s{S_TMP}, 2')
        e(f's_cbranch_scc1 {pf}_ST9')
        stamp(9)
        lab(f'{pf}_ST9')
        e(f's_cmp_lg_u32 s{S_TMP}, 3')
        e(f's_cbranch_scc1 {pf}_ST4')
        stamp(4)
        lab(f'{pf}_ST4')
    next_entries(0, 0)
    next_entries(0, 1)
    e(f's_or_b64 s[{S_T}:{S_T+1}], vcc, s[{S_MASKB}:{S_MASKB+1}]')
    e(f's_cselect_b32 s{S_TMP2}, 1, 0')
    next_entries(1, 0)
    next_entries(1, 1)
    e(f's_or_b64 s[{S_T}:{S_T+1}], vcc, s[{S_MASKB}:{S_MASKB+1}]')
    e(f's_cselect_b32 s{S_TMP}, 2, 0')
    e(f's_or_b32 s{S_NST}, s{S_TMP}, s{S_TMP2}')
    e(f's_bitcmp1_b32 s{S_NST}, 0')
    e(f's_cbranch_scc0 {pf}_PRO_DONE')
    e('s_waitcnt lgkmcnt(3)')
    issue(0, 0)
    e('s_waitcnt lgkmcnt(2)')
    issue(0, 1)
    e(f's_bitcmp1_b32 s{S_NST}, 1')
    e(f's_cbranch_scc0 {pf}_PRO_DONE')
    e('s_waitcnt lgkmcnt(1)')
    issue(1, 0)
    e('s_waitcnt lgkmcnt(0)')
    issue(1, 1)
    lab(f'{pf}_PRO_DONE')
    e(f's_cmp_eq_u32 s{S_POST}, 0')
    e(f's_cbranch_scc1 {pf}_RET2')
    e(f's_mov_b32 s{S_RET}, 2')
    e(f's_mov_b32 s{S_NOUT}, s{S_NST}')
    e(f's_branch {pf}_POSTWORK')
    lab(f'{pf}_RET2')
    e(f's_and_b32 s{S_TMP}, s{S_PASS}, s{S_PH}')
    e(f's_cmp_lg_u32 s{S_TMP}, 0')
    e(f's_cbranch_scc1 {pf}_GO')
    for r in range(16):
        e(f'v_mov_b32 v{ACC[0]+r}, 0')
    e(f's_cmp_eq_u32 s{S_ROUND}, 0')
    e(f's_cbranch_scc1 {pf}_GO')
    part_addrs()
    e(f's_cmp_lg_u32 s{S_PASS}, 0')
    e(f's_cbranch_scc1 {pf}_LP2')
    e(f's_cmp_eq_u32 s{S_PH}, 0')
    e(f's_cbranch_scc1 {pf}_LP1')
    e('v_mov_b32 v14, v15')
    e(f's_branch {pf}_LP1')
    lab(f'{pf}_LP2')
    e(f'buffer_load_dwordx4 v[40:43], v15, s[{S_WS}:{S_WS+3}], s{S_TMP} offen')
    e(f'buffer_load_dwordx4 v[44:47], v15, s[{S_WS}:{S_WS+3}], s{S_TMP} offen offset:16')
    lab(f'{pf}_LP1')
    e(f'buffer_load_dwordx4 v[32:35], v14, s[{S_WS}:{S_WS+3}], s{S_TMP} offen')
    e(f'buffer_load_dwordx4 v[36:39], v14, s[{S_WS}:{S_WS+3}], s{S_TMP} offen offset:16')
    e('s_waitcnt vmcnt(0)')
    lab(f'{pf}_GO')
    e(f's_cmp_eq_u32 s{S_NST}, 0')
    e(f's_cbranch_scc1 {pf}_SEG_END')
    e(f's_cmp_eq_u32 s{S_NST}, 1')
    e(f's_cbranch_scc1 {pf}_DRAIN0')
    lab(f'{pf}_LOOP')
    for p in (0, 1):
        e('s_waitcnt vmcnt(12)')
        consume(p, 0)
        next_entries(p, 0)
        e('s_waitcnt vmcnt(8)')
        consume(p, 1)
        next_entries(p, 1)
        e(f's_or_b64 s[{S_T}:{S_T+1}], vcc, s[{S_MASKB}:{S_MASKB+1}]')
        e(f's_cbranch_scc0 {pf}_DRAIN{p^1}')
        e('s_waitcnt lgkmcnt(1)')
        issue(p, 0)
        e('s_waitcnt lgkmcnt(0)')
        issue(p, 1)
    e(f's_branch {pf}_LOOP')
    for q in (1, 0):
        lab(f'{pf}_DRAIN{q}')
        e('s_waitcnt vmcnt(4)')
        consume(q, 0)
        e('s_waitcnt vmcnt(0)')
        consume(q, 1)
        if q == 1:
            e(f's_branch {pf}_SEG_END')
    lab(f'{pf}_SEG_END')
    e('s_nop 4')
    e('s_waitcnt lgkmcnt(0)')
    e(f's_add_u32 s{S_TMP}, s{S_ROUND}, 1')
    e(f's_mul_i32 s{S_TMP}, s{S_TMP}, {S}')
    e(f's_cmp_ge_u32 s{S_TMP}, s{S_NR}')
    e(f's_cselect_b32 s{S_FIRST}, 1, 0')
    e(f's_cmp_lg_u32 s{S_PASS}, 0')
    e(f's_cbranch_scc1 {pf}_END_P2')
    for r in range(8):
        e(f'v_add_f32 v{32+r}, v{32+r}, v{40+r}')
    e(f's_cmp_eq_u32 s{S_WAVE}, {NW-1}')
    e(f's_cselect_b32 s{S_TMP}, 1, 0')
    e(f's_andn2_b32 s{S_TMP}, s{S_TMP}, s{S_PH}')
    e(f's_cmp_lg_u32 s{S_TMP}, 0')
    e(f's_cbranch_scc1 {pf}_P1NEXT')
    e(f's_cmp_lg_u32 s{S_FIRST}, 0')
    e(f's_cbranch_scc1 {pf}_PUB')
    part_addrs()
    e(f's_cmp_eq_u32 s{S_PH}, 0')
    e(f's_cbranch_scc1 {pf}_SP1')
    e('v_mov_b32 v14, v15')
    lab(f'{pf}_SP1')
    e(f'buffer_store_dwordx4 v[32:35], v14, s[{S_WS}:{S_WS+3}], s{S_TMP} offen')
    e(f'buffer_store_dwordx4 v[36:39], v14, s[{S_WS}:{S_WS+3}], s{S_TMP} offen offset:16')
    e('s_waitcnt vmcnt(0)')
    e(f's_branch {pf}_P1NEXT')
    lab(f'{pf}_PUB')
    e(f's_cmp_lg_u32 s{S_PH}, 0')
    e(f's_cbranch_scc1 {pf}_PUBB')
    for d in range(4):
        e(f'v_cvt_pk_bf16_f32 v{24+d}, v{32+2*d}, v{33+2*d}')
    e(f'v_mad_u32_u16 v14, v{V_ROWS}, s{S_128}, v{V_J}')
    e(f'v_add_u32 v14, s{S_ROW0}, v14')
    e(f'buffer_store_dwordx4 v[24:27], v14, s[{S_T1}:{S_T1+3}], 0 offen sc1')
    e(f'buffer_load_dwordx4 v[16:19], v14, s[{S_X}:{S_X+3}], 0 offen')
    if 'sig' in XP: stamp(7)
    e(f's_branch {pf}_SIG')
    lab(f'{pf}_PUBB')
    stamp(8)
    hd(8, 88); hd(7, 88, True)
    for d in range(4):
        e(f'v_cvt_pk_bf16_f32 v{28+d}, v{32+2*d}, v{33+2*d}')
    e(f'v_mad_u32_u16 v14, v{V_ROWS}, s{S_128}, v{V_J} op_sel:[1,0,0,0]')
    e(f'v_add_u32 v14, s{S_ROW0}, v14')
    e(f'buffer_store_dwordx4 v[28:31], v14, s[{S_T1}:{S_T1+3}], 0 offen sc1')
    e(f'buffer_load_dwordx4 v[20:23], v14, s[{S_X}:{S_X+3}], 0 offen')
    lab(f'{pf}_SIG')
    e(f's_add_u32 s{S_POST}, s{S_PH}, 1')
    e(f's_mov_b32 s{S_RET}, 4')
    e(f's_mov_b32 s{S_NOUT}, 0')
    e(f's_branch {pf}_POSTWORK')
    lab(f'{pf}_P1NEXT')
    e(f's_cmp_lg_u32 s{S_PH}, 0')
    e(f's_cbranch_scc1 {pf}_P1DONE')
    e(f's_mov_b32 s{S_PH}, 1')
    e(f's_branch {pf}_SEG')
    lab(f'{pf}_P1DONE')
    e(f's_cmp_lg_u32 s{S_FIRST}, 0')
    e(f's_cbranch_scc1 {pf}_TOP2')
    lab(f'{pf}_NEXTROUND')
    e(f's_add_u32 s{S_ROUND}, s{S_ROUND}, 1')
    e('s_waitcnt vmcnt(0) lgkmcnt(0)')
    e('s_barrier')
    e(f's_branch {pf}_ROUND')
    lab(f'{pf}_TOP2')
    for i in range(4):
        e(f's_mov_b32 s{S_TAB+i}, s{S_T1+i}')
    e(f's_mov_b32 s{S_PASS}, 1')
    e(f's_mov_b32 s{S_ROUND}, 0')
    e(f's_mov_b32 s{S_PH}, 0')
    e(f's_cmp_eq_u32 s{S_NR}, 0')
    e(f's_cbranch_scc1 {pf}_SEG')
    e(f's_mov_b32 s{S_RET}, 3')
    e(f's_mov_b32 s{S_NOUT}, 0')
    e(f's_branch {pf}_POSTWORK')
    lab(f'{pf}_RET3')
    e('s_waitcnt lgkmcnt(0)')
    e('s_barrier')
    e(f's_branch {pf}_ROUND')

    def wait3(k, tag):
        e(f's_cmp_eq_u32 s{S_NOUT}, 3')
        e(f's_cbranch_scc1 {pf}_W16{tag}')
        e(f's_cmp_eq_u32 s{S_NOUT}, 1')
        e(f's_cbranch_scc1 {pf}_W8{tag}')
        e(f's_waitcnt vmcnt({k})')
        lab(f'{pf}_W8{tag}')
        e(f's_waitcnt vmcnt({8+k})')
        lab(f'{pf}_W16{tag}')
        e(f's_waitcnt vmcnt({16+k})')
    lab(f'{pf}_POSTWORK')
    e(f's_cmp_eq_u32 s{S_POST}, 3')
    e(f's_cbranch_scc1 {pf}_PGEMM')
    e(f's_sub_u32 s{S_POST}, s{S_POST}, 1')
    e('v_mov_b32 v33, 1')
    e(f's_lshl_b32 s{S_TMP}, s{S_POST}, 2')
    e(f's_add_u32 s{S_TMP}, s{S_TMP}, {L_SYNC}')
    e(f'v_mov_b32 v34, s{S_TMP}')
    e(f's_lshl_b32 s{S_TMP2}, s{S_POST}, 13')
    e(f's_add_u32 s{S_TMP2}, s{S_TMP2}, {hex(WS_BAR)}')
    e(f's_and_b32 s{S_SPIN}, s2, 15')
    e(f's_lshl_b32 s{S_TMP}, s{S_SPIN}, 7')
    e(f's_add_u32 s{S_T}, s{S_TMP}, s{S_TMP2}')
    e(f's_cmp_lt_u32 s{S_SPIN}, {NB % 16}')
    e(f's_cselect_b32 s{S_SPIN}, {NB//16}, {NB//16 - 1}')
    e('v_and_b32 v36, 31, v0')
    e('v_lshlrev_b32 v36, 7, v36')
    e('s_waitcnt vmcnt(1)')
    e('s_mov_b64 exec, 1')
    e('ds_add_rtn_u32 v35, v34, v33')
    e('s_waitcnt lgkmcnt(0)')
    e(f'v_readfirstlane_b32 s{S_TMP}, v35')
    e(f's_sub_u32 s{S_TMP}, s{S_TMP}, s{S_POST}')
    e(f's_cmp_lg_u32 s{S_TMP}, 11')
    e(f's_cbranch_scc1 {pf}_NOSIG')
    e(f's_mov_b32 s{S_TMP}, 1')
    e(f's_atomic_add s{S_TMP}, s[12:13], s{S_T} glc')
    e('s_waitcnt lgkmcnt(0)')
    e(f's_cmp_lg_u32 s{S_TMP}, s{S_SPIN}')
    e(f's_cbranch_scc1 {pf}_NOSIG')
    e('s_mov_b32 exec_lo, -1')
    e(f'buffer_atomic_add v33, v36, s[{S_WS}:{S_WS+3}], s{S_TMP2} offen offset:2048')
    e('s_nop 1')
    lab(f'{pf}_NOSIG')
    e('s_mov_b64 exec, -1')
    e(f's_mul_i32 s{S_POST}, s{S_POST}, 3')
    e(f's_branch {pf}_P1NEXT')
    lab(f'{pf}_PGEMM')
    e(f's_mov_b32 s{S_POST}, 0')
    tile_regs(14, 15, 6)
    e('ds_write_b128 v14, v[24:27] offset:128')
    e(f'ds_write_b128 v14, v[28:31] offset:{8*ROW_STRIDE+128}')
    e('s_waitcnt vmcnt(17)')
    wait3(0, 'b')
    e('ds_write_b128 v14, v[16:19]')
    e(f'ds_write_b128 v14, v[20:23] offset:{8*ROW_STRIDE}')
    e('s_waitcnt lgkmcnt(0)')
    for r in range(16):
        e(f'v_mov_b32 v{ACCO+r}, 0')
    gemm_steps(range(4), 15, 6, 32, [36, 40, 44], lambda ks: (ks >> 1) * 128)
    lab(f'{pf}_POSTEND')
    e(f's_cmp_eq_u32 s{S_RET}, 2')
    e(f's_cbranch_scc1 {pf}_RET2')
    e(f's_cmp_eq_u32 s{S_RET}, 1')
    e(f's_cbranch_scc1 {pf}_RET1')
    e(f's_cmp_eq_u32 s{S_RET}, 4')
    e(f's_cbranch_scc1 {pf}_P1NEXT')
    e(f's_branch {pf}_RET3')
    lab(f'{pf}_END_P2')
    e(f's_cmp_lg_u32 s{S_PH}, 0')
    e(f's_cbranch_scc1 {pf}_P2DONE')
    e(f's_mov_b32 s{S_PH}, 1')
    e(f's_branch {pf}_SEG')
    lab(f'{pf}_P2DONE')
    e(f's_cmp_lg_u32 s{S_FIRST}, 0')
    e(f's_cbranch_scc1 {pf}_FINAL2')
    part_addrs()
    e(f'buffer_store_dwordx4 v[40:43], v15, s[{S_WS}:{S_WS+3}], s{S_TMP} offen')
    e(f'buffer_store_dwordx4 v[44:47], v15, s[{S_WS}:{S_WS+3}], s{S_TMP} offen offset:16')
    e(f's_cmp_eq_u32 s{S_WAVE}, {NW-1}')
    e(f's_cbranch_scc1 {pf}_NEXTROUND')
    e(f'buffer_store_dwordx4 v[32:35], v14, s[{S_WS}:{S_WS+3}], s{S_TMP} offen')
    e(f'buffer_store_dwordx4 v[36:39], v14, s[{S_WS}:{S_WS+3}], s{S_TMP} offen offset:16')
    e(f's_branch {pf}_NEXTROUND')

    lab(f'{pf}_FINAL2')
    if 'sig' not in XP: stamp(2)
    tile_regs(14, 15, 94)
    e('ds_read_b128 v[64:67], v14')
    e(f'ds_read_b128 v[68:71], v14 offset:{8*ROW_STRIDE}')
    e('v_and_b32 v93, 7, v0')
    e(f'v_lshl_add_u32 v93, v93, 3, s{S_PAIR}')
    e('v_bfe_u32 v92, v0, 3, 1')
    e(f'v_mul_u32_u24 v92, {(RA+8)*8}, v92')
    e('v_add_u32 v93, v93, v92')
    e('ds_read_b32 v93, v93')
    for f in range(8):
        e(f'ds_read_b128 v[{96+4*f}:{99+4*f}], v94 offset:{(16+f)*1024}')
    e('s_waitcnt lgkmcnt(9)')
    for h in range(2):
        for d in range(4):
            xs = 64 + 4*h + d
            e(f'v_lshlrev_b32 v88, 16, v{xs}')
            e(f'v_and_b32 v89, s{S_HI}, v{xs}')
            e(f'v_fma_f32 v88, 2.0, v{ACC[h]+2*d}, -v88')
            e(f'v_fma_f32 v89, 2.0, v{ACC[h]+2*d+1}, -v89')
            e(f'v_cvt_pk_bf16_f32 v{80+4*h+d}, v88, v89')
    e('ds_write_b128 v14, v[80:83] offset:128')
    e(f'ds_write_b128 v14, v[84:87] offset:{8*ROW_STRIDE+128}')
    e('ds_read_b128 v[72:75], v15 offset:128')
    e('ds_read_b128 v[76:79], v15 offset:192')
    mfma_run(16, 24, lambda ks: 72 + 4*(ks-4), ['d'] + ['A%d' % i for i in range(16, 24)] + ['w', 'w', 'B4', 'B5'], 94)
    e('v_and_b32 v93, 255, v93')
    e('v_bfe_u32 v14, v0, 4, 2')
    e('v_lshlrev_b32 v14, 5, v14')
    e('v_lshl_add_u32 v14, v93, 7, v14')
    e(f'v_add_u32 v14, s{S_ROW0}, v14')
    e(f'v_cmp_gt_u32 vcc, {R}, v93')
    e('s_and_b64 exec, exec, vcc')
    e('s_nop 7')
    for mt in range(4):
        e(f'v_cvt_pk_bf16_f32 v{64+2*mt}, v{ACCO+4*mt}, v{ACCO+4*mt+1}')
        e(f'v_cvt_pk_bf16_f32 v{65+2*mt}, v{ACCO+4*mt+2}, v{ACCO+4*mt+3}')
    e(f'buffer_store_dwordx4 v[64:67], v14, s[{S_OUT}:{S_OUT+3}], 0 offen')
    e(f'buffer_store_dwordx4 v[68:71], v14, s[{S_OUT}:{S_OUT+3}], 0 offen offset:16')
    lab(f'{pf}_END')
    if HD:
        e('s_waitcnt vmcnt(0)')
        hd(14, 88); hd(13, 88, True)
    dump_stamps(1, S_WS)
    lab(f'{pf}_END2')
    e('s_endpgm')
    lab('M_CODE_END')

def gen_wprep():
    e(f's_cmp_gt_u32 s2, {NC+1}')
    e('s_cbranch_scc1 K1_CPF')
    e('s_load_dwordx2 s[10:11], s[0:1], 32')
    e('s_load_dwordx2 s[12:13], s[0:1], 56')
    e(f's_sub_u32 s36, s2, {NC}')
    e('s_mul_i32 s36, s36, 768')
    e('v_cmp_gt_u32 vcc, 768, v0')
    e('s_and_saveexec_b64 s[40:41], vcc')
    e('s_cbranch_execz K1_ZBAR')
    e('v_add_u32 v1, s36, v0')
    e('v_lshrrev_b32 v2, 6, v1')
    e('v_and_b32 v3, 3, v2')
    e('v_lshrrev_b32 v4, 2, v2')
    e('v_and_b32 v5, 15, v1')
    e('v_bfe_u32 v6, v1, 4, 2')
    e('v_lshrrev_b32 v7, 2, v5')
    e('v_lshlrev_b32 v7, 4, v7')
    e('v_lshl_add_u32 v7, v3, 2, v7')
    e('v_and_b32 v8, 3, v5')
    e('v_add_u32 v7, v7, v8')
    e('v_readfirstlane_b32 s38, v4')
    e('v_lshlrev_b32 v9, 12, v4')
    e('s_waitcnt lgkmcnt(0)')
    srd(16, 10, 11, 3 * 64 * 64 * 2)
    srd(28, 12, 13, WS_SIZE)
    e(f's_mov_b32 s37, {hex(WS_WT)}')
    e('s_lshr_b32 s38, s38, 1')
    e('s_cmp_eq_u32 s38, 1')
    e('s_cbranch_scc1 K2_WP')
    e('v_lshl_add_u32 v9, v6, 10, v9')
    e('v_lshl_add_u32 v9, v7, 1, v9')
    for j in range(8):
        e(f'buffer_load_ushort v{10+j}, v9, s[16:19], 0 offen offset:{j*128}')
    e('s_branch K2_WQ')
    lab('K2_WP')
    e('v_lshl_add_u32 v9, v6, 7, v9')
    e('v_lshl_add_u32 v9, v7, 1, v9')
    for j in range(8):
        e(f'buffer_load_ushort v{10+j}, v9, s[16:19], 0 offen offset:{(j&3)*1024 + (j>>2)*512}')
    lab('K2_WQ')
    e('s_waitcnt vmcnt(0)')
    for j in range(4):
        e(f'v_lshl_or_b32 v{20+j}, v{11+2*j}, 16, v{10+2*j}')
    e('v_lshlrev_b32 v1, 4, v1')
    e('buffer_store_dwordx4 v[20:23], v1, s[28:31], s37 offen')
    e('s_endpgm')
    lab('K1_ZBAR')
    e('s_mov_b64 exec, -1')
    e('v_and_b32 v1, 255, v0')
    e('v_lshlrev_b32 v1, 4, v1')
    for i in range(4):
        e(f'v_mov_b32 v{4+i}, 0')
    e('s_waitcnt lgkmcnt(0)')
    srd(28, 12, 13, WS_SIZE)
    e(f's_mov_b32 s37, {hex(WS_BAR)}')
    e('buffer_store_dwordx4 v[4:7], v1, s[28:31], s37 offen')
    for k in range(1, 4):
        e(f's_mov_b32 s37, {hex(WS_BAR+4096*k)}')
        e('buffer_store_dwordx4 v[4:7], v1, s[28:31], s37 offen')

S_NST = 74
S_PAIR = 75
def part_addrs():
    e(f'v_mad_u32_u16 v14, v{V_ROWS}, s{S_128}, v{V_J}')
    e(f'v_mad_u32_u16 v15, v{V_ROWS}, s{S_128}, v{V_J} op_sel:[1,0,0,0]')
    e('v_lshlrev_b32 v14, 1, v14')
    e('v_lshlrev_b32 v15, 1, v15')
    e(f's_lshl_b32 s{S_TMP}, s{S_ROW0}, 1')
    e(f's_add_u32 s{S_TMP}, s{S_TMP}, {hex(WS_PART)}')

def kd(name, vgpr, sgpr):
    out.append('.p2align 6')
    out.append(f'.amdhsa_kernel {name}')
    out.append(f'  .amdhsa_next_free_vgpr {vgpr}')
    out.append(f'  .amdhsa_next_free_sgpr {sgpr}')
    out.append(f'  .amdhsa_accum_offset {(vgpr+3)//4*4}')
    out.append('  .amdhsa_group_segment_fixed_size 0')
    out.append('  .amdhsa_kernarg_size 64')
    out.append('  .amdhsa_user_sgpr_count 2')
    out.append('  .amdhsa_user_sgpr_kernarg_segment_ptr 1')
    out.append('  .amdhsa_system_sgpr_workgroup_id_x 1')
    out.append('.end_amdhsa_kernel')

hdr = open('standalone__spectral_conv_chebnet__graph.s.ref').read().split('\n')
for l in hdr:
    if l.startswith(';') and '@launch' not in l and 'Override launch' not in l and 'grid=ceil' not in l:
        out.append(l)
    elif not l.startswith(';'):
        break
G1 = NC + 2 + (8 if CPF else 0)
out.append(f'; @launch kernel=part_kernel grid=({G1},1,1) block=(1024,1,1) lds={4096+32768}')
out.append(f'; @launch kernel=main_kernel grid=({NB},1,1) block=({NT},1,1) lds={L_END3}')
out.append('.amdgcn_target "amdgcn-amd-amdhsa--gfx950"')
out.append('.text')
gen_k1()
gen_main()
out.append('.section .rodata,"a"')
kd('part_kernel', 64, 102 if (INSTR or HD) else 56)
kd('main_kernel', 128, 102 if (INSTR or HD) else 88)
dst = sys.argv[1] if len(sys.argv) > 1 else 'standalone__spectral_conv_chebnet__graph.s'
open(dst, 'w').write('\n'.join(out) + '\n')
print('wrote', dst, len(out), 'lines')
```

```python
import sys

N = 50000; E = 800000
R = 200
NB = 250
CH = 4096
NC = 196
S = 48
NIT = S // 8
NW = 13
NT = NW * 64

WS_ENT = 0x0000000
WS_SEG = 0x0800000
WS_WT  = 0x0900000
WS_BAR = 0x0A00000
WS_CSR = 0x1000000
CSR_STRIDE = 0x10000
WS_T1  = 0x2000000
WS_PART = 0x3000000
WS_SIZE = 268435456

L_CNT = 0
L_OFF = 2048
L_MAX = 4096
L_DESC = 4112
L_SYNC = 5792
L_H2 = 5888
L_JUNK = 6912
L_SORT = 7168
RA = 96
SORT_BYTES = NT * 16 * 4
L_DUMMY = L_SORT + SORT_BYTES - 16
L_END2 = L_SORT + SORT_BYTES
L_W = L_END2
L_ROWS = L_W + 24576
ROW_STRIDE = 272
L_END3 = L_ROWS + 208 * ROW_STRIDE
HALF = 25000

import os
INSTR = int(os.environ.get('INSTR', '0'))
PF2 = int(os.environ.get('PF2', '32'))
PF3 = int(os.environ.get('PF3', '24'))
PFB2 = int(os.environ.get('PFB2', '0'))
PFB3 = int(os.environ.get('PFB3', '0'))
PFBW = int(os.environ.get('PFBW', '0'))
BAL = int(os.environ.get('BAL', '1'))
XP = os.environ.get('XP', '')
PF1 = int(os.environ.get('PF1', '0'))
PF2BASE = 24 * 16 * PF1
RENUM = int(os.environ.get('RENUM', '1'))
WS_DBG = 0x8000000
S_ST = 40
NSTAMP = 12
SPIN_MAX = int(os.environ.get('SPIN_MAX', '2000000'))
SCAL = int(os.environ.get('SCAL', '1'))
CPF = int(os.environ.get('CPF', '1'))
HD = int(os.environ.get('HD', '0'))
def hd(slot, base, neg=False, tmp=86):
    if not HD: return
    global _hdn
    _hdn += 1
    e('s_cmp_eq_u32 s90, 0')
    e(f's_cbranch_scc1 HDSKIP{_hdn}')
    e(f's_memrealtime s[{tmp}:{tmp+1}]')
    e('s_waitcnt lgkmcnt(0)')
    if neg: e(f's_not_b32 s{tmp}, s{tmp}')
    e(f's_atomic_umax s{tmp}, s[{base}:{base+1}], {slot*4}')
    lab(f'HDSKIP{_hdn}')
_hdn = 0
FLAGV = int(os.environ.get('FLAGV', '1'))
SELFPF = int(os.environ.get('SELFPF', '1'))
P1S0 = int(os.environ.get('P1S0', '3')); P1S1 = int(os.environ.get('P1S1', '2')); P2S0 = int(os.environ.get('P2S0', '1')); P2S1 = int(os.environ.get('P2S1', '0'))
P0B = int(os.environ.get('P0B', '3'))
P1A = int(os.environ.get('P1A', '2')); P1B = int(os.environ.get('P1B', '1'))
P2PRIO = int(os.environ.get('P2PRIO', '1'))
NREP = int(os.environ.get('NREP', '16'))
SLP = int(os.environ.get('SLP', '2'))
STMAP = {0: 86, 1: 88, 2: 90, 4: 92, 7: 94, 8: 96, 9: 98, 10: 100, 11: 14}
def stamp(i, real=False):
    if INSTR and i in STMAP:
        r = STMAP[i]
        e(f's_memrealtime s[{r}:{r+1}]' if real else f's_memtime s[{r}:{r+1}]')
def dump_stamps(kidx, ws_srd, wave_sgpr_from_v0=True):
    if not INSTR: return
    e('s_waitcnt vmcnt(0) lgkmcnt(0)')
    stamp(NSTAMP-2); stamp(NSTAMP-1, True)
    e('s_waitcnt lgkmcnt(0)')
    e('s_mov_b64 exec, -1')
    e('v_lshrrev_b32 v1, 6, v0')
    e('s_lshl_b32 s70, s2, 4')
    e('v_add_u32 v1, s70, v1')
    e('v_lshlrev_b32 v1, 7, v1')
    e(f's_mov_b32 s70, {hex(WS_DBG + kidx*0x100000)}')
    e('s_mov_b64 exec, 1')
    for i in range(NSTAMP):
        if i not in STMAP: continue
        e(f'v_mov_b32 v2, s{STMAP[i]}')
        e(f'v_mov_b32 v3, s{STMAP[i]+1}')
        e(f'buffer_store_dwordx2 v[2:3], v1, s[{ws_srd}:{ws_srd+3}], s70 offen offset:{8*i}')
        e('s_nop 1')

out = []
def e(s=''):
    out.append('    ' + s if s and not s.endswith(':') else s)
def lab(s):
    out.append(s + ':')

def srd(d, lo, hi, nbytes, add=0):
    if add:
        e(f's_add_u32 s{d}, s{lo}, {hex(add)}')
        e(f's_addc_u32 s{d+1}, s{hi}, 0')
    else:
        e(f's_mov_b32 s{d}, s{lo}')
        e(f's_mov_b32 s{d+1}, s{hi}')
    e(f's_mov_b32 s{d+2}, {hex(nbytes)}')
    e(f's_mov_b32 s{d+3}, 0x00020000')

def wave_scan(v, op='v_add_u32'):
    for sh in (1, 2, 4, 8):
        e('s_nop 1')
        e(f'{op}_dpp v{v}, v{v}, v{v} row_shr:{sh} row_mask:0xf bank_mask:0xf bound_ctrl:0')
    e('s_nop 1')
    e(f'{op}_dpp v{v}, v{v}, v{v} row_bcast:15 row_mask:0xa bank_mask:0xf')
    e('s_nop 1')
    e(f'{op}_dpp v{v}, v{v}, v{v} row_bcast:31 row_mask:0xc bank_mask:0xf')

def kernel_head(name):
    out.append(f'.globl {name}')
    out.append('.p2align 8')
    out.append(f'.type {name},@function')
    lab(name)

def gen_k1():
    kernel_head('part_kernel')
    e(f's_cmp_ge_u32 s2, {NC}')
    e('s_cbranch_scc1 K1_XTRA')
    stamp(0, True); stamp(1)
    e('s_load_dwordx4 s[4:7], s[0:1], 8')
    e('s_load_dwordx2 s[8:9], s[0:1], 24')
    e('s_load_dwordx2 s[12:13], s[0:1], 56')
    if HD:
        e('s_load_dwordx2 s[88:89], s[0:1], 48')
        e('v_readfirstlane_b32 s90, v0')
        e('s_and_b32 s91, s2, 3')
        e('s_or_b32 s90, s90, s91')
        e('s_cmp_eq_u32 s90, 0')
        e('s_cselect_b32 s90, 1, 0')
        e('s_waitcnt lgkmcnt(0)')
        e('s_add_u32 s88, s88, 512')
        e('s_addc_u32 s89, s89, 0')
        hd(0, 88, True); hd(1, 88)
    if SELFPF:
        e('s_getpc_b64 s[46:47]')
        e('v_and_b32 v62, 31, v0')
        e('v_lshlrev_b32 v62, 6, v62')
        e('global_load_dword v63, v62, s[46:47]')
    e('v_lshlrev_b32 v1, 2, v0')
    e('s_lshl_b32 s14, s2, 12')
    e('v_add_u32 v3, s14, v1')
    e(f's_mov_b32 s15, {E}')
    e('v_cmp_gt_u32 vcc, s15, v3')
    e('v_lshlrev_b32 v13, 2, v3')
    e('v_lshlrev_b32 v12, 1, v3')
    e('v_mov_b32 v2, 0')
    e('ds_write_b32 v1, v2')
    e('s_mov_b64 s[32:33], vcc')
    e('s_and_saveexec_b64 s[38:39], vcc')
    e('s_waitcnt lgkmcnt(0)')
    stamp(2)
    e('s_cbranch_execz K1_NOLD')
    e('global_load_dwordx4 v[4:7], v13, s[6:7]')
    e('global_load_dwordx4 v[8:11], v13, s[4:5]')
    e('global_load_dwordx2 v[14:15], v12, s[8:9]')
    lab('K1_NOLD')
    srd(28, 12, 13, WS_SIZE)
    e('s_mov_b32 s34, 83887')
    e(f's_mov_b32 s35, {-R & 0xffffffff:#x}')
    e('s_mov_b32 s36, 0xffff0000')
    e('v_mov_b32 v2, 1')
    e('s_barrier')
    e('s_waitcnt vmcnt(2)')
    stamp(3)
    for i in range(4):
        e(f'v_mul_u32_u24 v{16+i}, s34, v{4+i}')
        e(f'v_lshrrev_b32 v{16+i}, 24, v{16+i}')
        e(f'v_mad_i32_i24 v{25+2*i}, v{16+i}, s35, v{4+i}')
        if RENUM:
            e(f'v_and_b32 v3, 7, v{16+i}')
            e(f'v_lshrrev_b32 v{16+i}, 3, v{16+i}')
            e(f'v_lshlrev_b32 v{16+i}, 2, v{16+i}')
            e(f'v_lshl_or_b32 v{16+i}, v3, 7, v{16+i}')
        else:
            e(f'v_lshlrev_b32 v{16+i}, 2, v{16+i}')
        e(f'ds_add_rtn_u32 v{20+i}, v{16+i}, v2')
    e('s_waitcnt vmcnt(0)')
    e(f's_movk_i32 s37, {RA}')
    for i in range(4):
        e(f'v_mul_u32_u24 v3, s34, v{8+i}')
        e('v_lshrrev_b32 v3, 24, v3')
        e(f'v_mad_i32_i24 v3, v3, s35, v{8+i}')
        e(f'v_cmp_le_u32 s[{48+2*i}:{49+2*i}], s37, v3')
    e('v_lshl_or_b32 v24, v14, 16, v8')
    e('v_and_or_b32 v26, v14, s36, v9')
    e('v_lshl_or_b32 v28, v15, 16, v10')
    e('v_and_or_b32 v30, v15, s36, v11')
    for i in range(4):
        e(f'v_addc_co_u32 v{25+2*i}, vcc, v{25+2*i}, v{25+2*i}, s[{48+2*i}:{49+2*i}]')
    e('s_mov_b64 exec, -1')
    if PF1:
        e('s_lshr_b32 s37, s2, 3')
        e('s_min_u32 s37, s37, 23')
        e(f's_mul_i32 s37, s37, {16*PF1*128}')
        e('v_lshrrev_b32 v60, 6, v0')
        e(f'v_mul_u32_u24 v60, {PF1*128}, v60')
        e('v_and_b32 v61, 63, v0')
        e('v_lshl_add_u32 v60, v61, 7, v60')
        e('v_add_u32 v60, s37, v60')
        m = (1 << PF1) - 1
        e(f's_mov_b32 exec_lo, {hex(m & 0xffffffff)}')
        e(f's_mov_b32 exec_hi, {hex(m >> 32)}')
        e('buffer_load_dword v61, v60, s[40:43], 0 offen')
        e('s_mov_b64 exec, -1')
    e('s_waitcnt lgkmcnt(0)')
    e('s_barrier')
    stamp(4)
    hd(2, 88)
    e('v_cmp_gt_u32 vcc, 64, v0')
    e('s_cbranch_vccz K1_SCAN_DONE')
    e('v_lshlrev_b32 v32, 4, v0')
    e('ds_read_b128 v[36:39], v32')
    e('s_waitcnt lgkmcnt(0)')
    e('v_add_u32 v41, v36, v37')
    e('v_add_u32 v42, v41, v38')
    e('v_add_u32 v43, v42, v39')
    e('v_mov_b32 v44, v43')
    wave_scan(44)
    e('v_sub_u32 v48, v44, v43')
    e('v_add_u32 v49, v48, v36')
    e('v_add_u32 v50, v48, v41')
    e('v_add_u32 v51, v48, v42')
    e('ds_write_b128 v32, v[48:51] offset:1024')
    for i in range(4):
        e(f'v_lshl_or_b32 v{52+i}, v{36+i}, 16, v{48+i}')
    e('v_lshlrev_b32 v33, 12, v0')
    e('s_lshl_b32 s37, s2, 2')
    e(f's_add_u32 s37, s37, {hex(WS_SEG)}')
    for i in range(4):
        if 'noT' not in XP:
            e(f'buffer_store_dword v{52+i}, v33, s[28:31], s37 offen offset:{i*1024}' + (' sc1' if 'Tplain' not in XP else ''))
    e('s_waitcnt lgkmcnt(0)')
    lab('K1_SCAN_DONE')
    e('s_barrier')
    stamp(5)
    e('s_mov_b64 exec, s[32:33]')
    for i in range(4):
        e(f'ds_read_b32 v{32+i}, v{16+i} offset:1024')
    for i in range(4):
        e(f's_waitcnt lgkmcnt({3-i})')
        e(f'v_add_lshl_u32 v{32+i}, v{32+i}, v{20+i}, 3')
        e(f'ds_write_b64 v{32+i}, v[{24+2*i}:{25+2*i}] offset:4096')
    e('s_mov_b64 exec, -1')
    e('s_waitcnt lgkmcnt(0)')
    e('s_barrier')
    stamp(6)
    e('v_lshlrev_b32 v36, 4, v0')
    e('ds_read_b128 v[40:43], v36 offset:4096')
    e('ds_read_b128 v[44:47], v36 offset:20480')
    e('s_lshl_b32 s37, s2, 15')
    e('s_add_u32 s38, s37, 16384')
    e('s_waitcnt lgkmcnt(1)')
    pol = '' if 'Eplain' in XP else ' sc1'
    if 'noE' not in XP:
        e('buffer_store_dwordx4 v[40:43], v36, s[28:31], s37 offen' + pol)
    e('s_waitcnt lgkmcnt(0)')
    if 'noE' not in XP:
        e('buffer_store_dwordx4 v[44:47], v36, s[28:31], s38 offen' + pol)
    stamp(7)
    if HD:
        e('s_waitcnt vmcnt(0)')
        hd(3, 88)
    dump_stamps(0, 28)
    e('s_endpgm')
    lab('K1_XTRA')
    gen_wprep()
    e('s_endpgm')
    lab('K1_CPF')
    if CPF:
        e(f's_cmp_gt_u32 s2, {NC+9}')
        e('s_cbranch_scc1 K1_END')
        e('s_getpc_b64 s[4:5]')
        lab('K1_PCREF')
        e('s_add_u32 s4, s4, main_kernel-K1_PCREF')
        e('s_addc_u32 s5, s5, 0')
        e('v_lshlrev_b32 v1, 6, v0')
        e('s_mov_b32 s6, M_CODE_END-main_kernel')
        e('v_cmp_gt_u32 vcc, s6, v1')
        e('s_and_saveexec_b64 s[8:9], vcc')
        e('s_cbranch_execz K1_END')
        e('global_load_dword v2, v1, s[4:5]')
        e('s_waitcnt vmcnt(0)')
    lab('K1_END')
    e('s_endpgm')

X = [64, 96]
EN = [48, 56]
ACC = [32, 40]
ACCO = 16
V_J = 1; V_PA = 2; V_EA = 3; V_PB = 4; V_EB = 5; V_TA = 6; V_TB = 7
V_W = 8
V_ROWS = 12
S_TAB = 16; S_WS = 20; S_OUT = 24; S_X = 28
S_128 = 32; S_HI = 33; S_ROUND = 34; S_NR = 35
S_MASKB = 36
S_T = 38
S_M = 40
S_CSR = 64; S_TMP = 65; S_TMP2 = 66; S_WAVE = 67; S_ROW0 = 68; S_TOT = 69; S_DUM = 70; S_TILE = 71
IMG = NT * 16

def issue(p, half):
    x = X[p] + 16 * half
    en = EN[p] + 4 * half
    for u in range(4):
        e(f'v_mad_u32_u16 v{x+4*u}, v{en+u}, s{S_128}, v{V_J}')
    for u in range(4):
        e(f'buffer_load_dwordx4 v[{x+4*u}:{x+4*u+3}], v{x+4*u}, s[{S_TAB}:{S_TAB+3}], 0 offen sc1')

V_SEL0 = 7; V_SEL1 = 13
def consume(p, half):
    x = X[p] + 16 * half
    en = EN[p] + 4 * half
    acc = ACC[half]
    def perm(bs, u):
        e(f'v_perm_b32 v{V_W+2*bs}, v{en+u}, v{en+u}, v{V_SEL0}')
        e(f'v_perm_b32 v{V_W+2*bs+1}, v{en+u}, v{en+u}, v{V_SEL1}')
    def mm(bs, u):
        e(f'v_mfma_f32_4x4x4_16b_bf16 v[{acc}:{acc+3}], v[{x+4*u}:{x+4*u+1}], v[{V_W+2*bs}:{V_W+2*bs+1}], v[{acc}:{acc+3}]')
        e(f'v_mfma_f32_4x4x4_16b_bf16 v[{acc+4}:{acc+7}], v[{x+4*u+2}:{x+4*u+3}], v[{V_W+2*bs}:{V_W+2*bs+1}], v[{acc+4}:{acc+7}]')
    perm(0, 0); perm(1, 1)
    mm(0, 0)
    perm(0, 2)
    mm(1, 1)
    perm(1, 3)
    mm(0, 2)
    e('s_nop 0')
    mm(1, 3)

def next_entries(p, half):
    P = V_PA if half == 0 else V_PB
    EE = V_EA if half == 0 else V_EB
    T = V_TA
    en = EN[p] + 4 * half
    m = 'vcc' if half == 0 else f's[{S_MASKB}:{S_MASKB+1}]'
    e(f'v_cmp_lt_u32 {m}, v{P}, v{EE}')
    e(f'v_mov_b32 v{T}, s{S_DUM}')
    e('s_nop 0')
    e(f'v_cndmask_b32 v{T}, v{T}, v{P}, {m}')
    e(f'v_add_u32 v{P}, s{S_INC}, v{P}')
    e(f'ds_read_b128 v[{en}:{en+3}], v{T}')

def masked_loop(pf, tag, body, first_check=2):
    for i in range(NIT):
        e(f's_mov_b64 exec, s[{S_M+4*i}:{S_M+4*i+1}]')
        if i >= first_check:
            e(f's_cbranch_execz {pf}_{tag}_X')
        body(i, 0)
        if body.__code__.co_argcount == 2 and getattr(body, 'two', True):
            e(f's_mov_b64 exec, s[{S_M+4*i+2}:{S_M+4*i+3}]')
            body(i, 1)
    lab(f'{pf}_{tag}_X')
    e('s_mov_b64 exec, -1')

def gemm_steps(ks_list, vB, vA, tB, tA, part_off):
    for ks in ks_list:
        e(f'ds_read_b128 v[{tB}:{tB+3}], v{vB} offset:{(ks&1)*64 + part_off(ks)}')
        for mt in range(3):
            e(f'ds_read_b128 v[{tA[mt]}:{tA[mt]+3}], v{vA} offset:{(ks*4+mt)*1024}')
        e('s_waitcnt lgkmcnt(2)')
        e(f'v_mfma_f32_16x16x32_bf16 v[{ACCO}:{ACCO+3}], v[{tA[0]}:{tA[0]+3}], v[{tB}:{tB+3}], v[{ACCO}:{ACCO+3}]')
        e(f'ds_read_b128 v[{tA[0]}:{tA[0]+3}], v{vA} offset:{(ks*4+3)*1024}')
        e('s_waitcnt lgkmcnt(2)')
        e(f'v_mfma_f32_16x16x32_bf16 v[{ACCO+4}:{ACCO+7}], v[{tA[1]}:{tA[1]+3}], v[{tB}:{tB+3}], v[{ACCO+4}:{ACCO+7}]')
        e('s_waitcnt lgkmcnt(1)')
        e(f'v_mfma_f32_16x16x32_bf16 v[{ACCO+8}:{ACCO+11}], v[{tA[2]}:{tA[2]+3}], v[{tB}:{tB+3}], v[{ACCO+8}:{ACCO+11}]')
        e('s_waitcnt lgkmcnt(0)')
        e(f'v_mfma_f32_16x16x32_bf16 v[{ACCO+12}:{ACCO+15}], v[{tA[0]}:{tA[0]+3}], v[{tB}:{tB+3}], v[{ACCO+12}:{ACCO+15}]')

def frag_addrs(vb, va, vrow):
    e(f'v_and_b32 v{vrow}, 15, v0')
    e(f's_lshl_b32 s{S_TMP}, s{S_WAVE}, 7')
    e(f's_add_u32 s{S_TMP}, s{S_TMP}, {L_DESC}')
    e(f'v_lshl_add_u32 v{vrow}, v{vrow}, 3, s{S_TMP}')
    e(f'ds_read_b32 v{vrow}, v{vrow}')
    e(f'v_bfe_u32 v{va}, v0, 4, 2')
    e(f'v_lshlrev_b32 v{vb}, 4, v{va}')
    e(f'v_add_u32 v{vb}, {L_ROWS}, v{vb}')
    e(f'v_and_b32 v{va}, 63, v0')
    e(f'v_lshlrev_b32 v{va}, 4, v{va}')
    e(f'v_add_u32 v{va}, {L_W}, v{va}')
    e('s_waitcnt lgkmcnt(0)')
    e(f'v_and_b32 v{vrow}, 255, v{vrow}')
    e(f'v_mad_u32_u24 v{vb}, v{vrow}, s{S_RS}, v{vb}')

def prefetch(lanes, base_line, vdst, vtmp):
    if lanes == 0: return
    e(f's_lshr_b32 s{S_TMP}, s2, 3')
    e(f's_min_u32 s{S_TMP}, s{S_TMP}, 30')
    e(f's_mul_i32 s{S_TMP}, s{S_TMP}, {NW}')
    e(f's_add_u32 s{S_TMP}, s{S_TMP}, s{S_WAVE}')
    e(f's_mul_i32 s{S_TMP}, s{S_TMP}, {lanes}')
    e(f's_add_u32 s{S_TMP}, s{S_TMP}, {base_line}')
    e(f'v_and_b32 v{vtmp}, 63, v0')
    e(f'v_add_u32 v{vtmp}, s{S_TMP}, v{vtmp}')
    e(f's_mov_b32 s{S_TMP}, 43691')
    e(f'v_mul_u32_u24 v{vdst}, s{S_TMP}, v{vtmp}')
    e(f'v_lshrrev_b32 v{vdst}, 22, v{vdst}')
    e(f's_movk_i32 s{S_TMP}, {R-RA}')
    e(f'v_mad_u32_u24 v{vtmp}, v{vdst}, s{S_TMP}, v{vtmp}')
    e(f'v_lshlrev_b32 v{vtmp}, 7, v{vtmp}')
    if lanes < 64:
        m = (1 << lanes) - 1
        e(f's_mov_b32 exec_lo, {hex(m & 0xffffffff)}')
        e(f's_mov_b32 exec_hi, {hex(m >> 32)}')
    e(f's_mov_b32 m0, {L_JUNK}')
    e('s_nop 0')
    e(f'buffer_load_dword v{vtmp}, s[{S_TAB}:{S_TAB+3}], 0 offen lds')
    e('s_mov_b64 exec, -1')

S_RS = S_TILE
S_PH = 72
S_FIRST = 73

S_T1 = 76
S_DBG = 80
S_PASS = 84
S_SPIN = 85
S_ONE = 80
S_POST = 81
S_RET = 82
S_NOUT = 83
S_INC = 69

def tile_regs(vw, vb, va):
    e(f's_mul_i32 s{S_TMP}, s{S_WAVE}, {16*ROW_STRIDE}')
    e(f's_add_u32 s{S_TMP}, s{S_TMP}, {L_ROWS}')
    e(f'v_bfe_u32 v{vw}, v0, 3, 3')
    e(f'v_mad_u32_u24 v{vw}, v{vw}, s{S_RS}, v{V_J}')
    e(f'v_add_u32 v{vw}, s{S_TMP}, v{vw}')
    e(f'v_and_b32 v{va}, 15, v0')
    e(f'v_bfe_u32 v{vb}, v0, 4, 2')
    e(f'v_lshlrev_b32 v{vb}, 4, v{vb}')
    e(f'v_mad_u32_u24 v{vb}, v{va}, s{S_RS}, v{vb}')
    e(f'v_add_u32 v{vb}, s{S_TMP}, v{vb}')
    e(f'v_and_b32 v{va}, 63, v0')
    e(f'v_lshlrev_b32 v{va}, 4, v{va}')
    e(f'v_add_u32 v{va}, {L_W}, v{va}')

def mfma_run(f0, f1, bfrag, pend, va):
    pend = list(pend)
    for f in range(f0, f1):
        ks, mt = f // 4, f % 4
        need = ['A%d' % f, 'B%d' % ks]
        idxs = [pend.index(n) for n in need if n in pend]
        if idxs:
            idx = max(idxs)
            rem = len(pend) - 1 - idx
            e(f's_waitcnt lgkmcnt({min(rem, 15)})')
            pend = pend[idx+1:]
        sl = 96 + 4*(f % 8)
        bq = bfrag(ks)
        e(f'v_mfma_f32_16x16x32_bf16 v[{ACCO+4*mt}:{ACCO+4*mt+3}], v[{sl}:{sl+3}], v[{bq}:{bq+3}], v[{ACCO+4*mt}:{ACCO+4*mt+3}]')
        if f + 8 < f1:
            e(f'ds_read_b128 v[{sl}:{sl+3}], v{va} offset:{(f+8)*1024}')
            pend.append('A%d' % (f+8))

def gen_main():
    pf = 'M'
    kernel_head('main_kernel')
    e(f's_cmp_ge_u32 s2, {NB}')
    e(f's_cbranch_scc1 {pf}_END2')
    stamp(0, True); stamp(1)
    e('s_load_dwordx2 s[4:5], s[0:1], 0')
    e('s_load_dwordx4 s[8:11], s[0:1], 40')
    e('s_load_dwordx2 s[12:13], s[0:1], 56')
    e('v_lshrrev_b32 v14, 6, v0')
    e('v_and_b32 v15, 7, v0')
    e(f'v_readfirstlane_b32 s{S_WAVE}, v14')
    e(f'v_lshlrev_b32 v{V_J}, 4, v15')
    e(f's_movk_i32 s{S_128}, 128')
    e(f's_mov_b32 s{S_HI}, 0xffff0000')
    e(f's_mov_b32 s{S_ROUND}, 0')
    e(f's_mov_b32 s{S_PASS}, 0')
    e(f's_mov_b32 s{S_POST}, 0')
    e(f's_mov_b32 s{S_DUM}, {L_DUMMY}')
    e(f's_mul_i32 s{S_ROW0}, s2, {R*128}')
    e(f's_movk_i32 s{S_RS}, {ROW_STRIDE}')
    tbl = {1: [3, 0, 1, 2, 4, 7, 6, 5, 11, 8, 9, 10, 12], 2: [9, 0, 1, 2, 10, 5, 4, 3, 11, 6, 7, 8, 12], 0: list(range(13))}[BAL]
    t64 = sum(v << (4*i) for i, v in enumerate(tbl))
    e(f's_mov_b32 s{S_T}, {hex(t64 & 0xffffffff)}')
    e(f's_mov_b32 s{S_T+1}, {hex(t64 >> 32)}')
    e(f's_lshl_b32 s{S_TMP}, s{S_WAVE}, 2')
    e(f's_lshr_b64 s[{S_T}:{S_T+1}], s[{S_T}:{S_T+1}], s{S_TMP}')
    e(f's_and_b32 s{S_PAIR}, s{S_T}, 15')
    e(f's_lshl_b32 s{S_PAIR}, s{S_PAIR}, 6')
    e(f's_add_u32 s{S_PAIR}, s{S_PAIR}, {L_DESC}')
    e('v_mov_b32 v14, 0')
    e(f'v_mov_b32 v15, {L_MAX}')
    e('ds_write_b32 v15, v14')
    e('v_and_b32 v15, 7, v0')
    e('v_lshlrev_b32 v15, 2, v15')
    e(f'ds_write_b32 v15, v14 offset:{L_SYNC}')
    e('s_waitcnt lgkmcnt(0)')
    stamp(2)
    if HD:
        e('s_mov_b32 s88, s10')
        e('s_mov_b32 s89, s11')
        e(f's_and_b32 s91, s2, 3')
        e(f's_cmp_eq_u32 s{S_WAVE}, 9')
        e('s_cselect_b32 s90, 1, 0')
        e('s_cmp_eq_u32 s91, 0')
        e('s_cselect_b32 s90, s90, 0')
        hd(4, 88, True); hd(5, 88)
    srd(S_WS, 12, 13, WS_SIZE)

    lab(f'{pf}_ROUND')
    e('v_lshrrev_b32 v100, 2, v0')
    e('v_lshlrev_b32 v14, 2, v100')
    e(f's_and_b32 s{S_TMP}, s2, 7')
    e(f's_lshl_b32 s{S_TMP}, s{S_TMP}, 5')
    e(f's_lshr_b32 s{S_TMP2}, s2, 3')
    e(f's_add_u32 s{S_TMP}, s{S_TMP}, s{S_TMP2}')
    e(f's_lshl_b32 s{S_TMP}, s{S_TMP}, 10')
    e(f's_add_u32 s{S_TMP}, s{S_TMP}, {hex(WS_SEG)}')
    e('v_mov_b32 v103, 0')
    e(f'v_cmp_gt_u32 vcc, {NC*4}, v0')
    e(f's_and_saveexec_b64 s[{S_T}:{S_T+1}], vcc')
    e(f'buffer_load_dword v103, v14, s[{S_WS}:{S_WS+3}], s{S_TMP} offen')
    e(f's_mov_b64 exec, s[{S_T}:{S_T+1}]')
    e(f's_or_b32 s{S_TMP}, s{S_PASS}, s{S_ROUND}')
    e(f's_cmp_lg_u32 s{S_TMP}, 0')
    e(f's_cbranch_scc1 {pf}_NOSRD')
    srd(S_TAB, 4, 5, N * 128)
    srd(S_X, 4, 5, N * 128)
    srd(S_T1, 12, 13, N * 128, WS_T1)
    srd(S_OUT, 8, 9, N * 128)
    e('v_lshlrev_b32 v14, 4, v0')
    e(f's_mov_b32 s{S_TMP}, {hex(WS_WT)}')
    e(f'buffer_load_dwordx4 v[16:19], v14, s[{S_WS}:{S_WS+3}], s{S_TMP} offen')
    e(f's_add_u32 s{S_TMP}, s{S_TMP}, {IMG}')
    e(f'buffer_load_dwordx4 v[20:23], v14, s[{S_WS}:{S_WS+3}], s{S_TMP} offen')
    lab(f'{pf}_NOSRD')
    e('v_lshlrev_b32 v14, 2, v0')
    e('v_mov_b32 v15, 0')
    e('v_cmp_gt_u32 vcc, 512, v0')
    e(f's_and_saveexec_b64 s[{S_T}:{S_T+1}], vcc')
    e('ds_write_b32 v14, v15')
    e(f's_mov_b64 exec, s[{S_T}:{S_T+1}]')
    for i in range(4):
        e(f'v_mov_b32 v{88+i}, 0xffff')
    e('v_lshlrev_b32 v14, 4, v0')
    for i in range(4):
        e(f'ds_write_b128 v14, v[88:91] offset:{L_SORT + i*IMG}')
    e('v_and_b32 v102, 3, v0')
    e('v_lshlrev_b32 v102, 1, v102')
    e(f's_mul_i32 s{S_TMP}, s{S_ROUND}, {S}')
    e(f'v_add_u32 v102, s{S_TMP}, v102')
    e('v_mov_b32 v104, 1')
    e('s_waitcnt vmcnt(2)')
    e(f's_or_b32 s{S_TMP}, s{S_PASS}, s{S_ROUND}')
    e(f's_cmp_eq_u32 s{S_TMP}, 0')
    e(f's_cbranch_scc1 {pf}_DW')
    e('s_waitcnt vmcnt(0)')
    lab(f'{pf}_DW')
    stamp(3)
    e('v_and_b32 v101, 0xffff, v103')
    e('v_lshrrev_b32 v103, 16, v103')
    e('v_add_u32 v101, v101, v102')
    e('v_lshlrev_b32 v101, 3, v101')
    e('v_lshl_add_u32 v101, v100, 15, v101')
    e('v_sub_u32 v105, v103, v102')
    for i in range(NIT):
        e(f'v_cmp_lt_i32 s[{S_M+4*i}:{S_M+4*i+1}], {8*i}, v105')
        e(f'v_cmp_lt_i32 s[{S_M+4*i+2}:{S_M+4*i+3}], {8*i+1}, v105')
    def b_load(i, w):
        e(f'buffer_load_dwordx4 v[{64+4*i}:{67+4*i}], v101, s[{S_WS}:{S_WS+3}], 0 offen offset:{64*i}')
    b_load.two = False
    masked_loop(pf, 'LD', b_load, 0)
    e('s_waitcnt lgkmcnt(0)')
    e('s_barrier')
    e(f'v_cmp_lt_u32 vcc, {S}, v103')
    e(f's_cbranch_vccz {pf}_NOMAX')
    e(f'v_mov_b32 v15, {L_MAX}')
    e('ds_max_u32 v15, v103')
    lab(f'{pf}_NOMAX')
    e('s_waitcnt vmcnt(0)')
    e(f's_or_b32 s{S_TMP}, s{S_PASS}, s{S_ROUND}')
    e(f's_cmp_lg_u32 s{S_TMP}, 0')
    e(f's_cbranch_scc1 {pf}_NOW')
    prefetch(PF2, PF2BASE, 127, 126)
    e('v_lshlrev_b32 v14, 4, v0')
    e(f'v_add_u32 v14, {L_W}, v14')
    e('ds_write_b128 v14, v[16:19]')
    e(f'v_cmp_gt_u32 vcc, {1536-NT}, v0')
    e(f's_and_saveexec_b64 s[{S_T}:{S_T+1}], vcc')
    e(f'ds_write_b128 v14, v[20:23] offset:{IMG}')
    e(f's_mov_b64 exec, s[{S_T}:{S_T+1}]')
    lab(f'{pf}_NOW')
    def b_atom(i, w):
        r = 65 + 4*i + 2*w
        e(f'v_lshlrev_b32 v{r}, 2, v{r}')
        e(f'ds_add_rtn_u32 v{88+2*i+w}, v{r}, v104')
    masked_loop(pf, 'AT', b_atom)
    e('s_waitcnt lgkmcnt(0)')
    e('s_barrier')
    stamp(5)
    e(f's_cmp_lg_u32 s{S_WAVE}, {NW-1}')
    e(f's_cbranch_scc1 {pf}_SCAN_DONE')
    e('v_and_b32 v106, 63, v0')
    e('v_lshlrev_b32 v14, 5, v106')
    e('ds_read_b128 v[108:111], v14')
    e('ds_read_b128 v[112:115], v14 offset:16')
    e('v_mov_b32 v60, 0')
    e('v_mov_b32 v61, 0')
    e('v_lshlrev_b32 v107, 3, v106')
    e(f'ds_write_b64 v107, v[60:61] offset:{L_H2}')
    e('s_waitcnt lgkmcnt(1)')
    for i in range(8):
        e(f'v_add_u32 v{108+i}, 3, v{108+i}')
        e(f'v_and_b32 v{108+i}, -4, v{108+i}')
    e('v_mov_b32 v48, 0')
    e('v_mov_b32 v49, v108')
    for i in range(2, 8):
        e(f'v_add_u32 v{48+i}, v{47+i}, v{107+i}')
    e('v_add_u32 v56, v55, v115')
    e('v_mov_b32 v57, v56')
    wave_scan(57)
    e('v_sub_u32 v58, v57, v56')
    for i in range(8):
        e(f'v_add_u32 v{48+i}, v58, v{48+i}')
    e(f'ds_write_b128 v14, v[48:51] offset:{L_OFF}')
    e(f'ds_write_b128 v14, v[52:55] offset:{L_OFF+16}')
    e('s_waitcnt lgkmcnt(0)')
    lab(f'{pf}_SCAN_DONE')
    e('s_barrier')
    stamp(6)
    def b_rd(i, w):
        r = 65 + 4*i + 2*w
        e(f'ds_read_b32 v{r}, v{r} offset:{L_OFF}')
    masked_loop(pf, 'RD', b_rd)
    e('s_waitcnt lgkmcnt(0)')
    def b_wr(i, w):
        r = 65 + 4*i + 2*w
        e(f'v_add_lshl_u32 v{r}, v{r}, v{88+2*i+w}, 2')
        e(f'ds_write_b32 v{r}, v{r-1} offset:{L_SORT}')
    masked_loop(pf, 'WR', b_wr)
    e(f's_cmp_lg_u32 s{S_WAVE}, {NW-1}')
    e(f's_cbranch_scc1 {pf}_DESC_DONE')
    e(f's_or_b32 s{S_TMP}, s{S_PASS}, s{S_ROUND}')
    e(f's_cmp_lg_u32 s{S_TMP}, 0')
    e(f's_cbranch_scc1 {pf}_DESC_REDO')
    e('v_cmp_gt_u32 vcc, 50, v106')
    e(f's_mov_b64 s[{S_T}:{S_T+1}], vcc')
    e(f'v_cmp_gt_u32 vcc, {RA//4}, v106')
    e('v_mov_b32 v126, 127')
    e('v_mov_b32 v15, 63')
    e('v_cndmask_b32 v126, v126, v15, vcc')
    e(f's_mov_b64 exec, s[{S_T}:{S_T+1}]')
    for i in range(4):
        a0 = 108 + 2*i; a1 = a0 + 1
        e(f'v_lshrrev_b32 v{a0}, 2, v{a0}')
        e(f'v_lshrrev_b32 v{a1}, 2, v{a1}')
        e(f'v_min_u32 v15, 7, v{a0}')
        e(f'v_min_u32 v59, 7, v{a1}')
        e(f'v_lshl_add_u32 v15, v15, 3, v59')
        e(f'v_sub_u32 v15, v126, v15')
        e(f'v_lshlrev_b32 v{116+i}, 2, v15')
        e(f'ds_add_rtn_u32 v{120+i}, v{116+i}, v104 offset:{L_H2}')
    e('s_mov_b64 exec, -1')
    e('s_waitcnt lgkmcnt(0)')
    e(f'ds_read_b64 v[124:125], v107 offset:{L_H2}')
    e('s_waitcnt lgkmcnt(0)')
    e('v_add_u32 v125, v124, v125')
    e('v_mov_b32 v62, v125')
    wave_scan(62)
    e('v_sub_u32 v62, v62, v125')
    e('v_cmp_lt_u32 vcc, 31, v106')
    e('v_mov_b32 v63, 0')
    e('v_mov_b32 v15, 8')
    e('v_cndmask_b32 v63, v63, v15, vcc')
    e('v_add_u32 v62, v62, v63')
    e('v_add_u32 v63, v62, v124')
    e(f'ds_write_b64 v107, v[62:63] offset:{L_H2+512}')
    e('s_mov_b64 exec, 0xff')
    e(f'v_mov_b32 v60, {R}')
    e('v_mov_b32 v61, 0')
    e('v_lshlrev_b32 v15, 3, v106')
    e(f'ds_write_b64 v15, v[60:61] offset:{L_DESC + RA*8}')
    e(f's_mov_b64 exec, s[{S_T}:{S_T+1}]')
    e('s_waitcnt lgkmcnt(0)')
    for i in range(4):
        e(f'ds_read_b32 v{116+i}, v{116+i} offset:{L_H2+512}')
    for i in range(4):
        e(f'v_lshl_add_u32 v15, v106, 2, {i}')
        e(f'v_lshl_or_b32 v{32+2*i}, v{48+2*i}, 6, v15')
        e(f'v_lshl_or_b32 v{33+2*i}, v{109+2*i}, 16, v{108+2*i}')
    e('s_waitcnt lgkmcnt(0)')
    for i in range(4):
        e(f'v_add_lshl_u32 v{116+i}, v{116+i}, v{120+i}, 3')
        e(f'ds_write_b64 v{116+i}, v[{32+2*i}:{33+2*i}] offset:{L_DESC}')
    e('s_mov_b64 exec, -1')
    e(f's_branch {pf}_DESC_DONE')
    lab(f'{pf}_DESC_REDO')
    e('v_cmp_gt_u32 vcc, 52, v106')
    e('s_mov_b64 exec, vcc')
    e(f'ds_read_b128 v[108:111], v14 offset:{L_DESC}')
    e(f'ds_read_b128 v[112:115], v14 offset:{L_DESC+16}')
    e('s_waitcnt lgkmcnt(0)')
    for i in range(4):
        d0 = 108 + 2*i
        e(f'v_and_b32 v{d0}, 255, v{d0}')
        e(f'v_lshlrev_b32 v15, 3, v{d0}')
        e(f'v_add_u32 v15, {L_OFF}, v15')
        e(f'ds_read2_b32 v[{48+4*i}:{49+4*i}], v15 offset0:0 offset1:1')
        e(f'ds_read_b32 v{50+4*i}, v15 offset:8')
    e('s_waitcnt lgkmcnt(0)')
    for i in range(4):
        d0 = 108 + 2*i
        e(f'v_lshl_or_b32 v{d0}, v{48+4*i}, 6, v{d0}')
        e(f'v_sub_u32 v15, v{49+4*i}, v{48+4*i}')
        e(f'v_lshrrev_b32 v15, 2, v15')
        e(f'v_sub_u32 v{d0+1}, v{50+4*i}, v{49+4*i}')
        e(f'v_lshl_or_b32 v{d0+1}, v{d0+1}, 14, v15')
    e(f'ds_write_b128 v14, v[108:111] offset:{L_DESC}')
    e(f'ds_write_b128 v14, v[112:115] offset:{L_DESC+16}')
    e('s_mov_b64 exec, -1')
    lab(f'{pf}_DESC_DONE')
    e('s_waitcnt lgkmcnt(0)')
    e('s_barrier')
    stamp(7)
    hd(6, 88)

    BOFF = (RA + 8) * 8
    lab(f'{pf}_PHASE_B')
    e(f's_mov_b32 s{S_PH}, 0')
    e(f'v_mov_b32 v15, {L_MAX}')
    e('ds_read_b32 v6, v15')
    e('v_and_b32 v14, 1, v0')
    e(f's_mov_b32 s{S_TMP}, 0x0c0c0302')
    e(f's_mov_b32 s{S_TMP2}, 0x03020c0c')
    e('v_cmp_eq_u32 vcc, 0, v14')
    e(f'v_mov_b32 v14, s{S_TMP2}')
    e(f'v_mov_b32 v15, s{S_TMP}')
    e('v_cndmask_b32 v14, v14, v15, vcc')
    e('v_and_b32 v15, 2, v0')
    e('v_cmp_eq_u32 vcc, 0, v15')
    e('v_mov_b32 v15, 0x0c0c0c0c')
    e('s_nop 0')
    e(f'v_cndmask_b32 v{V_SEL0}, v15, v14, vcc')
    e(f'v_cndmask_b32 v{V_SEL1}, v14, v15, vcc')
    e('s_waitcnt lgkmcnt(0)')
    e(f'v_readfirstlane_b32 s{S_NR}, v6')
    lab(f'{pf}_SEG')
    e('v_bfe_u32 v15, v0, 3, 3')
    e(f'v_lshl_add_u32 v14, v15, 3, s{S_PAIR}')
    e('ds_read_b64 v[8:9], v14')
    e(f'ds_read_b64 v[10:11], v14 offset:{BOFF}')
    e(f's_cmp_lg_u32 s{S_PASS}, 0')
    e(f's_cbranch_scc1 {pf}_SEG2')
    e(f's_setprio {P1S0}')
    e(f's_movk_i32 s{S_INC}, 32')
    e('s_waitcnt lgkmcnt(0)')
    e('v_and_b32 v14, 255, v8')
    e('v_and_b32 v15, 255, v10')
    e(f'v_lshl_or_b32 v{V_ROWS}, v15, 16, v14')
    e(f's_cmp_eq_u32 s{S_PH}, 0')
    e(f's_cbranch_scc1 {pf}_SEG1A')
    e(f's_setprio {P1S1}')
    e('v_mov_b32 v8, v10')
    e('v_mov_b32 v9, v11')
    lab(f'{pf}_SEG1A')
    e(f'v_lshrrev_b32 v{V_PA}, 8, v8')
    e(f'v_lshlrev_b32 v{V_PA}, 4, v{V_PA}')
    e(f'v_add_u32 v{V_PA}, {L_SORT}, v{V_PA}')
    e('v_and_b32 v14, 0xffff, v9')
    e('v_lshrrev_b32 v15, 16, v9')
    e('v_add_u32 v14, v14, v15')
    e(f'v_lshl_add_u32 v{V_EA}, v14, 4, v{V_PA}')
    e(f'v_add_u32 v{V_PB}, 16, v{V_PA}')
    e(f'v_mov_b32 v{V_EB}, v{V_EA}')
    e(f's_branch {pf}_GW_OK')
    lab(f'{pf}_SEG2')
    e(f's_movk_i32 s{S_INC}, 16')
    e(f's_lshl_b32 s{S_TMP}, s{S_PH}, 2')
    e(f's_add_u32 s{S_TMP}, s{S_TMP}, {L_SYNC+8}')
    e(f'v_mov_b32 v14, s{S_TMP}')
    e('ds_read_b32 v15, v14')
    e('s_waitcnt lgkmcnt(0)')
    e(f'v_readfirstlane_b32 s{S_TMP2}, v15')
    for (D, P, EE) in ((8, V_PA, V_EA), (10, V_PB, V_EB)):
        e(f'v_lshrrev_b32 v{P}, 8, v{D}')
        e(f'v_lshlrev_b32 v{P}, 4, v{P}')
        e(f'v_add_u32 v{P}, {L_SORT}, v{P}')
        e(f'v_and_b32 v{EE}, 0xffff, v{D+1}')
        e(f'v_lshl_add_u32 v{EE}, v{EE}, 4, v{P}')
    e(f's_setprio {P2S0}')
    e(f's_cmp_eq_u32 s{S_PH}, 0')
    e(f's_cbranch_scc1 {pf}_SEG2A')
    e(f's_setprio {P2S1}')
    for (D, P, EE) in ((8, V_PA, V_EA), (10, V_PB, V_EB)):
        e(f'v_mov_b32 v{P}, v{EE}')
        e(f'v_lshrrev_b32 v{D+1}, 16, v{D+1}')
        e(f'v_lshl_add_u32 v{EE}, v{D+1}, 4, v{EE}')
    lab(f'{pf}_SEG2A')
    e(f's_cmp_lg_u32 s{S_TMP2}, 0')
    e(f's_cbranch_scc1 {pf}_GW_OK')
    e(f's_cmp_eq_u32 s{S_POST}, 0')
    e(f's_cbranch_scc1 {pf}_RET1')
    e(f's_mov_b32 s{S_RET}, 1')
    e(f's_mov_b32 s{S_NOUT}, 0')
    e(f's_branch {pf}_POSTWORK')
    lab(f'{pf}_RET1')
    e(f's_lshl_b32 s{S_TMP}, s{S_PH}, 2')
    e(f's_add_u32 s{S_TMP}, s{S_TMP}, {L_SYNC+8}')
    e(f'v_mov_b32 v14, s{S_TMP}')
    e('v_mov_b32 v15, 1')
    e('v_and_b32 v64, 15, v0')
    e('v_lshlrev_b32 v64, 2, v64')
    e('s_mov_b64 exec, 1')
    e('ds_add_rtn_u32 v15, v14, v15 offset:8')
    e(f's_mov_b32 s{S_SPIN}, 0')
    e('s_waitcnt lgkmcnt(0)')
    e(f'v_readfirstlane_b32 s{S_TMP}, v15')
    e(f's_cmp_lg_u32 s{S_TMP}, 0')
    e(f's_cbranch_scc1 {pf}_GW_SPIN')
    e(f's_lshl_b32 s{S_TMP2}, s{S_PH}, 13')
    e(f's_add_u32 s{S_TMP2}, s{S_TMP2}, {hex(WS_BAR+2048)}')
    e(f's_and_b32 s{S_TMP}, s2, 31')
    e(f's_lshl_b32 s{S_TMP}, s{S_TMP}, 7')
    e(f's_add_u32 s{S_TMP2}, s{S_TMP2}, s{S_TMP}')
    if SCAL:
        lab(f'{pf}_POLL')
        e(f's_mov_b32 s{S_TMP}, 0')
        e(f's_atomic_add s{S_TMP}, s[12:13], s{S_TMP2} glc')
        e('s_waitcnt lgkmcnt(0)')
        e(f's_add_u32 s{S_SPIN}, s{S_SPIN}, 1')
        e(f's_cmp_ge_u32 s{S_TMP}, 16')
        e(f's_cbranch_scc1 {pf}_POLLED')
    else:
        e('s_mov_b64 exec, 0xffff')
        lab(f'{pf}_POLL')
        e(f'buffer_load_dword v65, v64, s[{S_WS}:{S_WS+3}], s{S_TMP2} offen sc1')
        e('s_waitcnt vmcnt(0)')
        e('v_cmp_eq_u32 vcc, 0, v65')
        e(f's_add_u32 s{S_SPIN}, s{S_SPIN}, 1')
        e(f's_cbranch_vccz {pf}_POLLED')
    e(f's_cmp_ge_u32 s{S_SPIN}, {SPIN_MAX}')
    e(f's_cbranch_scc1 {pf}_POLLED')
    e(f's_sleep {SLP}')
    e(f's_branch {pf}_POLL')
    lab(f'{pf}_POLLED')
    if HD:
        e('s_mov_b32 s92, s90')
        e('s_cmp_eq_u32 s91, 0')
        e('s_cselect_b32 s90, 1, 0')
        e(f's_cmp_lg_u32 s{S_PH}, 0')
        e(f's_cbranch_scc1 {pf}_HD1')
        hd(9, 88, True); hd(10, 88)
        e(f's_branch {pf}_HD2')
        lab(f'{pf}_HD1')
        hd(11, 88, True); hd(12, 88)
        lab(f'{pf}_HD2')
        e('s_mov_b32 s90, s92')
    e('v_mov_b32 v15, 1')
    e('ds_write_b32 v14, v15')
    e(f's_branch {pf}_GW_DONE')
    lab(f'{pf}_GW_SPIN')
    e('s_sleep 1')
    e('ds_read_b32 v15, v14')
    e('s_waitcnt lgkmcnt(0)')
    e(f'v_readfirstlane_b32 s{S_TMP}, v15')
    e(f's_cmp_eq_u32 s{S_TMP}, 0')
    e(f's_cbranch_scc1 {pf}_GW_SPIN')
    lab(f'{pf}_GW_DONE')
    e('s_mov_b64 exec, -1')
    e('s_waitcnt lgkmcnt(0)')
    lab(f'{pf}_GW_OK')
    if INSTR:
        e(f's_lshl_b32 s{S_TMP}, s{S_PASS}, 1')
        e(f's_or_b32 s{S_TMP}, s{S_TMP}, s{S_PH}')
        e(f's_cmp_lg_u32 s{S_TMP}, 2')
        e(f's_cbranch_scc1 {pf}_ST9')
        stamp(9)
        lab(f'{pf}_ST9')
        e(f's_cmp_lg_u32 s{S_TMP}, 3')
        e(f's_cbranch_scc1 {pf}_ST4')
        stamp(4)
        lab(f'{pf}_ST4')
    next_entries(0, 0)
    next_entries(0, 1)
    e(f's_or_b64 s[{S_T}:{S_T+1}], vcc, s[{S_MASKB}:{S_MASKB+1}]')
    e(f's_cselect_b32 s{S_TMP2}, 1, 0')
    next_entries(1, 0)
    next_entries(1, 1)
    e(f's_or_b64 s[{S_T}:{S_T+1}], vcc, s[{S_MASKB}:{S_MASKB+1}]')
    e(f's_cselect_b32 s{S_TMP}, 2, 0')
    e(f's_or_b32 s{S_NST}, s{S_TMP}, s{S_TMP2}')
    e(f's_bitcmp1_b32 s{S_NST}, 0')
    e(f's_cbranch_scc0 {pf}_PRO_DONE')
    e('s_waitcnt lgkmcnt(3)')
    issue(0, 0)
    e('s_waitcnt lgkmcnt(2)')
    issue(0, 1)
    e(f's_bitcmp1_b32 s{S_NST}, 1')
    e(f's_cbranch_scc0 {pf}_PRO_DONE')
    e('s_waitcnt lgkmcnt(1)')
    issue(1, 0)
    e('s_waitcnt lgkmcnt(0)')
    issue(1, 1)
    lab(f'{pf}_PRO_DONE')
    e(f's_cmp_eq_u32 s{S_POST}, 0')
    e(f's_cbranch_scc1 {pf}_RET2')
    e(f's_mov_b32 s{S_RET}, 2')
    e(f's_mov_b32 s{S_NOUT}, s{S_NST}')
    e(f's_branch {pf}_POSTWORK')
    lab(f'{pf}_RET2')
    e(f's_and_b32 s{S_TMP}, s{S_PASS}, s{S_PH}')
    e(f's_cmp_lg_u32 s{S_TMP}, 0')
    e(f's_cbranch_scc1 {pf}_GO')
    for r in range(16):
        e(f'v_mov_b32 v{ACC[0]+r}, 0')
    e(f's_cmp_eq_u32 s{S_ROUND}, 0')
    e(f's_cbranch_scc1 {pf}_GO')
    part_addrs()
    e(f's_cmp_lg_u32 s{S_PASS}, 0')
    e(f's_cbranch_scc1 {pf}_LP2')
    e(f's_cmp_eq_u32 s{S_PH}, 0')
    e(f's_cbranch_scc1 {pf}_LP1')
    e('v_mov_b32 v14, v15')
    e(f's_branch {pf}_LP1')
    lab(f'{pf}_LP2')
    e(f'buffer_load_dwordx4 v[40:43], v15, s[{S_WS}:{S_WS+3}], s{S_TMP} offen')
    e(f'buffer_load_dwordx4 v[44:47], v15, s[{S_WS}:{S_WS+3}], s{S_TMP} offen offset:16')
    lab(f'{pf}_LP1')
    e(f'buffer_load_dwordx4 v[32:35], v14, s[{S_WS}:{S_WS+3}], s{S_TMP} offen')
    e(f'buffer_load_dwordx4 v[36:39], v14, s[{S_WS}:{S_WS+3}], s{S_TMP} offen offset:16')
    e('s_waitcnt vmcnt(0)')
    lab(f'{pf}_GO')
    e(f's_cmp_eq_u32 s{S_NST}, 0')
    e(f's_cbranch_scc1 {pf}_SEG_END')
    e(f's_cmp_eq_u32 s{S_NST}, 1')
    e(f's_cbranch_scc1 {pf}_DRAIN0')
    lab(f'{pf}_LOOP')
    for p in (0, 1):
        e('s_waitcnt vmcnt(12)')
        consume(p, 0)
        next_entries(p, 0)
        e('s_waitcnt vmcnt(8)')
        consume(p, 1)
        next_entries(p, 1)
        e(f's_or_b64 s[{S_T}:{S_T+1}], vcc, s[{S_MASKB}:{S_MASKB+1}]')
        e(f's_cbranch_scc0 {pf}_DRAIN{p^1}')
        e('s_waitcnt lgkmcnt(1)')
        issue(p, 0)
        e('s_waitcnt lgkmcnt(0)')
        issue(p, 1)
    e(f's_branch {pf}_LOOP')
    for q in (1, 0):
        lab(f'{pf}_DRAIN{q}')
        e('s_waitcnt vmcnt(4)')
        consume(q, 0)
        e('s_waitcnt vmcnt(0)')
        consume(q, 1)
        if q == 1:
            e(f's_branch {pf}_SEG_END')
    lab(f'{pf}_SEG_END')
    e('s_nop 4')
    e('s_waitcnt lgkmcnt(0)')
    e(f's_add_u32 s{S_TMP}, s{S_ROUND}, 1')
    e(f's_mul_i32 s{S_TMP}, s{S_TMP}, {S}')
    e(f's_cmp_ge_u32 s{S_TMP}, s{S_NR}')
    e(f's_cselect_b32 s{S_FIRST}, 1, 0')
    e(f's_cmp_lg_u32 s{S_PASS}, 0')
    e(f's_cbranch_scc1 {pf}_END_P2')
    for r in range(8):
        e(f'v_add_f32 v{32+r}, v{32+r}, v{40+r}')
    e(f's_cmp_eq_u32 s{S_WAVE}, {NW-1}')
    e(f's_cselect_b32 s{S_TMP}, 1, 0')
    e(f's_andn2_b32 s{S_TMP}, s{S_TMP}, s{S_PH}')
    e(f's_cmp_lg_u32 s{S_TMP}, 0')
    e(f's_cbranch_scc1 {pf}_P1NEXT')
    e(f's_cmp_lg_u32 s{S_FIRST}, 0')
    e(f's_cbranch_scc1 {pf}_PUB')
    part_addrs()
    e(f's_cmp_eq_u32 s{S_PH}, 0')
    e(f's_cbranch_scc1 {pf}_SP1')
    e('v_mov_b32 v14, v15')
    lab(f'{pf}_SP1')
    e(f'buffer_store_dwordx4 v[32:35], v14, s[{S_WS}:{S_WS+3}], s{S_TMP} offen')
    e(f'buffer_store_dwordx4 v[36:39], v14, s[{S_WS}:{S_WS+3}], s{S_TMP} offen offset:16')
    e('s_waitcnt vmcnt(0)')
    e(f's_branch {pf}_P1NEXT')
    lab(f'{pf}_PUB')
    e(f's_cmp_lg_u32 s{S_PH}, 0')
    e(f's_cbranch_scc1 {pf}_PUBB')
    for d in range(4):
        e(f'v_cvt_pk_bf16_f32 v{24+d}, v{32+2*d}, v{33+2*d}')
    e(f'v_mad_u32_u16 v14, v{V_ROWS}, s{S_128}, v{V_J}')
    e(f'v_add_u32 v14, s{S_ROW0}, v14')
    e(f'buffer_store_dwordx4 v[24:27], v14, s[{S_T1}:{S_T1+3}], 0 offen sc1')
    e(f'buffer_load_dwordx4 v[16:19], v14, s[{S_X}:{S_X+3}], 0 offen')
    if 'sig' in XP: stamp(7)
    e(f's_branch {pf}_SIG')
    lab(f'{pf}_PUBB')
    stamp(8)
    hd(8, 88); hd(7, 88, True)
    for d in range(4):
        e(f'v_cvt_pk_bf16_f32 v{28+d}, v{32+2*d}, v{33+2*d}')
    e(f'v_mad_u32_u16 v14, v{V_ROWS}, s{S_128}, v{V_J} op_sel:[1,0,0,0]')
    e(f'v_add_u32 v14, s{S_ROW0}, v14')
    e(f'buffer_store_dwordx4 v[28:31], v14, s[{S_T1}:{S_T1+3}], 0 offen sc1')
    e(f'buffer_load_dwordx4 v[20:23], v14, s[{S_X}:{S_X+3}], 0 offen')
    lab(f'{pf}_SIG')
    e(f's_add_u32 s{S_POST}, s{S_PH}, 1')
    e(f's_mov_b32 s{S_RET}, 4')
    e(f's_mov_b32 s{S_NOUT}, 0')
    e(f's_branch {pf}_POSTWORK')
    lab(f'{pf}_P1NEXT')
    e(f's_cmp_lg_u32 s{S_PH}, 0')
    e(f's_cbranch_scc1 {pf}_P1DONE')
    e(f's_mov_b32 s{S_PH}, 1')
    e(f's_branch {pf}_SEG')
    lab(f'{pf}_P1DONE')
    e(f's_cmp_lg_u32 s{S_FIRST}, 0')
    e(f's_cbranch_scc1 {pf}_TOP2')
    lab(f'{pf}_NEXTROUND')
    e(f's_add_u32 s{S_ROUND}, s{S_ROUND}, 1')
    e('s_waitcnt vmcnt(0) lgkmcnt(0)')
    e('s_barrier')
    e(f's_branch {pf}_ROUND')
    lab(f'{pf}_TOP2')
    for i in range(4):
        e(f's_mov_b32 s{S_TAB+i}, s{S_T1+i}')
    e(f's_mov_b32 s{S_PASS}, 1')
    e(f's_mov_b32 s{S_ROUND}, 0')
    e(f's_mov_b32 s{S_PH}, 0')
    e(f's_cmp_eq_u32 s{S_NR}, 0')
    e(f's_cbranch_scc1 {pf}_SEG')
    e(f's_mov_b32 s{S_RET}, 3')
    e(f's_mov_b32 s{S_NOUT}, 0')
    e(f's_branch {pf}_POSTWORK')
    lab(f'{pf}_RET3')
    e('s_waitcnt lgkmcnt(0)')
    e('s_barrier')
    e(f's_branch {pf}_ROUND')

    def wait3(k, tag):
        e(f's_cmp_eq_u32 s{S_NOUT}, 3')
        e(f's_cbranch_scc1 {pf}_W16{tag}')
        e(f's_cmp_eq_u32 s{S_NOUT}, 1')
        e(f's_cbranch_scc1 {pf}_W8{tag}')
        e(f's_waitcnt vmcnt({k})')
        lab(f'{pf}_W8{tag}')
        e(f's_waitcnt vmcnt({8+k})')
        lab(f'{pf}_W16{tag}')
        e(f's_waitcnt vmcnt({16+k})')
    lab(f'{pf}_POSTWORK')
    e(f's_cmp_eq_u32 s{S_POST}, 3')
    e(f's_cbranch_scc1 {pf}_PGEMM')
    e(f's_sub_u32 s{S_POST}, s{S_POST}, 1')
    e('v_mov_b32 v33, 1')
    e(f's_lshl_b32 s{S_TMP}, s{S_POST}, 2')
    e(f's_add_u32 s{S_TMP}, s{S_TMP}, {L_SYNC}')
    e(f'v_mov_b32 v34, s{S_TMP}')
    e(f's_lshl_b32 s{S_TMP2}, s{S_POST}, 13')
    e(f's_add_u32 s{S_TMP2}, s{S_TMP2}, {hex(WS_BAR)}')
    e(f's_and_b32 s{S_SPIN}, s2, 15')
    e(f's_lshl_b32 s{S_TMP}, s{S_SPIN}, 7')
    e(f's_add_u32 s{S_T}, s{S_TMP}, s{S_TMP2}')
    e(f's_cmp_lt_u32 s{S_SPIN}, {NB % 16}')
    e(f's_cselect_b32 s{S_SPIN}, {NB//16}, {NB//16 - 1}')
    e('v_and_b32 v36, 31, v0')
    e('v_lshlrev_b32 v36, 7, v36')
    e('s_waitcnt vmcnt(1)')
    e('s_mov_b64 exec, 1')
    e('ds_add_rtn_u32 v35, v34, v33')
    e('s_waitcnt lgkmcnt(0)')
    e(f'v_readfirstlane_b32 s{S_TMP}, v35')
    e(f's_sub_u32 s{S_TMP}, s{S_TMP}, s{S_POST}')
    e(f's_cmp_lg_u32 s{S_TMP}, 11')
    e(f's_cbranch_scc1 {pf}_NOSIG')
    e(f's_mov_b32 s{S_TMP}, 1')
    e(f's_atomic_add s{S_TMP}, s[12:13], s{S_T} glc')
    e('s_waitcnt lgkmcnt(0)')
    e(f's_cmp_lg_u32 s{S_TMP}, s{S_SPIN}')
    e(f's_cbranch_scc1 {pf}_NOSIG')
    e('s_mov_b32 exec_lo, -1')
    e(f'buffer_atomic_add v33, v36, s[{S_WS}:{S_WS+3}], s{S_TMP2} offen offset:2048')
    e('s_nop 1')
    lab(f'{pf}_NOSIG')
    e('s_mov_b64 exec, -1')
    e(f's_mul_i32 s{S_POST}, s{S_POST}, 3')
    e(f's_branch {pf}_P1NEXT')
    lab(f'{pf}_PGEMM')
    e(f's_mov_b32 s{S_POST}, 0')
    tile_regs(14, 15, 6)
    e('ds_write_b128 v14, v[24:27] offset:128')
    e(f'ds_write_b128 v14, v[28:31] offset:{8*ROW_STRIDE+128}')
    e('s_waitcnt vmcnt(17)')
    wait3(0, 'b')
    e('ds_write_b128 v14, v[16:19]')
    e(f'ds_write_b128 v14, v[20:23] offset:{8*ROW_STRIDE}')
    e('s_waitcnt lgkmcnt(0)')
    for r in range(16):
        e(f'v_mov_b32 v{ACCO+r}, 0')
    gemm_steps(range(4), 15, 6, 32, [36, 40, 44], lambda ks: (ks >> 1) * 128)
    lab(f'{pf}_POSTEND')
    e(f's_cmp_eq_u32 s{S_RET}, 2')
    e(f's_cbranch_scc1 {pf}_RET2')
    e(f's_cmp_eq_u32 s{S_RET}, 1')
    e(f's_cbranch_scc1 {pf}_RET1')
    e(f's_cmp_eq_u32 s{S_RET}, 4')
    e(f's_cbranch_scc1 {pf}_P1NEXT')
    e(f's_branch {pf}_RET3')
    lab(f'{pf}_END_P2')
    e(f's_cmp_lg_u32 s{S_PH}, 0')
    e(f's_cbranch_scc1 {pf}_P2DONE')
    e(f's_mov_b32 s{S_PH}, 1')
    e(f's_branch {pf}_SEG')
    lab(f'{pf}_P2DONE')
    e(f's_cmp_lg_u32 s{S_FIRST}, 0')
    e(f's_cbranch_scc1 {pf}_FINAL2')
    part_addrs()
    e(f'buffer_store_dwordx4 v[40:43], v15, s[{S_WS}:{S_WS+3}], s{S_TMP} offen')
    e(f'buffer_store_dwordx4 v[44:47], v15, s[{S_WS}:{S_WS+3}], s{S_TMP} offen offset:16')
    e(f's_cmp_eq_u32 s{S_WAVE}, {NW-1}')
    e(f's_cbranch_scc1 {pf}_NEXTROUND')
    e(f'buffer_store_dwordx4 v[32:35], v14, s[{S_WS}:{S_WS+3}], s{S_TMP} offen')
    e(f'buffer_store_dwordx4 v[36:39], v14, s[{S_WS}:{S_WS+3}], s{S_TMP} offen offset:16')
    e(f's_branch {pf}_NEXTROUND')

    lab(f'{pf}_FINAL2')
    if 'sig' not in XP: stamp(2)
    tile_regs(14, 15, 94)
    e('ds_read_b128 v[64:67], v14')
    e(f'ds_read_b128 v[68:71], v14 offset:{8*ROW_STRIDE}')
    e('v_and_b32 v93, 7, v0')
    e(f'v_lshl_add_u32 v93, v93, 3, s{S_PAIR}')
    e('v_bfe_u32 v92, v0, 3, 1')
    e(f'v_mul_u32_u24 v92, {(RA+8)*8}, v92')
    e('v_add_u32 v93, v93, v92')
    e('ds_read_b32 v93, v93')
    for f in range(8):
        e(f'ds_read_b128 v[{96+4*f}:{99+4*f}], v94 offset:{(16+f)*1024}')
    e('s_waitcnt lgkmcnt(9)')
    for h in range(2):
        for d in range(4):
            xs = 64 + 4*h + d
            e(f'v_lshlrev_b32 v88, 16, v{xs}')
            e(f'v_and_b32 v89, s{S_HI}, v{xs}')
            e(f'v_fma_f32 v88, 2.0, v{ACC[h]+2*d}, -v88')
            e(f'v_fma_f32 v89, 2.0, v{ACC[h]+2*d+1}, -v89')
            e(f'v_cvt_pk_bf16_f32 v{80+4*h+d}, v88, v89')
    e('ds_write_b128 v14, v[80:83] offset:128')
    e(f'ds_write_b128 v14, v[84:87] offset:{8*ROW_STRIDE+128}')
    e('ds_read_b128 v[72:75], v15 offset:128')
    e('ds_read_b128 v[76:79], v15 offset:192')
    mfma_run(16, 24, lambda ks: 72 + 4*(ks-4), ['d'] + ['A%d' % i for i in range(16, 24)] + ['w', 'w', 'B4', 'B5'], 94)
    e('v_and_b32 v93, 255, v93')
    e('v_bfe_u32 v14, v0, 4, 2')
    e('v_lshlrev_b32 v14, 5, v14')
    e('v_lshl_add_u32 v14, v93, 7, v14')
    e(f'v_add_u32 v14, s{S_ROW0}, v14')
    e(f'v_cmp_gt_u32 vcc, {R}, v93')
    e('s_and_b64 exec, exec, vcc')
    e('s_nop 7')
    for mt in range(4):
        e(f'v_cvt_pk_bf16_f32 v{64+2*mt}, v{ACCO+4*mt}, v{ACCO+4*mt+1}')
        e(f'v_cvt_pk_bf16_f32 v{65+2*mt}, v{ACCO+4*mt+2}, v{ACCO+4*mt+3}')
    e(f'buffer_store_dwordx4 v[64:67], v14, s[{S_OUT}:{S_OUT+3}], 0 offen')
    e(f'buffer_store_dwordx4 v[68:71], v14, s[{S_OUT}:{S_OUT+3}], 0 offen offset:16')
    lab(f'{pf}_END')
    if HD:
        e('s_waitcnt vmcnt(0)')
        hd(14, 88); hd(13, 88, True)
    dump_stamps(1, S_WS)
    lab(f'{pf}_END2')
    e('s_endpgm')
    lab('M_CODE_END')

def gen_wprep():
    e(f's_cmp_gt_u32 s2, {NC+1}')
    e('s_cbranch_scc1 K1_CPF')
    e('s_load_dwordx2 s[10:11], s[0:1], 32')
    e('s_load_dwordx2 s[12:13], s[0:1], 56')
    e(f's_sub_u32 s36, s2, {NC}')
    e('s_mul_i32 s36, s36, 768')
    e('v_cmp_gt_u32 vcc, 768, v0')
    e('s_and_saveexec_b64 s[40:41], vcc')
    e('s_cbranch_execz K1_ZBAR')
    e('v_add_u32 v1, s36, v0')
    e('v_lshrrev_b32 v2, 6, v1')
    e('v_and_b32 v3, 3, v2')
    e('v_lshrrev_b32 v4, 2, v2')
    e('v_and_b32 v5, 15, v1')
    e('v_bfe_u32 v6, v1, 4, 2')
    e('v_lshrrev_b32 v7, 2, v5')
    e('v_lshlrev_b32 v7, 4, v7')
    e('v_lshl_add_u32 v7, v3, 2, v7')
    e('v_and_b32 v8, 3, v5')
    e('v_add_u32 v7, v7, v8')
    e('v_readfirstlane_b32 s38, v4')
    e('v_lshlrev_b32 v9, 12, v4')
    e('s_waitcnt lgkmcnt(0)')
    srd(16, 10, 11, 3 * 64 * 64 * 2)
    srd(28, 12, 13, WS_SIZE)
    e(f's_mov_b32 s37, {hex(WS_WT)}')
    e('s_lshr_b32 s38, s38, 1')
    e('s_cmp_eq_u32 s38, 1')
    e('s_cbranch_scc1 K2_WP')
    e('v_lshl_add_u32 v9, v6, 10, v9')
    e('v_lshl_add_u32 v9, v7, 1, v9')
    for j in range(8):
        e(f'buffer_load_ushort v{10+j}, v9, s[16:19], 0 offen offset:{j*128}')
    e('s_branch K2_WQ')
    lab('K2_WP')
    e('v_lshl_add_u32 v9, v6, 7, v9')
    e('v_lshl_add_u32 v9, v7, 1, v9')
    for j in range(8):
        e(f'buffer_load_ushort v{10+j}, v9, s[16:19], 0 offen offset:{(j&3)*1024 + (j>>2)*512}')
    lab('K2_WQ')
    e('s_waitcnt vmcnt(0)')
    for j in range(4):
        e(f'v_lshl_or_b32 v{20+j}, v{11+2*j}, 16, v{10+2*j}')
    e('v_lshlrev_b32 v1, 4, v1')
    e('buffer_store_dwordx4 v[20:23], v1, s[28:31], s37 offen')
    e('s_endpgm')
    lab('K1_ZBAR')
    e('s_mov_b64 exec, -1')
    e('v_and_b32 v1, 255, v0')
    e('v_lshlrev_b32 v1, 4, v1')
    for i in range(4):
        e(f'v_mov_b32 v{4+i}, 0')
    e('s_waitcnt lgkmcnt(0)')
    srd(28, 12, 13, WS_SIZE)
    e(f's_mov_b32 s37, {hex(WS_BAR)}')
    e('buffer_store_dwordx4 v[4:7], v1, s[28:31], s37 offen')
    for k in range(1, 4):
        e(f's_mov_b32 s37, {hex(WS_BAR+4096*k)}')
        e('buffer_store_dwordx4 v[4:7], v1, s[28:31], s37 offen')

S_NST = 74
S_PAIR = 75
def part_addrs():
    e(f'v_mad_u32_u16 v14, v{V_ROWS}, s{S_128}, v{V_J}')
    e(f'v_mad_u32_u16 v15, v{V_ROWS}, s{S_128}, v{V_J} op_sel:[1,0,0,0]')
    e('v_lshlrev_b32 v14, 1, v14')
    e('v_lshlrev_b32 v15, 1, v15')
    e(f's_lshl_b32 s{S_TMP}, s{S_ROW0}, 1')
    e(f's_add_u32 s{S_TMP}, s{S_TMP}, {hex(WS_PART)}')

def kd(name, vgpr, sgpr):
    out.append('.p2align 6')
    out.append(f'.amdhsa_kernel {name}')
    out.append(f'  .amdhsa_next_free_vgpr {vgpr}')
    out.append(f'  .amdhsa_next_free_sgpr {sgpr}')
    out.append(f'  .amdhsa_accum_offset {(vgpr+3)//4*4}')
    out.append('  .amdhsa_group_segment_fixed_size 0')
    out.append('  .amdhsa_kernarg_size 64')
    out.append('  .amdhsa_user_sgpr_count 2')
    out.append('  .amdhsa_user_sgpr_kernarg_segment_ptr 1')
    out.append('  .amdhsa_system_sgpr_workgroup_id_x 1')
    out.append('.end_amdhsa_kernel')

hdr = open('standalone__spectral_conv_chebnet__graph.s.ref').read().split('\n')
for l in hdr:
    if l.startswith(';') and '@launch' not in l and 'Override launch' not in l and 'grid=ceil' not in l:
        out.append(l)
    elif not l.startswith(';'):
        break
G1 = NC + 2 + (8 if CPF else 0)
out.append(f'; @launch kernel=part_kernel grid=({G1},1,1) block=(1024,1,1) lds={4096+32768}')
out.append(f'; @launch kernel=main_kernel grid=({NB},1,1) block=({NT},1,1) lds={L_END3}')
out.append('.amdgcn_target "amdgcn-amd-amdhsa--gfx950"')
out.append('.text')
gen_k1()
gen_main()
out.append('.section .rodata,"a"')
kd('part_kernel', 64, 102 if (INSTR or HD) else 56)
kd('main_kernel', 128, 102 if (INSTR or HD) else 88)
dst = sys.argv[1] if len(sys.argv) > 1 else 'standalone__spectral_conv_chebnet__graph.s'
open(dst, 'w').write('\n'.join(out) + '\n')
print('wrote', dst, len(out), 'lines')
```

```python
import sys

N = 50000; E = 800000
R = 200
NB = 250
CH = 4096
NC = 196
S = 48
NIT = S // 8
NW = 13
NT = NW * 64

WS_ENT = 0x0000000
WS_SEG = 0x0800000
WS_WT  = 0x0900000
WS_BAR = 0x0A00000
WS_CSR = 0x1000000
CSR_STRIDE = 0x10000
WS_T1  = 0x2000000
WS_PART = 0x3000000
WS_SIZE = 268435456

L_CNT = 0
L_OFF = 2048
L_MAX = 4096
L_DESC = 4112
L_SYNC = 5792
L_H2 = 5888
L_JUNK = 6912
L_SORT = 7168
RA = 96
SORT_BYTES = NT * 16 * 4
L_DUMMY = L_SORT + SORT_BYTES - 16
L_END2 = L_SORT + SORT_BYTES
L_W = L_END2
L_ROWS = L_W + 24576
ROW_STRIDE = 272
L_END3 = L_ROWS + 208 * ROW_STRIDE
HALF = 25000

import os
INSTR = int(os.environ.get('INSTR', '0'))
PF2 = int(os.environ.get('PF2', '32'))
PF3 = int(os.environ.get('PF3', '24'))
PFB2 = int(os.environ.get('PFB2', '0'))
PFB3 = int(os.environ.get('PFB3', '0'))
PFBW = int(os.environ.get('PFBW', '0'))
BAL = int(os.environ.get('BAL', '1'))
XP = os.environ.get('XP', '')
PF1 = int(os.environ.get('PF1', '0'))
PF2BASE = 6144 * int(os.environ.get('PFH', '0'))
RENUM = int(os.environ.get('RENUM', '1'))
WS_DBG = 0x8000000
S_ST = 40
NSTAMP = 12
SPIN_MAX = int(os.environ.get('SPIN_MAX', '2000000'))
SCAL = int(os.environ.get('SCAL', '1'))
CPF = int(os.environ.get('CPF', '1'))
LATE = int(os.environ.get('LATE', '1'))
WLATE = int(os.environ.get('WLATE', '0'))
TPF = int(os.environ.get('TPF', '1'))
PFL = int(os.environ.get('PFL', '0'))
ROWSEG = int(os.environ.get('ROWSEG', '1'))
KA = int(os.environ.get('KA', '0')); KB = int(os.environ.get('KB', '0'))
def gate(tag, word, k):
    if not k: return
    e(f's_cmp_lg_u32 s{S_NR}, 0')
    e(f's_cbranch_scc1 M_GATE{tag}X')
    e(f'v_mov_b32 v14, {L_SYNC + 4*word}')
    lab(f'M_GATE{tag}')
    e('ds_read_b32 v15, v14')
    e('s_waitcnt lgkmcnt(0)')
    e(f'v_readfirstlane_b32 s{S_TMP}, v15')
    e(f's_cmp_ge_u32 s{S_TMP}, {k}')
    e(f's_cbranch_scc1 M_GATE{tag}X')
    e('s_sleep 1')
    e(f's_branch M_GATE{tag}')
    lab(f'M_GATE{tag}X')
DIRECT = int(os.environ.get('DIRECT', '0'))
PFH = int(os.environ.get('PFH', '0'))
HD = int(os.environ.get('HD', '0'))
def hd(slot, base, neg=False, tmp=86):
    if not HD: return
    global _hdn
    _hdn += 1
    e('s_cmp_eq_u32 s90, 0')
    e(f's_cbranch_scc1 HDSKIP{_hdn}')
    e(f's_memrealtime s[{tmp}:{tmp+1}]')
    e('s_waitcnt lgkmcnt(0)')
    if neg: e(f's_not_b32 s{tmp}, s{tmp}')
    e(f's_atomic_umax s{tmp}, s[{base}:{base+1}], {slot*4}')
    lab(f'HDSKIP{_hdn}')
_hdn = 0
FLAGV = int(os.environ.get('FLAGV', '1'))
SELFPF = int(os.environ.get('SELFPF', '1'))
P1S0 = int(os.environ.get('P1S0', '3')); P1S1 = int(os.environ.get('P1S1', '2')); P2S0 = int(os.environ.get('P2S0', '1')); P2S1 = int(os.environ.get('P2S1', '0'))
P0B = int(os.environ.get('P0B', '3'))
P1A = int(os.environ.get('P1A', '2')); P1B = int(os.environ.get('P1B', '1'))
P2PRIO = int(os.environ.get('P2PRIO', '1'))
NREP = int(os.environ.get('NREP', '16'))
SLP = int(os.environ.get('SLP', '2'))
STMAP = {0: 86, 1: 88, 2: 90, 4: 92, 7: 94, 8: 96, 9: 98, 10: 100, 11: 14}
def stamp(i, real=False):
    if INSTR and i in STMAP:
        r = STMAP[i]
        e(f's_memrealtime s[{r}:{r+1}]' if real else f's_memtime s[{r}:{r+1}]')
def dump_stamps(kidx, ws_srd, wave_sgpr_from_v0=True):
    if not INSTR: return
    e('s_waitcnt vmcnt(0) lgkmcnt(0)')
    stamp(NSTAMP-2); stamp(NSTAMP-1, True)
    e('s_waitcnt lgkmcnt(0)')
    e('s_mov_b64 exec, -1')
    e('v_lshrrev_b32 v1, 6, v0')
    e('s_lshl_b32 s70, s2, 4')
    e('v_add_u32 v1, s70, v1')
    e('v_lshlrev_b32 v1, 7, v1')
    e(f's_mov_b32 s70, {hex(WS_DBG + kidx*0x100000)}')
    e('s_mov_b64 exec, 1')
    for i in range(NSTAMP):
        if i not in STMAP: continue
        e(f'v_mov_b32 v2, s{STMAP[i]}')
        e(f'v_mov_b32 v3, s{STMAP[i]+1}')
        e(f'buffer_store_dwordx2 v[2:3], v1, s[{ws_srd}:{ws_srd+3}], s70 offen offset:{8*i}')
        e('s_nop 1')

out = []
def e(s=''):
    out.append('    ' + s if s and not s.endswith(':') else s)
def lab(s):
    out.append(s + ':')

def srd(d, lo, hi, nbytes, add=0):
    if add:
        e(f's_add_u32 s{d}, s{lo}, {hex(add)}')
        e(f's_addc_u32 s{d+1}, s{hi}, 0')
    else:
        e(f's_mov_b32 s{d}, s{lo}')
        e(f's_mov_b32 s{d+1}, s{hi}')
    e(f's_mov_b32 s{d+2}, {hex(nbytes)}')
    e(f's_mov_b32 s{d+3}, 0x00020000')

def wave_scan(v, op='v_add_u32'):
    for sh in (1, 2, 4, 8):
        e('s_nop 1')
        e(f'{op}_dpp v{v}, v{v}, v{v} row_shr:{sh} row_mask:0xf bank_mask:0xf bound_ctrl:0')
    e('s_nop 1')
    e(f'{op}_dpp v{v}, v{v}, v{v} row_bcast:15 row_mask:0xa bank_mask:0xf')
    e('s_nop 1')
    e(f'{op}_dpp v{v}, v{v}, v{v} row_bcast:31 row_mask:0xc bank_mask:0xf')

def kernel_head(name):
    out.append(f'.globl {name}')
    out.append('.p2align 8')
    out.append(f'.type {name},@function')
    lab(name)

def gen_k1():
    kernel_head('part_kernel')
    e(f's_cmp_ge_u32 s2, {NC}')
    e('s_cbranch_scc1 K1_XTRA')
    stamp(0, True); stamp(1)
    e('s_load_dwordx4 s[4:7], s[0:1], 8')
    e('s_load_dwordx2 s[8:9], s[0:1], 24')
    e('s_load_dwordx2 s[12:13], s[0:1], 56')
    if HD:
        e('s_load_dwordx2 s[88:89], s[0:1], 48')
        e('v_readfirstlane_b32 s90, v0')
        e('s_and_b32 s91, s2, 3')
        e('s_or_b32 s90, s90, s91')
        e('s_cmp_eq_u32 s90, 0')
        e('s_cselect_b32 s90, 1, 0')
        e('s_waitcnt lgkmcnt(0)')
        e('s_add_u32 s88, s88, 512')
        e('s_addc_u32 s89, s89, 0')
        hd(0, 88, True); hd(1, 88)
    if SELFPF:
        e('s_getpc_b64 s[46:47]')
        e('v_and_b32 v62, 31, v0')
        e('v_lshlrev_b32 v62, 6, v62')
        e('global_load_dword v63, v62, s[46:47]')
    e('v_lshlrev_b32 v1, 2, v0')
    e('s_lshl_b32 s14, s2, 12')
    e('v_add_u32 v3, s14, v1')
    e(f's_mov_b32 s15, {E}')
    e('v_cmp_gt_u32 vcc, s15, v3')
    e('v_lshlrev_b32 v13, 2, v3')
    e('v_lshlrev_b32 v12, 1, v3')
    e('v_mov_b32 v2, 0')
    e('ds_write_b32 v1, v2')
    e('s_mov_b64 s[32:33], vcc')
    e('s_and_saveexec_b64 s[38:39], vcc')
    e('s_waitcnt lgkmcnt(0)')
    stamp(2)
    e('s_cbranch_execz K1_NOLD')
    e('global_load_dwordx4 v[4:7], v13, s[6:7]')
    if not LATE:
        e('global_load_dwordx4 v[8:11], v13, s[4:5]')
        e('global_load_dwordx2 v[14:15], v12, s[8:9]')
    lab('K1_NOLD')
    srd(28, 12, 13, WS_SIZE)
    e('s_mov_b32 s34, 83887')
    e(f's_mov_b32 s35, {-R & 0xffffffff:#x}')
    e('s_mov_b32 s36, 0xffff0000')
    e('v_mov_b32 v2, 1')
    e('s_barrier')
    if LATE:
        e('s_waitcnt vmcnt(0)')
        e('s_cbranch_execz K1_NOLD2')
        e('global_load_dwordx4 v[8:11], v13, s[4:5]')
        e('global_load_dwordx2 v[14:15], v12, s[8:9]')
        lab('K1_NOLD2')
    else:
        e('s_waitcnt vmcnt(2)')
    stamp(3)
    for i in range(4):
        e(f'v_mul_u32_u24 v{16+i}, s34, v{4+i}')
        e(f'v_lshrrev_b32 v{16+i}, 24, v{16+i}')
        e(f'v_mad_i32_i24 v{25+2*i}, v{16+i}, s35, v{4+i}')
        if RENUM:
            e(f'v_and_b32 v3, 7, v{16+i}')
            e(f'v_lshrrev_b32 v{16+i}, 3, v{16+i}')
            e(f'v_lshlrev_b32 v{16+i}, 2, v{16+i}')
            e(f'v_lshl_or_b32 v{16+i}, v3, 7, v{16+i}')
        else:
            e(f'v_lshlrev_b32 v{16+i}, 2, v{16+i}')
        e(f'ds_add_rtn_u32 v{20+i}, v{16+i}, v2')
    e('s_mov_b64 exec, -1')
    if PF1:
        e('s_lshr_b32 s37, s2, 3')
        e('s_min_u32 s37, s37, 23')
        e(f's_mul_i32 s37, s37, {16*PF1*128}')
        e('v_lshrrev_b32 v60, 6, v0')
        e(f'v_mul_u32_u24 v60, {PF1*128}, v60')
        e('v_and_b32 v61, 63, v0')
        e('v_lshl_add_u32 v60, v61, 7, v60')
        e('v_add_u32 v60, s37, v60')
        m = (1 << PF1) - 1
        e(f's_mov_b32 exec_lo, {hex(m & 0xffffffff)}')
        e(f's_mov_b32 exec_hi, {hex(m >> 32)}')
        e('buffer_load_dword v61, v60, s[40:43], 0 offen')
        e('s_mov_b64 exec, -1')
    e('s_waitcnt lgkmcnt(0)')
    e('s_barrier')
    stamp(4)
    hd(2, 88)
    e('v_cmp_gt_u32 vcc, 64, v0')
    e('s_cbranch_vccz K1_SCAN_DONE')
    e('v_lshlrev_b32 v32, 4, v0')
    e('ds_read_b128 v[36:39], v32')
    e('s_waitcnt lgkmcnt(0)')
    e('v_add_u32 v41, v36, v37')
    e('v_add_u32 v42, v41, v38')
    e('v_add_u32 v43, v42, v39')
    e('v_mov_b32 v44, v43')
    wave_scan(44)
    e('v_sub_u32 v48, v44, v43')
    e('v_add_u32 v49, v48, v36')
    e('v_add_u32 v50, v48, v41')
    e('v_add_u32 v51, v48, v42')
    e('ds_write_b128 v32, v[48:51] offset:1024')
    for i in range(4):
        e(f'v_lshl_or_b32 v{52+i}, v{36+i}, 16, v{48+i}')
    if ROWSEG:
        e('s_lshl_b32 s37, s2, 10')
        e(f's_add_u32 s37, s37, {hex(WS_SEG)}')
        e('buffer_store_dwordx4 v[52:55], v32, s[28:31], s37 offen sc1')
    else:
        e('v_lshlrev_b32 v33, 12, v0')
        e('s_lshl_b32 s37, s2, 2')
        e(f's_add_u32 s37, s37, {hex(WS_SEG)}')
        for i in range(4):
            e(f'buffer_store_dword v{52+i}, v33, s[28:31], s37 offen offset:{i*1024} sc1')
    e('s_waitcnt lgkmcnt(0)')
    lab('K1_SCAN_DONE')
    e('s_barrier')
    stamp(5)
    e('s_mov_b64 exec, s[32:33]')
    for i in range(4):
        e(f'ds_read_b32 v{32+i}, v{16+i} offset:1024')
    e('s_waitcnt vmcnt(1)' if ROWSEG else 's_waitcnt vmcnt(4)')
    e('v_cmp_gt_u32 vcc, 64, v0')
    e('s_cbranch_vccnz K1_W0')
    e('s_waitcnt vmcnt(0)')
    lab('K1_W0')
    e(f's_movk_i32 s37, {RA}')
    for i in range(4):
        e(f'v_mul_u32_u24 v3, s34, v{8+i}')
        e('v_lshrrev_b32 v3, 24, v3')
        e(f'v_mad_i32_i24 v3, v3, s35, v{8+i}')
        e(f'v_cmp_le_u32 s[{48+2*i}:{49+2*i}], s37, v3')
    e('v_lshl_or_b32 v24, v14, 16, v8')
    e('v_and_or_b32 v26, v14, s36, v9')
    e('v_lshl_or_b32 v28, v15, 16, v10')
    e('v_and_or_b32 v30, v15, s36, v11')
    for i in range(4):
        e(f'v_addc_co_u32 v{25+2*i}, vcc, v{25+2*i}, v{25+2*i}, s[{48+2*i}:{49+2*i}]')
    for i in range(4):
        e(f's_waitcnt lgkmcnt({3-i})')
        e(f'v_add_lshl_u32 v{32+i}, v{32+i}, v{20+i}, 3')
        e(f'ds_write_b64 v{32+i}, v[{24+2*i}:{25+2*i}] offset:4096')
    e('s_mov_b64 exec, -1')
    e('s_waitcnt lgkmcnt(0)')
    e('s_barrier')
    stamp(6)
    e('v_lshlrev_b32 v36, 4, v0')
    e('ds_read_b128 v[40:43], v36 offset:4096')
    e('ds_read_b128 v[44:47], v36 offset:20480')
    e('s_lshl_b32 s37, s2, 15')
    e('s_add_u32 s38, s37, 16384')
    e('s_waitcnt lgkmcnt(1)')
    pol = '' if 'Eplain' in XP else ' sc1'
    if 'noE' not in XP:
        e('buffer_store_dwordx4 v[40:43], v36, s[28:31], s37 offen' + pol)
    e('s_waitcnt lgkmcnt(0)')
    if 'noE' not in XP:
        e('buffer_store_dwordx4 v[44:47], v36, s[28:31], s38 offen' + pol)
    stamp(7)
    if HD:
        e('s_waitcnt vmcnt(0)')
        hd(3, 88)
    dump_stamps(0, 28)
    e('s_endpgm')
    lab('K1_XTRA')
    gen_wprep()
    e('s_endpgm')
    lab('K1_CPF')
    if CPF:
        e(f's_cmp_gt_u32 s2, {NC+9}')
        e('s_cbranch_scc1 K1_HELP')
        e('s_getpc_b64 s[4:5]')
        lab('K1_PCREF')
        e('s_add_u32 s4, s4, main_kernel-K1_PCREF')
        e('s_addc_u32 s5, s5, 0')
        e('v_lshlrev_b32 v1, 6, v0')
        e('s_mov_b32 s6, M_CODE_END-main_kernel')
        e('v_cmp_gt_u32 vcc, s6, v1')
        e('s_and_saveexec_b64 s[8:9], vcc')
        e('s_cbranch_execz K1_END')
        e('global_load_dword v2, v1, s[4:5]')
        e('s_waitcnt vmcnt(0)')
        e('s_endpgm')
        lab('K1_HELP')
        if PFH:
            e(f's_cmp_gt_u32 s2, {NC+9+48}')
            e('s_cbranch_scc1 K1_END')
            e('s_load_dwordx2 s[4:5], s[0:1], 0')
            e(f's_sub_u32 s6, s2, {NC+10}')
            e('s_lshr_b32 s6, s6, 3')
            e(f's_mul_i32 s6, s6, {1024*PFH*128}')
            e('v_lshlrev_b32 v1, 7, v0')
            e('v_add_u32 v1, s6, v1')
            e('s_waitcnt lgkmcnt(0)')
            for i in range(PFH):
                e(f'global_load_dword v{2+i}, v1, s[4:5]')
                e('v_add_u32 v1, 0x20000, v1')
            e('s_waitcnt vmcnt(0)')
    lab('K1_END')
    e('s_endpgm')

X = [64, 96]
EN = [48, 56]
ACC = [32, 40]
ACCO = 16
V_J = 1; V_PA = 2; V_EA = 3; V_PB = 4; V_EB = 5; V_TA = 6; V_TB = 7
V_W = 8
V_ROWS = 12
S_TAB = 16; S_WS = 20; S_OUT = 24; S_X = 28
S_128 = 32; S_HI = 33; S_ROUND = 34; S_NR = 35
S_MASKB = 36
S_T = 38
S_M = 40
S_CSR = 64; S_TMP = 65; S_TMP2 = 66; S_WAVE = 67; S_ROW0 = 68; S_TOT = 69; S_DUM = 70; S_TILE = 71
IMG = NT * 16

def issue(p, half):
    x = X[p] + 16 * half
    en = EN[p] + 4 * half
    for u in range(4):
        e(f'v_mad_u32_u16 v{x+4*u}, v{en+u}, s{S_128}, v{V_J}')
    for u in range(4):
        e(f'buffer_load_dwordx4 v[{x+4*u}:{x+4*u+3}], v{x+4*u}, s[{S_TAB}:{S_TAB+3}], 0 offen' + ('' if 'plain' in XP else ' sc1'))

V_SEL0 = 7; V_SEL1 = 13
def consume(p, half):
    x = X[p] + 16 * half
    en = EN[p] + 4 * half
    acc = ACC[half]
    def perm(bs, u):
        e(f'v_perm_b32 v{V_W+2*bs}, v{en+u}, v{en+u}, v{V_SEL0}')
        e(f'v_perm_b32 v{V_W+2*bs+1}, v{en+u}, v{en+u}, v{V_SEL1}')
    def mm(bs, u):
        e(f'v_mfma_f32_4x4x4_16b_bf16 v[{acc}:{acc+3}], v[{x+4*u}:{x+4*u+1}], v[{V_W+2*bs}:{V_W+2*bs+1}], v[{acc}:{acc+3}]')
        e(f'v_mfma_f32_4x4x4_16b_bf16 v[{acc+4}:{acc+7}], v[{x+4*u+2}:{x+4*u+3}], v[{V_W+2*bs}:{V_W+2*bs+1}], v[{acc+4}:{acc+7}]')
    perm(0, 0); perm(1, 1)
    mm(0, 0)
    perm(0, 2)
    mm(1, 1)
    perm(1, 3)
    mm(0, 2)
    e('s_nop 0')
    mm(1, 3)

def next_entries(p, half):
    P = V_PA if half == 0 else V_PB
    EE = V_EA if half == 0 else V_EB
    T = V_TA
    en = EN[p] + 4 * half
    m = 'vcc' if half == 0 else f's[{S_MASKB}:{S_MASKB+1}]'
    e(f'v_cmp_lt_u32 {m}, v{P}, v{EE}')
    e(f'v_mov_b32 v{T}, s{S_DUM}')
    e('s_nop 0')
    e(f'v_cndmask_b32 v{T}, v{T}, v{P}, {m}')
    e(f'v_add_u32 v{P}, s{S_INC}, v{P}')
    e(f'ds_read_b128 v[{en}:{en+3}], v{T}')

def masked_loop(pf, tag, body, first_check=2):
    for i in range(NIT):
        e(f's_mov_b64 exec, s[{S_M+4*i}:{S_M+4*i+1}]')
        if i >= first_check:
            e(f's_cbranch_execz {pf}_{tag}_X')
        body(i, 0)
        if body.__code__.co_argcount == 2 and getattr(body, 'two', True):
            e(f's_mov_b64 exec, s[{S_M+4*i+2}:{S_M+4*i+3}]')
            body(i, 1)
    lab(f'{pf}_{tag}_X')
    e('s_mov_b64 exec, -1')

def gemm_steps(ks_list, vB, vA, tB, tA, part_off):
    for ks in ks_list:
        e(f'ds_read_b128 v[{tB}:{tB+3}], v{vB} offset:{(ks&1)*64 + part_off(ks)}')
        for mt in range(3):
            e(f'ds_read_b128 v[{tA[mt]}:{tA[mt]+3}], v{vA} offset:{(ks*4+mt)*1024}')
        e('s_waitcnt lgkmcnt(2)')
        e(f'v_mfma_f32_16x16x32_bf16 v[{ACCO}:{ACCO+3}], v[{tA[0]}:{tA[0]+3}], v[{tB}:{tB+3}], v[{ACCO}:{ACCO+3}]')
        e(f'ds_read_b128 v[{tA[0]}:{tA[0]+3}], v{vA} offset:{(ks*4+3)*1024}')
        e('s_waitcnt lgkmcnt(2)')
        e(f'v_mfma_f32_16x16x32_bf16 v[{ACCO+4}:{ACCO+7}], v[{tA[1]}:{tA[1]+3}], v[{tB}:{tB+3}], v[{ACCO+4}:{ACCO+7}]')
        e('s_waitcnt lgkmcnt(1)')
        e(f'v_mfma_f32_16x16x32_bf16 v[{ACCO+8}:{ACCO+11}], v[{tA[2]}:{tA[2]+3}], v[{tB}:{tB+3}], v[{ACCO+8}:{ACCO+11}]')
        e('s_waitcnt lgkmcnt(0)')
        e(f'v_mfma_f32_16x16x32_bf16 v[{ACCO+12}:{ACCO+15}], v[{tA[0]}:{tA[0]+3}], v[{tB}:{tB+3}], v[{ACCO+12}:{ACCO+15}]')

def frag_addrs(vb, va, vrow):
    e(f'v_and_b32 v{vrow}, 15, v0')
    e(f's_lshl_b32 s{S_TMP}, s{S_WAVE}, 7')
    e(f's_add_u32 s{S_TMP}, s{S_TMP}, {L_DESC}')
    e(f'v_lshl_add_u32 v{vrow}, v{vrow}, 3, s{S_TMP}')
    e(f'ds_read_b32 v{vrow}, v{vrow}')
    e(f'v_bfe_u32 v{va}, v0, 4, 2')
    e(f'v_lshlrev_b32 v{vb}, 4, v{va}')
    e(f'v_add_u32 v{vb}, {L_ROWS}, v{vb}')
    e(f'v_and_b32 v{va}, 63, v0')
    e(f'v_lshlrev_b32 v{va}, 4, v{va}')
    e(f'v_add_u32 v{va}, {L_W}, v{va}')
    e('s_waitcnt lgkmcnt(0)')
    e(f'v_and_b32 v{vrow}, 255, v{vrow}')
    e(f'v_mad_u32_u24 v{vb}, v{vrow}, s{S_RS}, v{vb}')

def prefetch(lanes, base_line, vdst, vtmp):
    if lanes == 0: return
    e(f's_lshr_b32 s{S_TMP}, s2, 3')
    e(f's_min_u32 s{S_TMP}, s{S_TMP}, 30')
    e(f's_mul_i32 s{S_TMP}, s{S_TMP}, {NW}')
    e(f's_add_u32 s{S_TMP}, s{S_TMP}, s{S_WAVE}')
    e(f's_mul_i32 s{S_TMP}, s{S_TMP}, {lanes}')
    e(f's_add_u32 s{S_TMP}, s{S_TMP}, {base_line}')
    e(f'v_and_b32 v{vtmp}, 63, v0')
    e(f'v_add_u32 v{vtmp}, s{S_TMP}, v{vtmp}')
    e(f'v_lshlrev_b32 v{vtmp}, 7, v{vtmp}')
    if lanes < 64:
        m = (1 << lanes) - 1
        e(f's_mov_b32 exec_lo, {hex(m & 0xffffffff)}')
        e(f's_mov_b32 exec_hi, {hex(m >> 32)}')
    e(f's_mov_b32 m0, {L_JUNK}')
    e('s_nop 0')
    e(f'buffer_load_dword v{vtmp}, s[{S_TAB}:{S_TAB+3}], 0 offen lds')
    e('s_mov_b64 exec, -1')

S_RS = S_TILE
S_PH = 72
S_FIRST = 73

S_T1 = 76
S_DBG = 80
S_PASS = 84
S_SPIN = 85
S_ONE = 80
S_POST = 81
S_RET = 82
S_NOUT = 83
S_INC = 69

def tile_regs(vw, vb, va):
    e(f's_mul_i32 s{S_TMP}, s{S_WAVE}, {16*ROW_STRIDE}')
    e(f's_add_u32 s{S_TMP}, s{S_TMP}, {L_ROWS}')
    e(f'v_bfe_u32 v{vw}, v0, 3, 3')
    e(f'v_mad_u32_u24 v{vw}, v{vw}, s{S_RS}, v{V_J}')
    e(f'v_add_u32 v{vw}, s{S_TMP}, v{vw}')
    e(f'v_and_b32 v{va}, 15, v0')
    e(f'v_bfe_u32 v{vb}, v0, 4, 2')
    e(f'v_lshlrev_b32 v{vb}, 4, v{vb}')
    e(f'v_mad_u32_u24 v{vb}, v{va}, s{S_RS}, v{vb}')
    e(f'v_add_u32 v{vb}, s{S_TMP}, v{vb}')
    e(f'v_and_b32 v{va}, 63, v0')
    e(f'v_lshlrev_b32 v{va}, 4, v{va}')
    e(f'v_add_u32 v{va}, {L_W}, v{va}')

def mfma_run(f0, f1, bfrag, pend, va):
    pend = list(pend)
    for f in range(f0, f1):
        ks, mt = f // 4, f % 4
        need = ['A%d' % f, 'B%d' % ks]
        idxs = [pend.index(n) for n in need if n in pend]
        if idxs:
            idx = max(idxs)
            rem = len(pend) - 1 - idx
            e(f's_waitcnt lgkmcnt({min(rem, 15)})')
            pend = pend[idx+1:]
        sl = 96 + 4*(f % 8)
        bq = bfrag(ks)
        e(f'v_mfma_f32_16x16x32_bf16 v[{ACCO+4*mt}:{ACCO+4*mt+3}], v[{sl}:{sl+3}], v[{bq}:{bq+3}], v[{ACCO+4*mt}:{ACCO+4*mt+3}]')
        if f + 8 < f1:
            e(f'ds_read_b128 v[{sl}:{sl+3}], v{va} offset:{(f+8)*1024}')
            pend.append('A%d' % (f+8))

def gen_main():
    pf = 'M'
    kernel_head('main_kernel')
    e(f's_cmp_ge_u32 s2, {NB}')
    e(f's_cbranch_scc1 {pf}_END2')
    stamp(0, True); stamp(1)
    e('s_load_dwordx2 s[4:5], s[0:1], 0')
    e('s_load_dwordx4 s[8:11], s[0:1], 40')
    e('s_load_dwordx2 s[12:13], s[0:1], 56')
    e('v_lshrrev_b32 v14, 6, v0')
    e('v_and_b32 v15, 7, v0')
    e(f'v_readfirstlane_b32 s{S_WAVE}, v14')
    e(f'v_lshlrev_b32 v{V_J}, 4, v15')
    e(f's_movk_i32 s{S_128}, 128')
    e(f's_mov_b32 s{S_HI}, 0xffff0000')
    e(f's_mov_b32 s{S_ROUND}, 0')
    e(f's_mov_b32 s{S_PASS}, 0')
    e(f's_mov_b32 s{S_POST}, 0')
    e(f's_mov_b32 s{S_DUM}, {L_DUMMY}')
    e(f's_mul_i32 s{S_ROW0}, s2, {R*128}')
    e(f's_movk_i32 s{S_RS}, {ROW_STRIDE}')
    tbl = {1: [3, 0, 1, 2, 4, 7, 6, 5, 11, 8, 9, 10, 12], 2: [9, 0, 1, 2, 10, 5, 4, 3, 11, 6, 7, 8, 12], 0: list(range(13))}[BAL]
    t64 = sum(v << (4*i) for i, v in enumerate(tbl))
    e(f's_mov_b32 s{S_T}, {hex(t64 & 0xffffffff)}')
    e(f's_mov_b32 s{S_T+1}, {hex(t64 >> 32)}')
    e(f's_lshl_b32 s{S_TMP}, s{S_WAVE}, 2')
    e(f's_lshr_b64 s[{S_T}:{S_T+1}], s[{S_T}:{S_T+1}], s{S_TMP}')
    e(f's_and_b32 s{S_PAIR}, s{S_T}, 15')
    e(f's_lshl_b32 s{S_PAIR}, s{S_PAIR}, 6')
    e(f's_add_u32 s{S_PAIR}, s{S_PAIR}, {L_DESC}')
    e('v_mov_b32 v14, 0')
    e(f'v_mov_b32 v15, {L_MAX}')
    e('ds_write_b32 v15, v14')
    e('v_and_b32 v15, 7, v0')
    e('v_lshlrev_b32 v15, 2, v15')
    e(f'ds_write_b32 v15, v14 offset:{L_SYNC}')
    e('s_waitcnt lgkmcnt(0)')
    stamp(2)
    if HD:
        e('s_mov_b32 s88, s10')
        e('s_mov_b32 s89, s11')
        e(f's_and_b32 s91, s2, 3')
        e(f's_cmp_eq_u32 s{S_WAVE}, 9')
        e('s_cselect_b32 s90, 1, 0')
        e('s_cmp_eq_u32 s91, 0')
        e('s_cselect_b32 s90, s90, 0')
        hd(4, 88, True); hd(5, 88)
    srd(S_WS, 12, 13, WS_SIZE)

    lab(f'{pf}_ROUND')
    e('v_lshrrev_b32 v100, 2, v0')
    e(f'v_lshlrev_b32 v14, {10 if ROWSEG else 2}, v100')
    e(f's_and_b32 s{S_TMP}, s2, 7')
    e(f's_lshl_b32 s{S_TMP}, s{S_TMP}, 5')
    e(f's_lshr_b32 s{S_TMP2}, s2, 3')
    e(f's_add_u32 s{S_TMP}, s{S_TMP}, s{S_TMP2}')
    e(f's_lshl_b32 s{S_TMP}, s{S_TMP}, {2 if ROWSEG else 10}')
    e(f's_add_u32 s{S_TMP}, s{S_TMP}, {hex(WS_SEG)}')
    e('v_mov_b32 v103, 0')
    e(f'v_cmp_gt_u32 vcc, {NC*4}, v0')
    e(f's_and_saveexec_b64 s[{S_T}:{S_T+1}], vcc')
    e(f'buffer_load_dword v103, v14, s[{S_WS}:{S_WS+3}], s{S_TMP} offen')
    e(f's_mov_b64 exec, s[{S_T}:{S_T+1}]')
    e(f's_or_b32 s{S_TMP}, s{S_PASS}, s{S_ROUND}')
    e(f's_cmp_lg_u32 s{S_TMP}, 0')
    e(f's_cbranch_scc1 {pf}_NOSRD')
    srd(S_TAB, 4, 5, N * 128)
    srd(S_X, 4, 5, N * 128)
    srd(S_T1, 12, 13, N * 128, WS_T1)
    srd(S_OUT, 8, 9, N * 128)
    if not WLATE:
        e('v_lshlrev_b32 v14, 4, v0')
        e(f's_mov_b32 s{S_TMP}, {hex(WS_WT)}')
        e(f'buffer_load_dwordx4 v[16:19], v14, s[{S_WS}:{S_WS+3}], s{S_TMP} offen')
        e(f's_add_u32 s{S_TMP}, s{S_TMP}, {IMG}')
        e(f'buffer_load_dwordx4 v[20:23], v14, s[{S_WS}:{S_WS+3}], s{S_TMP} offen')
    lab(f'{pf}_NOSRD')
    e('v_lshlrev_b32 v14, 2, v0')
    e('v_mov_b32 v15, 0')
    e('v_cmp_gt_u32 vcc, 512, v0')
    e(f's_and_saveexec_b64 s[{S_T}:{S_T+1}], vcc')
    e('ds_write_b32 v14, v15')
    e(f's_mov_b64 exec, s[{S_T}:{S_T+1}]')
    for i in range(4):
        e(f'v_mov_b32 v{88+i}, 0xffff')
    e('v_lshlrev_b32 v14, 4, v0')
    for i in range(4):
        e(f'ds_write_b128 v14, v[88:91] offset:{L_SORT + i*IMG}')
    e('v_and_b32 v102, 3, v0')
    e('v_lshlrev_b32 v102, 1, v102')
    e(f's_mul_i32 s{S_TMP}, s{S_ROUND}, {S}')
    e(f'v_add_u32 v102, s{S_TMP}, v102')
    e('v_mov_b32 v104, 1')
    e('s_waitcnt vmcnt(0)' if WLATE else 's_waitcnt vmcnt(2)')
    e(f's_or_b32 s{S_TMP}, s{S_PASS}, s{S_ROUND}')
    e(f's_cmp_eq_u32 s{S_TMP}, 0')
    e(f's_cbranch_scc1 {pf}_DW')
    e('s_waitcnt vmcnt(0)')
    lab(f'{pf}_DW')
    stamp(3)
    e('v_and_b32 v101, 0xffff, v103')
    e('v_lshrrev_b32 v103, 16, v103')
    e('v_add_u32 v101, v101, v102')
    e('v_lshlrev_b32 v101, 3, v101')
    e('v_lshl_add_u32 v101, v100, 15, v101')
    e('v_sub_u32 v105, v103, v102')
    for i in range(NIT):
        e(f'v_cmp_lt_i32 s[{S_M+4*i}:{S_M+4*i+1}], {8*i}, v105')
        e(f'v_cmp_lt_i32 s[{S_M+4*i+2}:{S_M+4*i+3}], {8*i+1}, v105')
    def b_load(i, w):
        e(f'buffer_load_dwordx4 v[{64+4*i}:{67+4*i}], v101, s[{S_WS}:{S_WS+3}], 0 offen offset:{64*i}')
    b_load.two = False
    masked_loop(pf, 'LD', b_load, 0)
    e('s_waitcnt lgkmcnt(0)')
    e('s_barrier')
    e(f'v_cmp_lt_u32 vcc, {S}, v103')
    e(f's_cbranch_vccz {pf}_NOMAX')
    e(f'v_mov_b32 v15, {L_MAX}')
    e('ds_max_u32 v15, v103')
    lab(f'{pf}_NOMAX')
    e('s_waitcnt vmcnt(0)')
    e(f's_or_b32 s{S_TMP}, s{S_PASS}, s{S_ROUND}')
    e(f's_cmp_lg_u32 s{S_TMP}, 0')
    e(f's_cbranch_scc1 {pf}_NOW')
    if WLATE:
        e('v_lshlrev_b32 v14, 4, v0')
        e(f's_mov_b32 s{S_TMP}, {hex(WS_WT)}')
        e(f'buffer_load_dwordx4 v[16:19], v14, s[{S_WS}:{S_WS+3}], s{S_TMP} offen')
        e(f's_add_u32 s{S_TMP}, s{S_TMP}, {IMG}')
        e(f'buffer_load_dwordx4 v[20:23], v14, s[{S_WS}:{S_WS+3}], s{S_TMP} offen')
        if not PFL: prefetch(PF2, PF2BASE, 127, 126)
    else:
        if TPF:
            e(f's_mov_b32 m0, {L_JUNK}')
            for k in range(TPF):
                lo = 64 + 2*k; mk = S_M + 2*k
                e(f's_mov_b64 exec, s[{mk}:{mk+1}]')
                e(f'v_cmp_gt_u32 vcc, {2*RA}, v{lo+1}')
                e(f'v_mad_u32_u16 v126, v{lo}, s{S_128}, 0')
                e('s_and_b64 exec, exec, vcc')
                e(f's_cbranch_execz {pf}_TP{k}')
                e(f'buffer_load_dword v126, s[{S_TAB}:{S_TAB+3}], 0 offen lds')
                lab(f'{pf}_TP{k}')
            e('s_mov_b64 exec, -1')
        else:
            prefetch(PF2, PF2BASE, 127, 126)
        e('v_lshlrev_b32 v14, 4, v0')
        e(f'v_add_u32 v14, {L_W}, v14')
        e('ds_write_b128 v14, v[16:19]')
        e(f'v_cmp_gt_u32 vcc, {1536-NT}, v0')
        e(f's_and_saveexec_b64 s[{S_T}:{S_T+1}], vcc')
        e(f'ds_write_b128 v14, v[20:23] offset:{IMG}')
        e(f's_mov_b64 exec, s[{S_T}:{S_T+1}]')
    lab(f'{pf}_NOW')
    def b_atom(i, w):
        r = 65 + 4*i + 2*w
        e(f'v_lshlrev_b32 v{r}, 2, v{r}')
        e(f'ds_add_rtn_u32 v{88+2*i+w}, v{r}, v104')
    masked_loop(pf, 'AT', b_atom)
    e('s_waitcnt lgkmcnt(0)')
    e('s_barrier')
    stamp(5)
    if PFL:
        e(f's_or_b32 s{S_TMP}, s{S_PASS}, s{S_ROUND}')
        e(f's_cmp_lg_u32 s{S_TMP}, 0')
        e(f's_cbranch_scc1 {pf}_NOPFL')
        prefetch(PF2, PF2BASE, 127, 126)
        lab(f'{pf}_NOPFL')
    e(f's_cmp_lg_u32 s{S_WAVE}, {NW-1}')
    e(f's_cbranch_scc1 {pf}_SCAN_DONE')
    e('v_and_b32 v106, 63, v0')
    e('v_lshlrev_b32 v14, 5, v106')
    e('ds_read_b128 v[108:111], v14')
    e('ds_read_b128 v[112:115], v14 offset:16')
    e('v_mov_b32 v60, 0')
    e('v_mov_b32 v61, 0')
    e('v_lshlrev_b32 v107, 3, v106')
    e(f'ds_write_b64 v107, v[60:61] offset:{L_H2}')
    e('s_waitcnt lgkmcnt(1)')
    for i in range(8):
        e(f'v_add_u32 v{108+i}, 3, v{108+i}')
        e(f'v_and_b32 v{108+i}, -4, v{108+i}')
    e('v_mov_b32 v48, 0')
    e('v_mov_b32 v49, v108')
    for i in range(2, 8):
        e(f'v_add_u32 v{48+i}, v{47+i}, v{107+i}')
    e('v_add_u32 v56, v55, v115')
    e('v_mov_b32 v57, v56')
    wave_scan(57)
    e('v_sub_u32 v58, v57, v56')
    for i in range(8):
        e(f'v_add_u32 v{48+i}, v58, v{48+i}')
    e(f'ds_write_b128 v14, v[48:51] offset:{L_OFF}')
    e(f'ds_write_b128 v14, v[52:55] offset:{L_OFF+16}')
    e('s_waitcnt lgkmcnt(0)')
    lab(f'{pf}_SCAN_DONE')
    e('s_barrier')
    stamp(6)
    def b_rd(i, w):
        r = 65 + 4*i + 2*w
        e(f'ds_read_b32 v{r}, v{r} offset:{L_OFF}')
    masked_loop(pf, 'RD', b_rd)
    e('s_waitcnt lgkmcnt(0)')
    def b_wr(i, w):
        r = 65 + 4*i + 2*w
        e(f'v_add_lshl_u32 v{r}, v{r}, v{88+2*i+w}, 2')
        e(f'ds_write_b32 v{r}, v{r-1} offset:{L_SORT}')
    masked_loop(pf, 'WR', b_wr)
    e(f's_cmp_lg_u32 s{S_WAVE}, {NW-1}')
    e(f's_cbranch_scc1 {pf}_DESC_DONE')
    e(f's_or_b32 s{S_TMP}, s{S_PASS}, s{S_ROUND}')
    e(f's_cmp_lg_u32 s{S_TMP}, 0')
    e(f's_cbranch_scc1 {pf}_DESC_REDO')
    e('v_cmp_gt_u32 vcc, 50, v106')
    e(f's_mov_b64 s[{S_T}:{S_T+1}], vcc')
    e(f'v_cmp_gt_u32 vcc, {RA//4}, v106')
    e('v_mov_b32 v126, 127')
    e('v_mov_b32 v15, 63')
    e('v_cndmask_b32 v126, v126, v15, vcc')
    e(f's_mov_b64 exec, s[{S_T}:{S_T+1}]')
    for i in range(4):
        a0 = 108 + 2*i; a1 = a0 + 1
        e(f'v_lshrrev_b32 v{a0}, 2, v{a0}')
        e(f'v_lshrrev_b32 v{a1}, 2, v{a1}')
        e(f'v_min_u32 v15, 7, v{a0}')
        e(f'v_min_u32 v59, 7, v{a1}')
        e(f'v_lshl_add_u32 v15, v15, 3, v59')
        e(f'v_sub_u32 v15, v126, v15')
        e(f'v_lshlrev_b32 v{116+i}, 2, v15')
        e(f'ds_add_rtn_u32 v{120+i}, v{116+i}, v104 offset:{L_H2}')
    e('s_mov_b64 exec, -1')
    e('s_waitcnt lgkmcnt(0)')
    e(f'ds_read_b64 v[124:125], v107 offset:{L_H2}')
    e('s_waitcnt lgkmcnt(0)')
    e('v_add_u32 v125, v124, v125')
    e('v_mov_b32 v62, v125')
    wave_scan(62)
    e('v_sub_u32 v62, v62, v125')
    e('v_cmp_lt_u32 vcc, 31, v106')
    e('v_mov_b32 v63, 0')
    e('v_mov_b32 v15, 8')
    e('v_cndmask_b32 v63, v63, v15, vcc')
    e('v_add_u32 v62, v62, v63')
    e('v_add_u32 v63, v62, v124')
    e(f'ds_write_b64 v107, v[62:63] offset:{L_H2+512}')
    e('s_mov_b64 exec, 0xff')
    e(f'v_mov_b32 v60, {R}')
    e('v_mov_b32 v61, 0')
    e('v_lshlrev_b32 v15, 3, v106')
    e(f'ds_write_b64 v15, v[60:61] offset:{L_DESC + RA*8}')
    e(f's_mov_b64 exec, s[{S_T}:{S_T+1}]')
    e('s_waitcnt lgkmcnt(0)')
    for i in range(4):
        e(f'ds_read_b32 v{116+i}, v{116+i} offset:{L_H2+512}')
    for i in range(4):
        e(f'v_lshl_add_u32 v15, v106, 2, {i}')
        e(f'v_lshl_or_b32 v{32+2*i}, v{48+2*i}, 6, v15')
        e(f'v_lshl_or_b32 v{33+2*i}, v{109+2*i}, 16, v{108+2*i}')
    e('s_waitcnt lgkmcnt(0)')
    for i in range(4):
        e(f'v_add_lshl_u32 v{116+i}, v{116+i}, v{120+i}, 3')
        e(f'ds_write_b64 v{116+i}, v[{32+2*i}:{33+2*i}] offset:{L_DESC}')
    e('s_mov_b64 exec, -1')
    e(f's_branch {pf}_DESC_DONE')
    lab(f'{pf}_DESC_REDO')
    e('v_cmp_gt_u32 vcc, 52, v106')
    e('s_mov_b64 exec, vcc')
    e(f'ds_read_b128 v[108:111], v14 offset:{L_DESC}')
    e(f'ds_read_b128 v[112:115], v14 offset:{L_DESC+16}')
    e('s_waitcnt lgkmcnt(0)')
    for i in range(4):
        d0 = 108 + 2*i
        e(f'v_and_b32 v{d0}, 255, v{d0}')
        e(f'v_lshlrev_b32 v15, 3, v{d0}')
        e(f'v_add_u32 v15, {L_OFF}, v15')
        e(f'ds_read2_b32 v[{48+4*i}:{49+4*i}], v15 offset0:0 offset1:1')
        e(f'ds_read_b32 v{50+4*i}, v15 offset:8')
    e('s_waitcnt lgkmcnt(0)')
    for i in range(4):
        d0 = 108 + 2*i
        e(f'v_lshl_or_b32 v{d0}, v{48+4*i}, 6, v{d0}')
        e(f'v_sub_u32 v15, v{49+4*i}, v{48+4*i}')
        e(f'v_lshrrev_b32 v15, 2, v15')
        e(f'v_sub_u32 v{d0+1}, v{50+4*i}, v{49+4*i}')
        e(f'v_lshl_or_b32 v{d0+1}, v{d0+1}, 14, v15')
    e(f'ds_write_b128 v14, v[108:111] offset:{L_DESC}')
    e(f'ds_write_b128 v14, v[112:115] offset:{L_DESC+16}')
    e('s_mov_b64 exec, -1')
    lab(f'{pf}_DESC_DONE')
    if WLATE:
        e(f's_or_b32 s{S_TMP}, s{S_PASS}, s{S_ROUND}')
        e(f's_cmp_lg_u32 s{S_TMP}, 0')
        e(f's_cbranch_scc1 {pf}_NOW2')
        e('v_lshlrev_b32 v14, 4, v0')
        e(f'v_add_u32 v14, {L_W}, v14')
        e(f's_waitcnt vmcnt({1 if PF2 else 0})')
        e('ds_write_b128 v14, v[16:19]')
        e(f'v_cmp_gt_u32 vcc, {1536-NT}, v0')
        e(f's_and_saveexec_b64 s[{S_T}:{S_T+1}], vcc')
        e(f'ds_write_b128 v14, v[20:23] offset:{IMG}')
        e(f's_mov_b64 exec, s[{S_T}:{S_T+1}]')
        lab(f'{pf}_NOW2')
    e('s_waitcnt lgkmcnt(0)')
    e('s_barrier')
    stamp(7)
    hd(6, 88)

    BOFF = (RA + 8) * 8
    lab(f'{pf}_PHASE_B')
    e(f's_mov_b32 s{S_PH}, 0')
    e(f'v_mov_b32 v15, {L_MAX}')
    e('ds_read_b32 v6, v15')
    e('v_and_b32 v14, 1, v0')
    e(f's_mov_b32 s{S_TMP}, 0x0c0c0302')
    e(f's_mov_b32 s{S_TMP2}, 0x03020c0c')
    e('v_cmp_eq_u32 vcc, 0, v14')
    e(f'v_mov_b32 v14, s{S_TMP2}')
    e(f'v_mov_b32 v15, s{S_TMP}')
    e('v_cndmask_b32 v14, v14, v15, vcc')
    e('v_and_b32 v15, 2, v0')
    e('v_cmp_eq_u32 vcc, 0, v15')
    e('v_mov_b32 v15, 0x0c0c0c0c')
    e('s_nop 0')
    e(f'v_cndmask_b32 v{V_SEL0}, v15, v14, vcc')
    e(f'v_cndmask_b32 v{V_SEL1}, v14, v15, vcc')
    e('s_waitcnt lgkmcnt(0)')
    e(f'v_readfirstlane_b32 s{S_NR}, v6')
    lab(f'{pf}_SEG')
    e('v_bfe_u32 v15, v0, 3, 3')
    e(f'v_lshl_add_u32 v14, v15, 3, s{S_PAIR}')
    e('ds_read_b64 v[8:9], v14')
    e(f'ds_read_b64 v[10:11], v14 offset:{BOFF}')
    e(f's_cmp_lg_u32 s{S_PASS}, 0')
    e(f's_cbranch_scc1 {pf}_SEG2')
    e(f's_setprio {P1S0}')
    e(f's_movk_i32 s{S_INC}, 32')
    e('s_waitcnt lgkmcnt(0)')
    e('v_and_b32 v14, 255, v8')
    e('v_and_b32 v15, 255, v10')
    e(f'v_lshl_or_b32 v{V_ROWS}, v15, 16, v14')
    e(f's_cmp_eq_u32 s{S_PH}, 0')
    e(f's_cbranch_scc1 {pf}_SEG1A')
    e(f's_setprio {P1S1}')
    e('v_mov_b32 v8, v10')
    e('v_mov_b32 v9, v11')
    lab(f'{pf}_SEG1A')
    e(f'v_lshrrev_b32 v{V_PA}, 8, v8')
    e(f'v_lshlrev_b32 v{V_PA}, 4, v{V_PA}')
    e(f'v_add_u32 v{V_PA}, {L_SORT}, v{V_PA}')
    e('v_and_b32 v14, 0xffff, v9')
    e('v_lshrrev_b32 v15, 16, v9')
    e('v_add_u32 v14, v14, v15')
    e(f'v_lshl_add_u32 v{V_EA}, v14, 4, v{V_PA}')
    e(f'v_add_u32 v{V_PB}, 16, v{V_PA}')
    e(f'v_mov_b32 v{V_EB}, v{V_EA}')
    e(f's_branch {pf}_GW_OK')
    lab(f'{pf}_SEG2')
    e(f's_movk_i32 s{S_INC}, 16')
    e(f's_lshl_b32 s{S_TMP}, s{S_PH}, 2')
    e(f's_add_u32 s{S_TMP}, s{S_TMP}, {L_SYNC+8}')
    e(f'v_mov_b32 v14, s{S_TMP}')
    e('ds_read_b32 v15, v14')
    e('s_waitcnt lgkmcnt(0)')
    e(f'v_readfirstlane_b32 s{S_TMP2}, v15')
    for (D, P, EE) in ((8, V_PA, V_EA), (10, V_PB, V_EB)):
        e(f'v_lshrrev_b32 v{P}, 8, v{D}')
        e(f'v_lshlrev_b32 v{P}, 4, v{P}')
        e(f'v_add_u32 v{P}, {L_SORT}, v{P}')
        e(f'v_and_b32 v{EE}, 0xffff, v{D+1}')
        e(f'v_lshl_add_u32 v{EE}, v{EE}, 4, v{P}')
    e(f's_setprio {P2S0}')
    e(f's_cmp_eq_u32 s{S_PH}, 0')
    e(f's_cbranch_scc1 {pf}_SEG2A')
    e(f's_setprio {P2S1}')
    for (D, P, EE) in ((8, V_PA, V_EA), (10, V_PB, V_EB)):
        e(f'v_mov_b32 v{P}, v{EE}')
        e(f'v_lshrrev_b32 v{D+1}, 16, v{D+1}')
        e(f'v_lshl_add_u32 v{EE}, v{D+1}, 4, v{EE}')
    lab(f'{pf}_SEG2A')
    e(f's_cmp_lg_u32 s{S_TMP2}, 0')
    e(f's_cbranch_scc1 {pf}_GW_OK')
    e(f's_cmp_eq_u32 s{S_POST}, 0')
    e(f's_cbranch_scc1 {pf}_RET1')
    e(f's_mov_b32 s{S_RET}, 1')
    e(f's_mov_b32 s{S_NOUT}, 0')
    e(f's_branch {pf}_POSTWORK')
    lab(f'{pf}_RET1')
    e(f's_lshl_b32 s{S_TMP}, s{S_PH}, 2')
    e(f's_add_u32 s{S_TMP}, s{S_TMP}, {L_SYNC+8}')
    e(f'v_mov_b32 v14, s{S_TMP}')
    e('v_mov_b32 v15, 1')
    e('v_and_b32 v64, 15, v0')
    e('v_lshlrev_b32 v64, 2, v64')
    e('s_mov_b64 exec, 1')
    e('ds_add_rtn_u32 v15, v14, v15 offset:8')
    e(f's_mov_b32 s{S_SPIN}, 0')
    e('s_waitcnt lgkmcnt(0)')
    e(f'v_readfirstlane_b32 s{S_TMP}, v15')
    e(f's_cmp_lg_u32 s{S_TMP}, 0')
    e(f's_cbranch_scc1 {pf}_GW_SPIN')
    e(f's_lshl_b32 s{S_TMP2}, s{S_PH}, 13')
    e(f's_add_u32 s{S_TMP2}, s{S_TMP2}, {hex(WS_BAR+2048)}')
    e(f's_and_b32 s{S_TMP}, s2, 31')
    e(f's_lshl_b32 s{S_TMP}, s{S_TMP}, 7')
    e(f's_add_u32 s{S_TMP2}, s{S_TMP2}, s{S_TMP}')
    if SCAL:
        lab(f'{pf}_POLL')
        e(f's_mov_b32 s{S_TMP}, 0')
        e(f's_atomic_add s{S_TMP}, s[12:13], s{S_TMP2} glc')
        e('s_waitcnt lgkmcnt(0)')
        e(f's_add_u32 s{S_SPIN}, s{S_SPIN}, 1')
        e(f's_cmp_ge_u32 s{S_TMP}, {NB if DIRECT else 16}')
        e(f's_cbranch_scc1 {pf}_POLLED')
    else:
        e('s_mov_b64 exec, 0xffff')
        lab(f'{pf}_POLL')
        e(f'buffer_load_dword v65, v64, s[{S_WS}:{S_WS+3}], s{S_TMP2} offen sc1')
        e('s_waitcnt vmcnt(0)')
        e('v_cmp_eq_u32 vcc, 0, v65')
        e(f's_add_u32 s{S_SPIN}, s{S_SPIN}, 1')
        e(f's_cbranch_vccz {pf}_POLLED')
    e(f's_cmp_ge_u32 s{S_SPIN}, {SPIN_MAX}')
    e(f's_cbranch_scc1 {pf}_POLLED')
    e(f's_sleep {SLP}')
    e(f's_branch {pf}_POLL')
    lab(f'{pf}_POLLED')
    if HD:
        e('s_mov_b32 s92, s90')
        e('s_cmp_eq_u32 s91, 0')
        e('s_cselect_b32 s90, 1, 0')
        e(f's_cmp_lg_u32 s{S_PH}, 0')
        e(f's_cbranch_scc1 {pf}_HD1')
        hd(9, 88, True); hd(10, 88)
        e(f's_branch {pf}_HD2')
        lab(f'{pf}_HD1')
        hd(11, 88, True); hd(12, 88)
        lab(f'{pf}_HD2')
        e('s_mov_b32 s90, s92')
    e('v_mov_b32 v15, 1')
    e('ds_write_b32 v14, v15')
    e(f's_branch {pf}_GW_DONE')
    lab(f'{pf}_GW_SPIN')
    e('s_sleep 1')
    e('ds_read_b32 v15, v14')
    e('s_waitcnt lgkmcnt(0)')
    e(f'v_readfirstlane_b32 s{S_TMP}, v15')
    e(f's_cmp_eq_u32 s{S_TMP}, 0')
    e(f's_cbranch_scc1 {pf}_GW_SPIN')
    lab(f'{pf}_GW_DONE')
    e('s_mov_b64 exec, -1')
    e('s_waitcnt lgkmcnt(0)')
    lab(f'{pf}_GW_OK')
    if INSTR:
        e(f's_lshl_b32 s{S_TMP}, s{S_PASS}, 1')
        e(f's_or_b32 s{S_TMP}, s{S_TMP}, s{S_PH}')
        e(f's_cmp_lg_u32 s{S_TMP}, 2')
        e(f's_cbranch_scc1 {pf}_ST9')
        stamp(9)
        lab(f'{pf}_ST9')
        e(f's_cmp_lg_u32 s{S_TMP}, 3')
        e(f's_cbranch_scc1 {pf}_ST4')
        stamp(4)
        lab(f'{pf}_ST4')
    next_entries(0, 0)
    next_entries(0, 1)
    e(f's_or_b64 s[{S_T}:{S_T+1}], vcc, s[{S_MASKB}:{S_MASKB+1}]')
    e(f's_cselect_b32 s{S_TMP2}, 1, 0')
    next_entries(1, 0)
    next_entries(1, 1)
    e(f's_or_b64 s[{S_T}:{S_T+1}], vcc, s[{S_MASKB}:{S_MASKB+1}]')
    e(f's_cselect_b32 s{S_TMP}, 2, 0')
    e(f's_or_b32 s{S_NST}, s{S_TMP}, s{S_TMP2}')
    e(f's_bitcmp1_b32 s{S_NST}, 0')
    e(f's_cbranch_scc0 {pf}_PRO_DONE')
    e('s_waitcnt lgkmcnt(3)')
    issue(0, 0)
    e('s_waitcnt lgkmcnt(2)')
    issue(0, 1)
    e(f's_bitcmp1_b32 s{S_NST}, 1')
    e(f's_cbranch_scc0 {pf}_PRO_DONE')
    e('s_waitcnt lgkmcnt(1)')
    issue(1, 0)
    e('s_waitcnt lgkmcnt(0)')
    issue(1, 1)
    lab(f'{pf}_PRO_DONE')
    e(f's_cmp_eq_u32 s{S_POST}, 0')
    e(f's_cbranch_scc1 {pf}_RET2')
    e(f's_mov_b32 s{S_RET}, 2')
    e(f's_mov_b32 s{S_NOUT}, s{S_NST}')
    e(f's_branch {pf}_POSTWORK')
    lab(f'{pf}_RET2')
    e(f's_and_b32 s{S_TMP}, s{S_PASS}, s{S_PH}')
    e(f's_cmp_lg_u32 s{S_TMP}, 0')
    e(f's_cbranch_scc1 {pf}_GO')
    for r in range(16):
        e(f'v_mov_b32 v{ACC[0]+r}, 0')
    e(f's_cmp_eq_u32 s{S_ROUND}, 0')
    e(f's_cbranch_scc1 {pf}_GO')
    part_addrs()
    e(f's_cmp_lg_u32 s{S_PASS}, 0')
    e(f's_cbranch_scc1 {pf}_LP2')
    e(f's_cmp_eq_u32 s{S_PH}, 0')
    e(f's_cbranch_scc1 {pf}_LP1')
    e('v_mov_b32 v14, v15')
    e(f's_branch {pf}_LP1')
    lab(f'{pf}_LP2')
    e(f'buffer_load_dwordx4 v[40:43], v15, s[{S_WS}:{S_WS+3}], s{S_TMP} offen')
    e(f'buffer_load_dwordx4 v[44:47], v15, s[{S_WS}:{S_WS+3}], s{S_TMP} offen offset:16')
    lab(f'{pf}_LP1')
    e(f'buffer_load_dwordx4 v[32:35], v14, s[{S_WS}:{S_WS+3}], s{S_TMP} offen')
    e(f'buffer_load_dwordx4 v[36:39], v14, s[{S_WS}:{S_WS+3}], s{S_TMP} offen offset:16')
    e('s_waitcnt vmcnt(0)')
    lab(f'{pf}_GO')
    e(f's_cmp_eq_u32 s{S_NST}, 0')
    e(f's_cbranch_scc1 {pf}_SEG_END')
    e(f's_cmp_eq_u32 s{S_NST}, 1')
    e(f's_cbranch_scc1 {pf}_DRAIN0')
    lab(f'{pf}_LOOP')
    for p in (0, 1):
        e('s_waitcnt vmcnt(12)')
        consume(p, 0)
        next_entries(p, 0)
        e('s_waitcnt vmcnt(8)')
        consume(p, 1)
        next_entries(p, 1)
        e(f's_or_b64 s[{S_T}:{S_T+1}], vcc, s[{S_MASKB}:{S_MASKB+1}]')
        e(f's_cbranch_scc0 {pf}_DRAIN{p^1}')
        e('s_waitcnt lgkmcnt(1)')
        issue(p, 0)
        e('s_waitcnt lgkmcnt(0)')
        issue(p, 1)
    e(f's_branch {pf}_LOOP')
    for q in (1, 0):
        lab(f'{pf}_DRAIN{q}')
        e('s_waitcnt vmcnt(4)')
        consume(q, 0)
        e('s_waitcnt vmcnt(0)')
        consume(q, 1)
        if q == 1:
            e(f's_branch {pf}_SEG_END')
    lab(f'{pf}_SEG_END')
    e('s_nop 4')
    e('s_waitcnt lgkmcnt(0)')
    e(f's_add_u32 s{S_TMP}, s{S_ROUND}, 1')
    e(f's_mul_i32 s{S_TMP}, s{S_TMP}, {S}')
    e(f's_cmp_ge_u32 s{S_TMP}, s{S_NR}')
    e(f's_cselect_b32 s{S_FIRST}, 1, 0')
    e(f's_cmp_lg_u32 s{S_PASS}, 0')
    e(f's_cbranch_scc1 {pf}_END_P2')
    for r in range(8):
        e(f'v_add_f32 v{32+r}, v{32+r}, v{40+r}')
    e(f's_cmp_eq_u32 s{S_WAVE}, {NW-1}')
    e(f's_cselect_b32 s{S_TMP}, 1, 0')
    e(f's_andn2_b32 s{S_TMP}, s{S_TMP}, s{S_PH}')
    e(f's_cmp_lg_u32 s{S_TMP}, 0')
    e(f's_cbranch_scc1 {pf}_P1NEXT')
    e(f's_cmp_lg_u32 s{S_FIRST}, 0')
    e(f's_cbranch_scc1 {pf}_PUB')
    part_addrs()
    e(f's_cmp_eq_u32 s{S_PH}, 0')
    e(f's_cbranch_scc1 {pf}_SP1')
    e('v_mov_b32 v14, v15')
    lab(f'{pf}_SP1')
    e(f'buffer_store_dwordx4 v[32:35], v14, s[{S_WS}:{S_WS+3}], s{S_TMP} offen')
    e(f'buffer_store_dwordx4 v[36:39], v14, s[{S_WS}:{S_WS+3}], s{S_TMP} offen offset:16')
    e('s_waitcnt vmcnt(0)')
    e(f's_branch {pf}_P1NEXT')
    lab(f'{pf}_PUB')
    e(f's_cmp_lg_u32 s{S_PH}, 0')
    e(f's_cbranch_scc1 {pf}_PUBB')
    for d in range(4):
        e(f'v_cvt_pk_bf16_f32 v{24+d}, v{32+2*d}, v{33+2*d}')
    e(f'v_mad_u32_u16 v14, v{V_ROWS}, s{S_128}, v{V_J}')
    e(f'v_add_u32 v14, s{S_ROW0}, v14')
    e(f'buffer_store_dwordx4 v[24:27], v14, s[{S_T1}:{S_T1+3}], 0 offen sc1')
    e(f'buffer_load_dwordx4 v[16:19], v14, s[{S_X}:{S_X+3}], 0 offen')
    if 'sig' in XP: stamp(7)
    e(f's_branch {pf}_SIG')
    lab(f'{pf}_PUBB')
    stamp(8)
    hd(8, 88); hd(7, 88, True)
    for d in range(4):
        e(f'v_cvt_pk_bf16_f32 v{28+d}, v{32+2*d}, v{33+2*d}')
    e(f'v_mad_u32_u16 v14, v{V_ROWS}, s{S_128}, v{V_J} op_sel:[1,0,0,0]')
    e(f'v_add_u32 v14, s{S_ROW0}, v14')
    e(f'buffer_store_dwordx4 v[28:31], v14, s[{S_T1}:{S_T1+3}], 0 offen sc1')
    e(f'buffer_load_dwordx4 v[20:23], v14, s[{S_X}:{S_X+3}], 0 offen')
    lab(f'{pf}_SIG')
    e(f's_add_u32 s{S_POST}, s{S_PH}, 1')
    e(f's_mov_b32 s{S_RET}, 4')
    e(f's_mov_b32 s{S_NOUT}, 0')
    e(f's_branch {pf}_POSTWORK')
    lab(f'{pf}_P1NEXT')
    e(f's_cmp_lg_u32 s{S_PH}, 0')
    e(f's_cbranch_scc1 {pf}_P1DONE')
    e(f's_mov_b32 s{S_PH}, 1')
    gate('A', 0, KA)
    e(f's_branch {pf}_SEG')
    lab(f'{pf}_P1DONE')
    e(f's_cmp_lg_u32 s{S_FIRST}, 0')
    e(f's_cbranch_scc1 {pf}_TOP2')
    lab(f'{pf}_NEXTROUND')
    e(f's_add_u32 s{S_ROUND}, s{S_ROUND}, 1')
    e('s_waitcnt vmcnt(0) lgkmcnt(0)')
    e('s_barrier')
    e(f's_branch {pf}_ROUND')
    lab(f'{pf}_TOP2')
    for i in range(4):
        e(f's_mov_b32 s{S_TAB+i}, s{S_T1+i}')
    e(f's_mov_b32 s{S_PASS}, 1')
    e(f's_mov_b32 s{S_ROUND}, 0')
    e(f's_mov_b32 s{S_PH}, 0')
    gate('B', 1, KB)
    e(f's_cmp_eq_u32 s{S_NR}, 0')
    e(f's_cbranch_scc1 {pf}_SEG')
    e(f's_mov_b32 s{S_RET}, 3')
    e(f's_mov_b32 s{S_NOUT}, 0')
    e(f's_branch {pf}_POSTWORK')
    lab(f'{pf}_RET3')
    e('s_waitcnt lgkmcnt(0)')
    e('s_barrier')
    e(f's_branch {pf}_ROUND')

    def wait3(k, tag):
        e(f's_cmp_eq_u32 s{S_NOUT}, 3')
        e(f's_cbranch_scc1 {pf}_W16{tag}')
        e(f's_cmp_eq_u32 s{S_NOUT}, 1')
        e(f's_cbranch_scc1 {pf}_W8{tag}')
        e(f's_waitcnt vmcnt({k})')
        lab(f'{pf}_W8{tag}')
        e(f's_waitcnt vmcnt({8+k})')
        lab(f'{pf}_W16{tag}')
        e(f's_waitcnt vmcnt({16+k})')
    lab(f'{pf}_POSTWORK')
    e(f's_cmp_eq_u32 s{S_POST}, 3')
    e(f's_cbranch_scc1 {pf}_PGEMM')
    e(f's_sub_u32 s{S_POST}, s{S_POST}, 1')
    e('v_mov_b32 v33, 1')
    e(f's_lshl_b32 s{S_TMP}, s{S_POST}, 2')
    e(f's_add_u32 s{S_TMP}, s{S_TMP}, {L_SYNC}')
    e(f'v_mov_b32 v34, s{S_TMP}')
    e(f's_lshl_b32 s{S_TMP2}, s{S_POST}, 13')
    e(f's_add_u32 s{S_TMP2}, s{S_TMP2}, {hex(WS_BAR)}')
    e(f's_and_b32 s{S_SPIN}, s2, 15')
    e(f's_lshl_b32 s{S_TMP}, s{S_SPIN}, 7')
    e(f's_add_u32 s{S_T}, s{S_TMP}, s{S_TMP2}')
    e(f's_cmp_lt_u32 s{S_SPIN}, {NB % 16}')
    e(f's_cselect_b32 s{S_SPIN}, {NB//16}, {NB//16 - 1}')
    e('v_and_b32 v36, 31, v0')
    e('v_lshlrev_b32 v36, 7, v36')
    e('s_waitcnt vmcnt(1)')
    e('s_mov_b64 exec, 1')
    e('ds_add_rtn_u32 v35, v34, v33')
    e('s_waitcnt lgkmcnt(0)')
    e(f'v_readfirstlane_b32 s{S_TMP}, v35')
    e(f's_sub_u32 s{S_TMP}, s{S_TMP}, s{S_POST}')
    e(f's_cmp_lg_u32 s{S_TMP}, 11')
    e(f's_cbranch_scc1 {pf}_NOSIG')
    if not DIRECT:
        e(f's_mov_b32 s{S_TMP}, 1')
        e(f's_atomic_add s{S_TMP}, s[12:13], s{S_T} glc')
        e('s_waitcnt lgkmcnt(0)')
        e(f's_cmp_lg_u32 s{S_TMP}, s{S_SPIN}')
        e(f's_cbranch_scc1 {pf}_NOSIG')
    e('s_mov_b32 exec_lo, -1')
    e(f'buffer_atomic_add v33, v36, s[{S_WS}:{S_WS+3}], s{S_TMP2} offen offset:2048')
    e('s_nop 1')
    lab(f'{pf}_NOSIG')
    e('s_mov_b64 exec, -1')
    e(f's_mul_i32 s{S_POST}, s{S_POST}, 3')
    e(f's_branch {pf}_P1NEXT')
    lab(f'{pf}_PGEMM')
    e(f's_mov_b32 s{S_POST}, 0')
    tile_regs(14, 15, 6)
    e('ds_write_b128 v14, v[24:27] offset:128')
    e(f'ds_write_b128 v14, v[28:31] offset:{8*ROW_STRIDE+128}')
    e('s_waitcnt vmcnt(17)')
    wait3(0, 'b')
    e('ds_write_b128 v14, v[16:19]')
    e(f'ds_write_b128 v14, v[20:23] offset:{8*ROW_STRIDE}')
    e('s_waitcnt lgkmcnt(0)')
    for r in range(16):
        e(f'v_mov_b32 v{ACCO+r}, 0')
    gemm_steps(range(4), 15, 6, 32, [36, 40, 44], lambda ks: (ks >> 1) * 128)
    lab(f'{pf}_POSTEND')
    e(f's_cmp_eq_u32 s{S_RET}, 2')
    e(f's_cbranch_scc1 {pf}_RET2')
    e(f's_cmp_eq_u32 s{S_RET}, 1')
    e(f's_cbranch_scc1 {pf}_RET1')
    e(f's_cmp_eq_u32 s{S_RET}, 4')
    e(f's_cbranch_scc1 {pf}_P1NEXT')
    e(f's_branch {pf}_RET3')
    lab(f'{pf}_END_P2')
    e(f's_cmp_lg_u32 s{S_PH}, 0')
    e(f's_cbranch_scc1 {pf}_P2DONE')
    if 'p2' in XP: stamp(7)
    e(f's_mov_b32 s{S_PH}, 1')
    e(f's_branch {pf}_SEG')
    lab(f'{pf}_P2DONE')
    e(f's_cmp_lg_u32 s{S_FIRST}, 0')
    e(f's_cbranch_scc1 {pf}_FINAL2')
    part_addrs()
    e(f'buffer_store_dwordx4 v[40:43], v15, s[{S_WS}:{S_WS+3}], s{S_TMP} offen')
    e(f'buffer_store_dwordx4 v[44:47], v15, s[{S_WS}:{S_WS+3}], s{S_TMP} offen offset:16')
    e(f's_cmp_eq_u32 s{S_WAVE}, {NW-1}')
    e(f's_cbranch_scc1 {pf}_NEXTROUND')
    e(f'buffer_store_dwordx4 v[32:35], v14, s[{S_WS}:{S_WS+3}], s{S_TMP} offen')
    e(f'buffer_store_dwordx4 v[36:39], v14, s[{S_WS}:{S_WS+3}], s{S_TMP} offen offset:16')
    e(f's_branch {pf}_NEXTROUND')

    lab(f'{pf}_FINAL2')
    if 'sig' not in XP: stamp(2)
    tile_regs(14, 15, 94)
    e('ds_read_b128 v[64:67], v14')
    e(f'ds_read_b128 v[68:71], v14 offset:{8*ROW_STRIDE}')
    e('v_and_b32 v93, 7, v0')
    e(f'v_lshl_add_u32 v93, v93, 3, s{S_PAIR}')
    e('v_bfe_u32 v92, v0, 3, 1')
    e(f'v_mul_u32_u24 v92, {(RA+8)*8}, v92')
    e('v_add_u32 v93, v93, v92')
    e('ds_read_b32 v93, v93')
    for f in range(8):
        e(f'ds_read_b128 v[{96+4*f}:{99+4*f}], v94 offset:{(16+f)*1024}')
    e('s_waitcnt lgkmcnt(9)')
    for h in range(2):
        for d in range(4):
            xs = 64 + 4*h + d
            e(f'v_lshlrev_b32 v88, 16, v{xs}')
            e(f'v_and_b32 v89, s{S_HI}, v{xs}')
            e(f'v_fma_f32 v88, 2.0, v{ACC[h]+2*d}, -v88')
            e(f'v_fma_f32 v89, 2.0, v{ACC[h]+2*d+1}, -v89')
            e(f'v_cvt_pk_bf16_f32 v{80+4*h+d}, v88, v89')
    e('ds_write_b128 v14, v[80:83] offset:128')
    e(f'ds_write_b128 v14, v[84:87] offset:{8*ROW_STRIDE+128}')
    e('ds_read_b128 v[72:75], v15 offset:128')
    e('ds_read_b128 v[76:79], v15 offset:192')
    mfma_run(16, 24, lambda ks: 72 + 4*(ks-4), ['d'] + ['A%d' % i for i in range(16, 24)] + ['w', 'w', 'B4', 'B5'], 94)
    e('v_and_b32 v93, 255, v93')
    e('v_bfe_u32 v14, v0, 4, 2')
    e('v_lshlrev_b32 v14, 5, v14')
    e('v_lshl_add_u32 v14, v93, 7, v14')
    e(f'v_add_u32 v14, s{S_ROW0}, v14')
    e(f'v_cmp_gt_u32 vcc, {R}, v93')
    e('s_and_b64 exec, exec, vcc')
    e('s_nop 7')
    for mt in range(4):
        e(f'v_cvt_pk_bf16_f32 v{64+2*mt}, v{ACCO+4*mt}, v{ACCO+4*mt+1}')
        e(f'v_cvt_pk_bf16_f32 v{65+2*mt}, v{ACCO+4*mt+2}, v{ACCO+4*mt+3}')
    e(f'buffer_store_dwordx4 v[64:67], v14, s[{S_OUT}:{S_OUT+3}], 0 offen')
    e(f'buffer_store_dwordx4 v[68:71], v14, s[{S_OUT}:{S_OUT+3}], 0 offen offset:16')
    lab(f'{pf}_END')
    if HD:
        e('s_waitcnt vmcnt(0)')
        hd(14, 88); hd(13, 88, True)
    dump_stamps(1, S_WS)
    lab(f'{pf}_END2')
    e('s_endpgm')
    lab('M_CODE_END')

def gen_wprep():
    e(f's_cmp_gt_u32 s2, {NC+1}')
    e('s_cbranch_scc1 K1_CPF')
    e('s_load_dwordx2 s[10:11], s[0:1], 32')
    e('s_load_dwordx2 s[12:13], s[0:1], 56')
    e(f's_sub_u32 s36, s2, {NC}')
    e('s_mul_i32 s36, s36, 768')
    e('v_cmp_gt_u32 vcc, 768, v0')
    e('s_and_saveexec_b64 s[40:41], vcc')
    e('s_cbranch_execz K1_ZBAR')
    e('v_add_u32 v1, s36, v0')
    e('v_lshrrev_b32 v2, 6, v1')
    e('v_and_b32 v3, 3, v2')
    e('v_lshrrev_b32 v4, 2, v2')
    e('v_and_b32 v5, 15, v1')
    e('v_bfe_u32 v6, v1, 4, 2')
    e('v_lshrrev_b32 v7, 2, v5')
    e('v_lshlrev_b32 v7, 4, v7')
    e('v_lshl_add_u32 v7, v3, 2, v7')
    e('v_and_b32 v8, 3, v5')
    e('v_add_u32 v7, v7, v8')
    e('v_readfirstlane_b32 s38, v4')
    e('v_lshlrev_b32 v9, 12, v4')
    e('s_waitcnt lgkmcnt(0)')
    srd(16, 10, 11, 3 * 64 * 64 * 2)
    srd(28, 12, 13, WS_SIZE)
    e(f's_mov_b32 s37, {hex(WS_WT)}')
    e('s_lshr_b32 s38, s38, 1')
    e('s_cmp_eq_u32 s38, 1')
    e('s_cbranch_scc1 K2_WP')
    e('v_lshl_add_u32 v9, v6, 10, v9')
    e('v_lshl_add_u32 v9, v7, 1, v9')
    for j in range(8):
        e(f'buffer_load_ushort v{10+j}, v9, s[16:19], 0 offen offset:{j*128}')
    e('s_branch K2_WQ')
    lab('K2_WP')
    e('v_lshl_add_u32 v9, v6, 7, v9')
    e('v_lshl_add_u32 v9, v7, 1, v9')
    for j in range(8):
        e(f'buffer_load_ushort v{10+j}, v9, s[16:19], 0 offen offset:{(j&3)*1024 + (j>>2)*512}')
    lab('K2_WQ')
    e('s_waitcnt vmcnt(0)')
    for j in range(4):
        e(f'v_lshl_or_b32 v{20+j}, v{11+2*j}, 16, v{10+2*j}')
    e('v_lshlrev_b32 v1, 4, v1')
    e('buffer_store_dwordx4 v[20:23], v1, s[28:31], s37 offen')
    e('s_endpgm')
    lab('K1_ZBAR')
    e('s_mov_b64 exec, -1')
    e('v_and_b32 v1, 255, v0')
    e('v_lshlrev_b32 v1, 4, v1')
    for i in range(4):
        e(f'v_mov_b32 v{4+i}, 0')
    e('s_waitcnt lgkmcnt(0)')
    srd(28, 12, 13, WS_SIZE)
    e(f's_mov_b32 s37, {hex(WS_BAR)}')
    e('buffer_store_dwordx4 v[4:7], v1, s[28:31], s37 offen')
    for k in range(1, 4):
        e(f's_mov_b32 s37, {hex(WS_BAR+4096*k)}')
        e('buffer_store_dwordx4 v[4:7], v1, s[28:31], s37 offen')

S_NST = 74
S_PAIR = 75
def part_addrs():
    e(f'v_mad_u32_u16 v14, v{V_ROWS}, s{S_128}, v{V_J}')
    e(f'v_mad_u32_u16 v15, v{V_ROWS}, s{S_128}, v{V_J} op_sel:[1,0,0,0]')
    e('v_lshlrev_b32 v14, 1, v14')
    e('v_lshlrev_b32 v15, 1, v15')
    e(f's_lshl_b32 s{S_TMP}, s{S_ROW0}, 1')
    e(f's_add_u32 s{S_TMP}, s{S_TMP}, {hex(WS_PART)}')

def kd(name, vgpr, sgpr):
    out.append('.p2align 6')
    out.append(f'.amdhsa_kernel {name}')
    out.append(f'  .amdhsa_next_free_vgpr {vgpr}')
    out.append(f'  .amdhsa_next_free_sgpr {sgpr}')
    out.append(f'  .amdhsa_accum_offset {(vgpr+3)//4*4}')
    out.append('  .amdhsa_group_segment_fixed_size 0')
    out.append('  .amdhsa_kernarg_size 64')
    out.append('  .amdhsa_user_sgpr_count 2')
    out.append('  .amdhsa_user_sgpr_kernarg_segment_ptr 1')
    out.append('  .amdhsa_system_sgpr_workgroup_id_x 1')
    out.append('.end_amdhsa_kernel')

hdr = open('standalone__spectral_conv_chebnet__graph.s.ref').read().split('\n')
for l in hdr:
    if l.startswith(';') and '@launch' not in l and 'Override launch' not in l and 'grid=ceil' not in l:
        out.append(l)
    elif not l.startswith(';'):
        break
G1 = NC + 2 + (8 if CPF else 0) + (48 if PFH else 0)
out.append(f'; @launch kernel=part_kernel grid=({G1},1,1) block=(1024,1,1) lds={4096+32768}')
out.append(f'; @launch kernel=main_kernel grid=({NB},1,1) block=({NT},1,1) lds={L_END3}')
out.append('.amdgcn_target "amdgcn-amd-amdhsa--gfx950"')
out.append('.text')
gen_k1()
gen_main()
out.append('.section .rodata,"a"')
kd('part_kernel', 64, 102 if (INSTR or HD) else 56)
kd('main_kernel', 128, 102 if (INSTR or HD) else 88)
dst = sys.argv[1] if len(sys.argv) > 1 else 'standalone__spectral_conv_chebnet__graph.s'
open(dst, 'w').write('\n'.join(out) + '\n')
print('wrote', dst, len(out), 'lines')
```

```python
import sys

N = 50000; E = 800000
R = 200
NB = 250
CH = 4096
NC = 196
S = 48
NIT = S // 8
NW = 13
NT = NW * 64

WS_ENT = 0x0000000
WS_SEG = 0x0800000
WS_WT  = 0x0900000
WS_BAR = 0x0A00000
WS_CSR = 0x1000000
CSR_STRIDE = 0x10000
WS_T1  = 0x2000000
WS_PART = 0x3000000
WS_SIZE = 268435456

L_CNT = 0
L_OFF = 2048
L_MAX = 4096
L_DESC = 4112
L_SYNC = 5792
L_H2 = 5888
L_JUNK = 6912
L_SORT = 7168
RA = 96
SORT_BYTES = NT * 16 * 4
L_DUMMY = L_SORT + SORT_BYTES - 16
L_END2 = L_SORT + SORT_BYTES
L_W = L_END2
L_ROWS = L_W + 24576
ROW_STRIDE = 272
L_END3 = L_ROWS + 208 * ROW_STRIDE
HALF = 25000

import os
INSTR = int(os.environ.get('INSTR', '0'))
PF2 = int(os.environ.get('PF2', '32'))
PF3 = int(os.environ.get('PF3', '24'))
PFB2 = int(os.environ.get('PFB2', '0'))
PFB3 = int(os.environ.get('PFB3', '0'))
PFBW = int(os.environ.get('PFBW', '0'))
BAL = int(os.environ.get('BAL', '1'))
XP = os.environ.get('XP', '')
PF1 = int(os.environ.get('PF1', '0'))
PF2BASE = 6144 * int(os.environ.get('PFH', '0'))
RENUM = int(os.environ.get('RENUM', '1'))
WS_DBG = 0x8000000
S_ST = 40
NSTAMP = 12
SPIN_MAX = int(os.environ.get('SPIN_MAX', '2000000'))
SCAL = int(os.environ.get('SCAL', '1'))
CPF = int(os.environ.get('CPF', '1'))
OPOL = os.environ.get('OPOL', 'nt')
IPOL = os.environ.get('IPOL', 'nt')
DPOL = os.environ.get('DPOL', 'sc1')
EPOL = os.environ.get('EPOL', '')
SKIP = int(os.environ.get('SKIP', '1'))
S_SKIP = 64
cold = []
_uid = [0]
DBL = int(os.environ.get('DBL', '0'))
TLBW = int(os.environ.get('TLBW', '0'))
LATE = int(os.environ.get('LATE', '1'))
WLATE = int(os.environ.get('WLATE', '0'))
TPF = int(os.environ.get('TPF', '1'))
PFL = int(os.environ.get('PFL', '0'))
ROWSEG = int(os.environ.get('ROWSEG', '1'))
KA = int(os.environ.get('KA', '0')); KB = int(os.environ.get('KB', '0'))
def gate(tag, word, k):
    if not k: return
    e(f's_cmp_lg_u32 s{S_NR}, 0')
    e(f's_cbranch_scc1 M_GATE{tag}X')
    e(f'v_mov_b32 v14, {L_SYNC + 4*word}')
    lab(f'M_GATE{tag}')
    e('ds_read_b32 v15, v14')
    e('s_waitcnt lgkmcnt(0)')
    e(f'v_readfirstlane_b32 s{S_TMP}, v15')
    e(f's_cmp_ge_u32 s{S_TMP}, {k}')
    e(f's_cbranch_scc1 M_GATE{tag}X')
    e('s_sleep 1')
    e(f's_branch M_GATE{tag}')
    lab(f'M_GATE{tag}X')
DIRECT = int(os.environ.get('DIRECT', '0'))
PFH = int(os.environ.get('PFH', '0'))
HD = int(os.environ.get('HD', '0'))
def hd(slot, base, neg=False, tmp=86):
    if not HD: return
    global _hdn
    _hdn += 1
    e('s_cmp_eq_u32 s90, 0')
    e(f's_cbranch_scc1 HDSKIP{_hdn}')
    e(f's_memrealtime s[{tmp}:{tmp+1}]')
    e('s_waitcnt lgkmcnt(0)')
    if neg: e(f's_not_b32 s{tmp}, s{tmp}')
    e(f's_atomic_umax s{tmp}, s[{base}:{base+1}], {slot*4}')
    lab(f'HDSKIP{_hdn}')
_hdn = 0
FLAGV = int(os.environ.get('FLAGV', '1'))
SELFPF = int(os.environ.get('SELFPF', '1'))
P1S0 = int(os.environ.get('P1S0', '3')); P1S1 = int(os.environ.get('P1S1', '2')); P2S0 = int(os.environ.get('P2S0', '1')); P2S1 = int(os.environ.get('P2S1', '0'))
P0B = int(os.environ.get('P0B', '3'))
P1A = int(os.environ.get('P1A', '2')); P1B = int(os.environ.get('P1B', '1'))
P2PRIO = int(os.environ.get('P2PRIO', '1'))
NREP = int(os.environ.get('NREP', '16'))
SLP = int(os.environ.get('SLP', '2'))
STMAP = {0: 86, 1: 88, 2: 90, 4: 92, 7: 94, 8: 96, 9: 98, 10: 100, 11: 14}
def stamp(i, real=False):
    if INSTR and i in STMAP:
        r = STMAP[i]
        e(f's_memrealtime s[{r}:{r+1}]' if real else f's_memtime s[{r}:{r+1}]')
def dump_stamps(kidx, ws_srd, wave_sgpr_from_v0=True):
    if not INSTR: return
    e('s_waitcnt vmcnt(0) lgkmcnt(0)')
    stamp(NSTAMP-2); stamp(NSTAMP-1, True)
    e('s_waitcnt lgkmcnt(0)')
    e('s_mov_b64 exec, -1')
    e('v_lshrrev_b32 v1, 6, v0')
    e('s_lshl_b32 s70, s2, 4')
    e('v_add_u32 v1, s70, v1')
    e('v_lshlrev_b32 v1, 7, v1')
    e(f's_mov_b32 s70, {hex(WS_DBG + kidx*0x100000)}')
    e('s_mov_b64 exec, 1')
    for i in range(NSTAMP):
        if i not in STMAP: continue
        e(f'v_mov_b32 v2, s{STMAP[i]}')
        e(f'v_mov_b32 v3, s{STMAP[i]+1}')
        e(f'buffer_store_dwordx2 v[2:3], v1, s[{ws_srd}:{ws_srd+3}], s70 offen offset:{8*i}')
        e('s_nop 1')

out = []
def e(s=''):
    out.append('    ' + s if s and not s.endswith(':') else s)
def lab(s):
    out.append(s + ':')

def srd(d, lo, hi, nbytes, add=0):
    if add:
        e(f's_add_u32 s{d}, s{lo}, {hex(add)}')
        e(f's_addc_u32 s{d+1}, s{hi}, 0')
    else:
        e(f's_mov_b32 s{d}, s{lo}')
        e(f's_mov_b32 s{d+1}, s{hi}')
    e(f's_mov_b32 s{d+2}, {hex(nbytes)}')
    e(f's_mov_b32 s{d+3}, 0x00020000')

def wave_scan(v, op='v_add_u32'):
    for sh in (1, 2, 4, 8):
        e('s_nop 1')
        e(f'{op}_dpp v{v}, v{v}, v{v} row_shr:{sh} row_mask:0xf bank_mask:0xf bound_ctrl:0')
    e('s_nop 1')
    e(f'{op}_dpp v{v}, v{v}, v{v} row_bcast:15 row_mask:0xa bank_mask:0xf')
    e('s_nop 1')
    e(f'{op}_dpp v{v}, v{v}, v{v} row_bcast:31 row_mask:0xc bank_mask:0xf')

def kernel_head(name):
    out.append(f'.globl {name}')
    out.append('.p2align 8')
    out.append(f'.type {name},@function')
    lab(name)

def gen_k1():
    kernel_head('part_kernel')
    e(f's_cmp_ge_u32 s2, {NC}')
    e('s_cbranch_scc1 K1_XTRA')
    stamp(0, True); stamp(1)
    e('s_load_dwordx4 s[4:7], s[0:1], 8')
    e('s_load_dwordx2 s[8:9], s[0:1], 24')
    e('s_load_dwordx2 s[12:13], s[0:1], 56')
    if HD:
        e('s_load_dwordx2 s[88:89], s[0:1], 48')
        e('v_readfirstlane_b32 s90, v0')
        e('s_and_b32 s91, s2, 3')
        e('s_or_b32 s90, s90, s91')
        e('s_cmp_eq_u32 s90, 0')
        e('s_cselect_b32 s90, 1, 0')
        e('s_waitcnt lgkmcnt(0)')
        e('s_add_u32 s88, s88, 512')
        e('s_addc_u32 s89, s89, 0')
        hd(0, 88, True); hd(1, 88)
    if SELFPF:
        e('s_getpc_b64 s[46:47]')
        e('v_and_b32 v62, 31, v0')
        e('v_lshlrev_b32 v62, 6, v62')
        e('global_load_dword v63, v62, s[46:47]')
    e('v_lshlrev_b32 v1, 2, v0')
    e('s_lshl_b32 s14, s2, 12')
    e('v_add_u32 v3, s14, v1')
    e(f's_mov_b32 s15, {E}')
    e('v_cmp_gt_u32 vcc, s15, v3')
    e('v_lshlrev_b32 v13, 2, v3')
    e('v_lshlrev_b32 v12, 1, v3')
    e('v_mov_b32 v2, 0')
    e('ds_write_b32 v1, v2')
    e('s_mov_b64 s[32:33], vcc')
    e('s_and_saveexec_b64 s[38:39], vcc')
    e('s_waitcnt lgkmcnt(0)')
    stamp(2)
    e('s_cbranch_execz K1_NOLD')
    e('global_load_dwordx4 v[4:7], v13, s[6:7] ' + IPOL)
    if not LATE:
        e('global_load_dwordx4 v[8:11], v13, s[4:5] ' + IPOL)
        e('global_load_dwordx2 v[14:15], v12, s[8:9] ' + IPOL)
    lab('K1_NOLD')
    srd(28, 12, 13, WS_SIZE)
    e('s_mov_b32 s34, 83887')
    e(f's_mov_b32 s35, {-R & 0xffffffff:#x}')
    e('s_mov_b32 s36, 0xffff0000')
    e('v_mov_b32 v2, 1')
    e('s_barrier')
    if LATE:
        e('s_waitcnt vmcnt(0)')
        e('s_cbranch_execz K1_NOLD2')
        e('global_load_dwordx4 v[8:11], v13, s[4:5] ' + IPOL)
        e('global_load_dwordx2 v[14:15], v12, s[8:9] ' + IPOL)
        lab('K1_NOLD2')
    else:
        e('s_waitcnt vmcnt(2)')
    stamp(3)
    for i in range(4):
        e(f'v_mul_u32_u24 v{16+i}, s34, v{4+i}')
        e(f'v_lshrrev_b32 v{16+i}, 24, v{16+i}')
        e(f'v_mad_i32_i24 v{25+2*i}, v{16+i}, s35, v{4+i}')
        if RENUM:
            e(f'v_and_b32 v3, 7, v{16+i}')
            e(f'v_lshrrev_b32 v{16+i}, 3, v{16+i}')
            e(f'v_lshlrev_b32 v{16+i}, 2, v{16+i}')
            e(f'v_lshl_or_b32 v{16+i}, v3, 7, v{16+i}')
        else:
            e(f'v_lshlrev_b32 v{16+i}, 2, v{16+i}')
        e(f'ds_add_rtn_u32 v{20+i}, v{16+i}, v2')
    e('s_mov_b64 exec, -1')
    if PF1:
        e('s_lshr_b32 s37, s2, 3')
        e('s_min_u32 s37, s37, 23')
        e(f's_mul_i32 s37, s37, {16*PF1*128}')
        e('v_lshrrev_b32 v60, 6, v0')
        e(f'v_mul_u32_u24 v60, {PF1*128}, v60')
        e('v_and_b32 v61, 63, v0')
        e('v_lshl_add_u32 v60, v61, 7, v60')
        e('v_add_u32 v60, s37, v60')
        m = (1 << PF1) - 1
        e(f's_mov_b32 exec_lo, {hex(m & 0xffffffff)}')
        e(f's_mov_b32 exec_hi, {hex(m >> 32)}')
        e('buffer_load_dword v61, v60, s[40:43], 0 offen')
        e('s_mov_b64 exec, -1')
    e('s_waitcnt lgkmcnt(0)')
    e('s_barrier')
    stamp(4)
    hd(2, 88)
    e('v_cmp_gt_u32 vcc, 64, v0')
    e('s_cbranch_vccz K1_SCAN_DONE')
    e('v_lshlrev_b32 v32, 4, v0')
    e('ds_read_b128 v[36:39], v32')
    e('s_waitcnt lgkmcnt(0)')
    e('v_add_u32 v41, v36, v37')
    e('v_add_u32 v42, v41, v38')
    e('v_add_u32 v43, v42, v39')
    e('v_mov_b32 v44, v43')
    wave_scan(44)
    e('v_sub_u32 v48, v44, v43')
    e('v_add_u32 v49, v48, v36')
    e('v_add_u32 v50, v48, v41')
    e('v_add_u32 v51, v48, v42')
    e('ds_write_b128 v32, v[48:51] offset:1024')
    for i in range(4):
        e(f'v_lshl_or_b32 v{52+i}, v{36+i}, 16, v{48+i}')
    if ROWSEG:
        e('s_lshl_b32 s37, s2, 10')
        e(f's_add_u32 s37, s37, {hex(WS_SEG)}')
        e('buffer_store_dwordx4 v[52:55], v32, s[28:31], s37 offen ' + DPOL)
    else:
        e('v_lshlrev_b32 v33, 12, v0')
        e('s_lshl_b32 s37, s2, 2')
        e(f's_add_u32 s37, s37, {hex(WS_SEG)}')
        for i in range(4):
            e(f'buffer_store_dword v{52+i}, v33, s[28:31], s37 offen offset:{i*1024} sc1')
    e('s_waitcnt lgkmcnt(0)')
    lab('K1_SCAN_DONE')
    e('s_barrier')
    stamp(5)
    e('s_mov_b64 exec, s[32:33]')
    for i in range(4):
        e(f'ds_read_b32 v{32+i}, v{16+i} offset:1024')
    e('s_waitcnt vmcnt(1)' if ROWSEG else 's_waitcnt vmcnt(4)')
    e('v_cmp_gt_u32 vcc, 64, v0')
    e('s_cbranch_vccnz K1_W0')
    e('s_waitcnt vmcnt(0)')
    lab('K1_W0')
    e(f's_movk_i32 s37, {RA}')
    for i in range(4):
        e(f'v_mul_u32_u24 v3, s34, v{8+i}')
        e('v_lshrrev_b32 v3, 24, v3')
        e(f'v_mad_i32_i24 v3, v3, s35, v{8+i}')
        e(f'v_cmp_le_u32 s[{48+2*i}:{49+2*i}], s37, v3')
    e('v_lshl_or_b32 v24, v14, 16, v8')
    e('v_and_or_b32 v26, v14, s36, v9')
    e('v_lshl_or_b32 v28, v15, 16, v10')
    e('v_and_or_b32 v30, v15, s36, v11')
    for i in range(4):
        e(f'v_addc_co_u32 v{25+2*i}, vcc, v{25+2*i}, v{25+2*i}, s[{48+2*i}:{49+2*i}]')
    for i in range(4):
        e(f's_waitcnt lgkmcnt({3-i})')
        e(f'v_add_lshl_u32 v{32+i}, v{32+i}, v{20+i}, 3')
        e(f'ds_write_b64 v{32+i}, v[{24+2*i}:{25+2*i}] offset:4096')
    e('s_mov_b64 exec, -1')
    e('s_waitcnt lgkmcnt(0)')
    e('s_barrier')
    stamp(6)
    e('v_lshlrev_b32 v36, 4, v0')
    e('ds_read_b128 v[40:43], v36 offset:4096')
    e('ds_read_b128 v[44:47], v36 offset:20480')
    e('s_lshl_b32 s37, s2, 15')
    e('s_add_u32 s38, s37, 16384')
    e('s_waitcnt lgkmcnt(1)')
    pol = ' sc1' if 'Esc1' in XP else ''
    if 'noE' not in XP:
        e('buffer_store_dwordx4 v[40:43], v36, s[28:31], s37 offen' + pol)
    e('s_waitcnt lgkmcnt(0)')
    if 'noE' not in XP:
        e('buffer_store_dwordx4 v[44:47], v36, s[28:31], s38 offen' + pol)
    stamp(7)
    if HD:
        e('s_waitcnt vmcnt(0)')
        hd(3, 88)
    dump_stamps(0, 28)
    e('s_endpgm')
    lab('K1_XTRA')
    gen_wprep()
    e('s_endpgm')
    lab('K1_CPF')
    if CPF:
        e(f's_cmp_gt_u32 s2, {NC+9}')
        e('s_cbranch_scc1 K1_HELP')
        e('s_getpc_b64 s[4:5]')
        lab('K1_PCREF')
        e('s_add_u32 s4, s4, main_kernel-K1_PCREF')
        e('s_addc_u32 s5, s5, 0')
        e('v_lshlrev_b32 v1, 6, v0')
        e('s_mov_b32 s6, M_CODE_END-main_kernel')
        e('v_cmp_gt_u32 vcc, s6, v1')
        e('s_and_saveexec_b64 s[8:9], vcc')
        e('s_cbranch_execz K1_TLB' if TLBW else 's_cbranch_execz K1_END')
        e('global_load_dword v2, v1, s[4:5]')
        e('s_waitcnt vmcnt(0)')
        e('s_endpgm')
        if TLBW:
            lab('K1_TLB')
            e('s_mov_b64 exec, -1')
            e('s_load_dwordx2 s[4:5], s[0:1], 0')
            e('s_load_dwordx2 s[6:7], s[0:1], 40')
            e('s_load_dwordx2 s[10:11], s[0:1], 56')
            e('v_subrev_u32 v1, 512, v0')
            e(f'v_mul_u32_u24 v2, {TLBW*1024}, v1')
            e(f'v_cmp_gt_u32 vcc, {N*128 // (TLBW*1024)}, v1')
            e('s_and_saveexec_b64 s[8:9], vcc')
            e('s_cbranch_execz K1_END')
            e('s_waitcnt lgkmcnt(0)')
            e(f's_add_u32 s10, s10, {hex(WS_T1)}')
            e('s_addc_u32 s11, s11, 0')
            e('global_load_dword v3, v2, s[4:5]')
            e('global_load_dword v4, v2, s[6:7]')
            e('global_load_dword v5, v2, s[10:11]')
            e('s_waitcnt vmcnt(0)')
            e('s_endpgm')
        lab('K1_HELP')
        if PFH:
            e(f's_cmp_gt_u32 s2, {NC+9+48}')
            e('s_cbranch_scc1 K1_END')
            e('s_load_dwordx2 s[4:5], s[0:1], 0')
            e(f's_sub_u32 s6, s2, {NC+10}')
            e('s_lshr_b32 s6, s6, 3')
            e(f's_mul_i32 s6, s6, {1024*PFH*128}')
            e('v_lshlrev_b32 v1, 7, v0')
            e('v_add_u32 v1, s6, v1')
            e('s_waitcnt lgkmcnt(0)')
            for i in range(PFH):
                e(f'global_load_dword v{2+i}, v1, s[4:5]')
                e('v_add_u32 v1, 0x20000, v1')
            e('s_waitcnt vmcnt(0)')
    lab('K1_END')
    e('s_endpgm')

X = [64, 96]
EN = [48, 56]
ACC = [32, 40]
ACCO = 16
V_J = 1; V_PA = 2; V_EA = 3; V_PB = 4; V_EB = 5; V_TA = 6; V_TB = 7
V_W = 8
V_ROWS = 12
S_TAB = 16; S_WS = 20; S_OUT = 24; S_X = 28
S_128 = 32; S_HI = 33; S_ROUND = 34; S_NR = 35
S_MASKB = 36
S_T = 38
S_M = 40
S_CSR = 64; S_TMP = 65; S_TMP2 = 66; S_WAVE = 67; S_ROW0 = 68; S_TOT = 69; S_DUM = 70; S_TILE = 71
IMG = NT * 16

def issue(p, half):
    x = X[p] + 16 * half
    en = EN[p] + 4 * half
    if SKIP:
        _uid[0] += 1; u_ = _uid[0]
        e(f's_bitcmp1_b32 s{S_SKIP}, {2*p+half}')
        e(f's_cbranch_scc1 M_CH{u_}')
    for u in range(4):
        e(f'v_mad_u32_u16 v{x+4*u}, v{en+u}, s{S_128}, v{V_J}')
    for u in range(4):
        e(f'buffer_load_dwordx4 v[{x+4*u}:{x+4*u+3}], v{x+4*u}, s[{S_TAB}:{S_TAB+3}], 0 offen' + ('' if 'plain' in XP else ' sc1'))
    if SKIP:
        lab(f'M_CR{u_}')
        cold.append(f'M_CH{u_}:')
        cold.append('    s_mov_b64 exec, 1')
        for u in range(4):
            cold.append(f'    buffer_load_dword v{x+4*u}, v{V_SEL0}, s[{S_TAB}:{S_TAB+3}], 0 offen')
        cold.append('    s_mov_b64 exec, -1')
        cold.append(f'    s_branch M_CR{u_}')

V_SEL0 = 7; V_SEL1 = 13
def consume(p, half):
    x = X[p] + 16 * half
    en = EN[p] + 4 * half
    acc = ACC[half]
    def perm(bs, u):
        e(f'v_perm_b32 v{V_W+2*bs}, v{en+u}, v{en+u}, v{V_SEL0}')
        e(f'v_perm_b32 v{V_W+2*bs+1}, v{en+u}, v{en+u}, v{V_SEL1}')
    def mm(bs, u):
        e(f'v_mfma_f32_4x4x4_16b_bf16 v[{acc}:{acc+3}], v[{x+4*u}:{x+4*u+1}], v[{V_W+2*bs}:{V_W+2*bs+1}], v[{acc}:{acc+3}]')
        e(f'v_mfma_f32_4x4x4_16b_bf16 v[{acc+4}:{acc+7}], v[{x+4*u+2}:{x+4*u+3}], v[{V_W+2*bs}:{V_W+2*bs+1}], v[{acc+4}:{acc+7}]')
    if SKIP:
        _uid[0] += 1; u_ = _uid[0]
        e(f's_bitcmp1_b32 s{S_SKIP}, {2*p+half}')
        e(f's_cbranch_scc1 M_CS{u_}')
    perm(0, 0); perm(1, 1)
    mm(0, 0)
    perm(0, 2)
    mm(1, 1)
    perm(1, 3)
    mm(0, 2)
    e('s_nop 0')
    mm(1, 3)
    if SKIP:
        lab(f'M_CS{u_}')

def next_entries(p, half):
    P = V_PA if half == 0 else V_PB
    EE = V_EA if half == 0 else V_EB
    T = V_TA
    en = EN[p] + 4 * half
    m = 'vcc' if half == 0 else f's[{S_MASKB}:{S_MASKB+1}]'
    e(f'v_cmp_lt_u32 {m}, v{P}, v{EE}')
    e(f'v_mov_b32 v{T}, s{S_DUM}')
    if SKIP:
        e(f's_bitset0_b32 s{S_SKIP}, {2*p+half}')
    else:
        e('s_nop 0')
    e(f'v_cndmask_b32 v{T}, v{T}, v{P}, {m}')
    if SKIP:
        e(f's_cmp_eq_u64 {m}, 0')
        e(f's_cselect_b32 s{S_SPIN}, {1 << (2*p+half)}, 0')
        e(f's_or_b32 s{S_SKIP}, s{S_SKIP}, s{S_SPIN}')
    e(f'v_add_u32 v{P}, s{S_INC}, v{P}')
    e(f'ds_read_b128 v[{en}:{en+3}], v{T}')

def masked_loop(pf, tag, body, first_check=2):
    for i in range(NIT):
        e(f's_mov_b64 exec, s[{S_M+4*i}:{S_M+4*i+1}]')
        if i >= first_check:
            e(f's_cbranch_execz {pf}_{tag}_X')
        body(i, 0)
        if body.__code__.co_argcount == 2 and getattr(body, 'two', True):
            e(f's_mov_b64 exec, s[{S_M+4*i+2}:{S_M+4*i+3}]')
            body(i, 1)
    lab(f'{pf}_{tag}_X')
    e('s_mov_b64 exec, -1')

def gemm_steps(ks_list, vB, vA, tB, tA, part_off):
    for ks in ks_list:
        e(f'ds_read_b128 v[{tB}:{tB+3}], v{vB} offset:{(ks&1)*64 + part_off(ks)}')
        for mt in range(3):
            e(f'ds_read_b128 v[{tA[mt]}:{tA[mt]+3}], v{vA} offset:{(ks*4+mt)*1024}')
        e('s_waitcnt lgkmcnt(2)')
        e(f'v_mfma_f32_16x16x32_bf16 v[{ACCO}:{ACCO+3}], v[{tA[0]}:{tA[0]+3}], v[{tB}:{tB+3}], v[{ACCO}:{ACCO+3}]')
        e(f'ds_read_b128 v[{tA[0]}:{tA[0]+3}], v{vA} offset:{(ks*4+3)*1024}')
        e('s_waitcnt lgkmcnt(2)')
        e(f'v_mfma_f32_16x16x32_bf16 v[{ACCO+4}:{ACCO+7}], v[{tA[1]}:{tA[1]+3}], v[{tB}:{tB+3}], v[{ACCO+4}:{ACCO+7}]')
        e('s_waitcnt lgkmcnt(1)')
        e(f'v_mfma_f32_16x16x32_bf16 v[{ACCO+8}:{ACCO+11}], v[{tA[2]}:{tA[2]+3}], v[{tB}:{tB+3}], v[{ACCO+8}:{ACCO+11}]')
        e('s_waitcnt lgkmcnt(0)')
        e(f'v_mfma_f32_16x16x32_bf16 v[{ACCO+12}:{ACCO+15}], v[{tA[0]}:{tA[0]+3}], v[{tB}:{tB+3}], v[{ACCO+12}:{ACCO+15}]')

def frag_addrs(vb, va, vrow):
    e(f'v_and_b32 v{vrow}, 15, v0')
    e(f's_lshl_b32 s{S_TMP}, s{S_WAVE}, 7')
    e(f's_add_u32 s{S_TMP}, s{S_TMP}, {L_DESC}')
    e(f'v_lshl_add_u32 v{vrow}, v{vrow}, 3, s{S_TMP}')
    e(f'ds_read_b32 v{vrow}, v{vrow}')
    e(f'v_bfe_u32 v{va}, v0, 4, 2')
    e(f'v_lshlrev_b32 v{vb}, 4, v{va}')
    e(f'v_add_u32 v{vb}, {L_ROWS}, v{vb}')
    e(f'v_and_b32 v{va}, 63, v0')
    e(f'v_lshlrev_b32 v{va}, 4, v{va}')
    e(f'v_add_u32 v{va}, {L_W}, v{va}')
    e('s_waitcnt lgkmcnt(0)')
    e(f'v_and_b32 v{vrow}, 255, v{vrow}')
    e(f'v_mad_u32_u24 v{vb}, v{vrow}, s{S_RS}, v{vb}')

def prefetch(lanes, base_line, vdst, vtmp):
    if lanes == 0: return
    e(f's_lshr_b32 s{S_TMP}, s2, 3')
    e(f's_min_u32 s{S_TMP}, s{S_TMP}, 30')
    e(f's_mul_i32 s{S_TMP}, s{S_TMP}, {NW}')
    e(f's_add_u32 s{S_TMP}, s{S_TMP}, s{S_WAVE}')
    e(f's_mul_i32 s{S_TMP}, s{S_TMP}, {lanes}')
    e(f's_add_u32 s{S_TMP}, s{S_TMP}, {base_line}')
    e(f'v_and_b32 v{vtmp}, 63, v0')
    e(f'v_add_u32 v{vtmp}, s{S_TMP}, v{vtmp}')
    e(f'v_lshlrev_b32 v{vtmp}, 7, v{vtmp}')
    if lanes < 64:
        m = (1 << lanes) - 1
        e(f's_mov_b32 exec_lo, {hex(m & 0xffffffff)}')
        e(f's_mov_b32 exec_hi, {hex(m >> 32)}')
    e(f's_mov_b32 m0, {L_JUNK}')
    e('s_nop 0')
    e(f'buffer_load_dword v{vtmp}, s[{S_TAB}:{S_TAB+3}], 0 offen lds')
    e('s_mov_b64 exec, -1')

S_RS = S_TILE
S_PH = 72
S_FIRST = 73

S_T1 = 76
S_DBG = 80
S_PASS = 84
S_SPIN = 85
S_ONE = 80
S_POST = 81
S_RET = 82
S_NOUT = 83
S_INC = 69

def tile_regs(vw, vb, va):
    e(f's_mul_i32 s{S_TMP}, s{S_WAVE}, {16*ROW_STRIDE}')
    e(f's_add_u32 s{S_TMP}, s{S_TMP}, {L_ROWS}')
    e(f'v_bfe_u32 v{vw}, v0, 3, 3')
    e(f'v_mad_u32_u24 v{vw}, v{vw}, s{S_RS}, v{V_J}')
    e(f'v_add_u32 v{vw}, s{S_TMP}, v{vw}')
    e(f'v_and_b32 v{va}, 15, v0')
    e(f'v_bfe_u32 v{vb}, v0, 4, 2')
    e(f'v_lshlrev_b32 v{vb}, 4, v{vb}')
    e(f'v_mad_u32_u24 v{vb}, v{va}, s{S_RS}, v{vb}')
    e(f'v_add_u32 v{vb}, s{S_TMP}, v{vb}')
    e(f'v_and_b32 v{va}, 63, v0')
    e(f'v_lshlrev_b32 v{va}, 4, v{va}')
    e(f'v_add_u32 v{va}, {L_W}, v{va}')

def mfma_run(f0, f1, bfrag, pend, va):
    pend = list(pend)
    for f in range(f0, f1):
        ks, mt = f // 4, f % 4
        need = ['A%d' % f, 'B%d' % ks]
        idxs = [pend.index(n) for n in need if n in pend]
        if idxs:
            idx = max(idxs)
            rem = len(pend) - 1 - idx
            e(f's_waitcnt lgkmcnt({min(rem, 15)})')
            pend = pend[idx+1:]
        sl = 96 + 4*(f % 8)
        bq = bfrag(ks)
        e(f'v_mfma_f32_16x16x32_bf16 v[{ACCO+4*mt}:{ACCO+4*mt+3}], v[{sl}:{sl+3}], v[{bq}:{bq+3}], v[{ACCO+4*mt}:{ACCO+4*mt+3}]')
        if f + 8 < f1:
            e(f'ds_read_b128 v[{sl}:{sl+3}], v{va} offset:{(f+8)*1024}')
            pend.append('A%d' % (f+8))

def gen_main():
    pf = 'M'
    kernel_head('main_kernel')
    e(f's_cmp_ge_u32 s2, {NB}')
    e(f's_cbranch_scc1 {pf}_END2')
    stamp(0, True); stamp(1)
    e('s_load_dwordx2 s[4:5], s[0:1], 0')
    e('s_load_dwordx4 s[8:11], s[0:1], 40')
    e('s_load_dwordx2 s[12:13], s[0:1], 56')
    e('v_lshrrev_b32 v14, 6, v0')
    e('v_and_b32 v15, 7, v0')
    e(f'v_readfirstlane_b32 s{S_WAVE}, v14')
    e(f'v_lshlrev_b32 v{V_J}, 4, v15')
    e(f's_movk_i32 s{S_128}, 128')
    e(f's_mov_b32 s{S_HI}, 0xffff0000')
    e(f's_mov_b32 s{S_ROUND}, 0')
    e(f's_mov_b32 s{S_PASS}, 0')
    e(f's_mov_b32 s{S_POST}, 0')
    e(f's_mov_b32 s{S_SKIP}, 0')
    e(f's_mov_b32 s{S_DUM}, {L_DUMMY}')
    e(f's_mul_i32 s{S_ROW0}, s2, {R*128}')
    e(f's_movk_i32 s{S_RS}, {ROW_STRIDE}')
    tbl = {1: [3, 0, 1, 2, 4, 7, 6, 5, 11, 8, 9, 10, 12], 2: [9, 0, 1, 2, 10, 5, 4, 3, 11, 6, 7, 8, 12], 0: list(range(13))}[BAL]
    t64 = sum(v << (4*i) for i, v in enumerate(tbl))
    e(f's_mov_b32 s{S_T}, {hex(t64 & 0xffffffff)}')
    e(f's_mov_b32 s{S_T+1}, {hex(t64 >> 32)}')
    e(f's_lshl_b32 s{S_TMP}, s{S_WAVE}, 2')
    e(f's_lshr_b64 s[{S_T}:{S_T+1}], s[{S_T}:{S_T+1}], s{S_TMP}')
    e(f's_and_b32 s{S_PAIR}, s{S_T}, 15')
    e(f's_lshl_b32 s{S_PAIR}, s{S_PAIR}, 6')
    e(f's_add_u32 s{S_PAIR}, s{S_PAIR}, {L_DESC}')
    e('v_mov_b32 v14, 0')
    e(f'v_mov_b32 v15, {L_MAX}')
    e('ds_write_b32 v15, v14')
    e('v_and_b32 v15, 7, v0')
    e('v_lshlrev_b32 v15, 2, v15')
    e(f'ds_write_b32 v15, v14 offset:{L_SYNC}')
    e('s_waitcnt lgkmcnt(0)')
    stamp(2)
    if HD:
        e('s_mov_b32 s88, s10')
        e('s_mov_b32 s89, s11')
        e(f's_and_b32 s91, s2, 3')
        e(f's_cmp_eq_u32 s{S_WAVE}, 9')
        e('s_cselect_b32 s90, 1, 0')
        e('s_cmp_eq_u32 s91, 0')
        e('s_cselect_b32 s90, s90, 0')
        hd(4, 88, True); hd(5, 88)
    srd(S_WS, 12, 13, WS_SIZE)

    lab(f'{pf}_ROUND')
    e('v_lshrrev_b32 v100, 2, v0')
    e(f'v_lshlrev_b32 v14, {10 if ROWSEG else 2}, v100')
    e(f's_and_b32 s{S_TMP}, s2, 7')
    e(f's_lshl_b32 s{S_TMP}, s{S_TMP}, 5')
    e(f's_lshr_b32 s{S_TMP2}, s2, 3')
    e(f's_add_u32 s{S_TMP}, s{S_TMP}, s{S_TMP2}')
    e(f's_lshl_b32 s{S_TMP}, s{S_TMP}, {2 if ROWSEG else 10}')
    e(f's_add_u32 s{S_TMP}, s{S_TMP}, {hex(WS_SEG)}')
    e('v_mov_b32 v103, 0')
    e(f'v_cmp_gt_u32 vcc, {NC*4}, v0')
    e(f's_and_saveexec_b64 s[{S_T}:{S_T+1}], vcc')
    e(f'buffer_load_dword v103, v14, s[{S_WS}:{S_WS+3}], s{S_TMP} offen')
    e(f's_mov_b64 exec, s[{S_T}:{S_T+1}]')
    e(f's_or_b32 s{S_TMP}, s{S_PASS}, s{S_ROUND}')
    e(f's_cmp_lg_u32 s{S_TMP}, 0')
    e(f's_cbranch_scc1 {pf}_NOSRD')
    srd(S_TAB, 4, 5, N * 128)
    srd(S_X, 4, 5, N * 128)
    srd(S_T1, 12, 13, N * 128, WS_T1)
    srd(S_OUT, 8, 9, N * 128)
    if not WLATE:
        e('v_lshlrev_b32 v14, 4, v0')
        e(f's_mov_b32 s{S_TMP}, {hex(WS_WT)}')
        e(f'buffer_load_dwordx4 v[16:19], v14, s[{S_WS}:{S_WS+3}], s{S_TMP} offen')
        e(f's_add_u32 s{S_TMP}, s{S_TMP}, {IMG}')
        e(f'buffer_load_dwordx4 v[20:23], v14, s[{S_WS}:{S_WS+3}], s{S_TMP} offen')
    lab(f'{pf}_NOSRD')
    e('v_lshlrev_b32 v14, 2, v0')
    e('v_mov_b32 v15, 0')
    e('v_cmp_gt_u32 vcc, 512, v0')
    e(f's_and_saveexec_b64 s[{S_T}:{S_T+1}], vcc')
    e('ds_write_b32 v14, v15')
    e(f's_mov_b64 exec, s[{S_T}:{S_T+1}]')
    for i in range(4):
        e(f'v_mov_b32 v{88+i}, 0xffff')
    e('v_lshlrev_b32 v14, 4, v0')
    for i in range(4):
        e(f'ds_write_b128 v14, v[88:91] offset:{L_SORT + i*IMG}')
    e('v_and_b32 v102, 3, v0')
    e('v_lshlrev_b32 v102, 1, v102')
    e(f's_mul_i32 s{S_TMP}, s{S_ROUND}, {S}')
    e(f'v_add_u32 v102, s{S_TMP}, v102')
    e('v_mov_b32 v104, 1')
    e('s_waitcnt vmcnt(0)' if WLATE else 's_waitcnt vmcnt(2)')
    e(f's_or_b32 s{S_TMP}, s{S_PASS}, s{S_ROUND}')
    e(f's_cmp_eq_u32 s{S_TMP}, 0')
    e(f's_cbranch_scc1 {pf}_DW')
    e('s_waitcnt vmcnt(0)')
    lab(f'{pf}_DW')
    stamp(3)
    e('v_and_b32 v101, 0xffff, v103')
    e('v_lshrrev_b32 v103, 16, v103')
    e('v_add_u32 v101, v101, v102')
    e('v_lshlrev_b32 v101, 3, v101')
    e('v_lshl_add_u32 v101, v100, 15, v101')
    e('v_sub_u32 v105, v103, v102')
    for i in range(NIT):
        e(f'v_cmp_lt_i32 s[{S_M+4*i}:{S_M+4*i+1}], {8*i}, v105')
        e(f'v_cmp_lt_i32 s[{S_M+4*i+2}:{S_M+4*i+3}], {8*i+1}, v105')
    def b_load(i, w):
        e(f'buffer_load_dwordx4 v[{64+4*i}:{67+4*i}], v101, s[{S_WS}:{S_WS+3}], 0 offen offset:{64*i} ' + EPOL)
    b_load.two = False
    masked_loop(pf, 'LD', b_load, 0)
    e('s_waitcnt lgkmcnt(0)')
    e('s_barrier')
    e(f'v_cmp_lt_u32 vcc, {S}, v103')
    e(f's_cbranch_vccz {pf}_NOMAX')
    e(f'v_mov_b32 v15, {L_MAX}')
    e('ds_max_u32 v15, v103')
    lab(f'{pf}_NOMAX')
    e('s_waitcnt vmcnt(0)')
    e(f's_or_b32 s{S_TMP}, s{S_PASS}, s{S_ROUND}')
    e(f's_cmp_lg_u32 s{S_TMP}, 0')
    e(f's_cbranch_scc1 {pf}_NOW')
    if WLATE:
        e('v_lshlrev_b32 v14, 4, v0')
        e(f's_mov_b32 s{S_TMP}, {hex(WS_WT)}')
        e(f'buffer_load_dwordx4 v[16:19], v14, s[{S_WS}:{S_WS+3}], s{S_TMP} offen')
        e(f's_add_u32 s{S_TMP}, s{S_TMP}, {IMG}')
        e(f'buffer_load_dwordx4 v[20:23], v14, s[{S_WS}:{S_WS+3}], s{S_TMP} offen')
        if not PFL: prefetch(PF2, PF2BASE, 127, 126)
    else:
        if TPF:
            e(f's_mov_b32 m0, {L_JUNK}')
            for k in range(TPF):
                lo = 64 + 2*k; mk = S_M + 2*k
                e(f's_mov_b64 exec, s[{mk}:{mk+1}]')
                e(f'v_cmp_gt_u32 vcc, {2*RA}, v{lo+1}')
                e(f'v_mad_u32_u16 v126, v{lo}, s{S_128}, 0')
                e('s_and_b64 exec, exec, vcc')
                e(f's_cbranch_execz {pf}_TP{k}')
                e(f'buffer_load_dword v126, s[{S_TAB}:{S_TAB+3}], 0 offen lds')
                lab(f'{pf}_TP{k}')
            e('s_mov_b64 exec, -1')
        else:
            prefetch(PF2, PF2BASE, 127, 126)
        e('v_lshlrev_b32 v14, 4, v0')
        e(f'v_add_u32 v14, {L_W}, v14')
        e('ds_write_b128 v14, v[16:19]')
        e(f'v_cmp_gt_u32 vcc, {1536-NT}, v0')
        e(f's_and_saveexec_b64 s[{S_T}:{S_T+1}], vcc')
        e(f'ds_write_b128 v14, v[20:23] offset:{IMG}')
        e(f's_mov_b64 exec, s[{S_T}:{S_T+1}]')
    lab(f'{pf}_NOW')
    def b_atom(i, w):
        r = 65 + 4*i + 2*w
        e(f'v_lshlrev_b32 v{r}, 2, v{r}')
        e(f'ds_add_rtn_u32 v{88+2*i+w}, v{r}, v104')
    masked_loop(pf, 'AT', b_atom)
    e('s_waitcnt lgkmcnt(0)')
    e('s_barrier')
    stamp(5)
    if PFL:
        e(f's_or_b32 s{S_TMP}, s{S_PASS}, s{S_ROUND}')
        e(f's_cmp_lg_u32 s{S_TMP}, 0')
        e(f's_cbranch_scc1 {pf}_NOPFL')
        prefetch(PF2, PF2BASE, 127, 126)
        lab(f'{pf}_NOPFL')
    e(f's_cmp_lg_u32 s{S_WAVE}, {NW-1}')
    e(f's_cbranch_scc1 {pf}_SCAN_DONE')
    e('v_and_b32 v106, 63, v0')
    e('v_lshlrev_b32 v14, 5, v106')
    e('ds_read_b128 v[108:111], v14')
    e('ds_read_b128 v[112:115], v14 offset:16')
    e('v_mov_b32 v60, 0')
    e('v_mov_b32 v61, 0')
    e('v_lshlrev_b32 v107, 3, v106')
    e(f'ds_write_b64 v107, v[60:61] offset:{L_H2}')
    e('s_waitcnt lgkmcnt(1)')
    for i in range(8):
        e(f'v_add_u32 v{108+i}, 3, v{108+i}')
        e(f'v_and_b32 v{108+i}, -4, v{108+i}')
    e('v_mov_b32 v48, 0')
    e('v_mov_b32 v49, v108')
    for i in range(2, 8):
        e(f'v_add_u32 v{48+i}, v{47+i}, v{107+i}')
    e('v_add_u32 v56, v55, v115')
    e('v_mov_b32 v57, v56')
    wave_scan(57)
    e('v_sub_u32 v58, v57, v56')
    for i in range(8):
        e(f'v_add_u32 v{48+i}, v58, v{48+i}')
    e(f'ds_write_b128 v14, v[48:51] offset:{L_OFF}')
    e(f'ds_write_b128 v14, v[52:55] offset:{L_OFF+16}')
    e('s_waitcnt lgkmcnt(0)')
    lab(f'{pf}_SCAN_DONE')
    e('s_barrier')
    stamp(6)
    def b_rd(i, w):
        r = 65 + 4*i + 2*w
        e(f'ds_read_b32 v{r}, v{r} offset:{L_OFF}')
    masked_loop(pf, 'RD', b_rd)
    e('s_waitcnt lgkmcnt(0)')
    def b_wr(i, w):
        r = 65 + 4*i + 2*w
        e(f'v_add_lshl_u32 v{r}, v{r}, v{88+2*i+w}, 2')
        e(f'ds_write_b32 v{r}, v{r-1} offset:{L_SORT}')
    masked_loop(pf, 'WR', b_wr)
    e(f's_cmp_lg_u32 s{S_WAVE}, {NW-1}')
    e(f's_cbranch_scc1 {pf}_DESC_DONE')
    e(f's_or_b32 s{S_TMP}, s{S_PASS}, s{S_ROUND}')
    e(f's_cmp_lg_u32 s{S_TMP}, 0')
    e(f's_cbranch_scc1 {pf}_DESC_REDO')
    e('v_cmp_gt_u32 vcc, 50, v106')
    e(f's_mov_b64 s[{S_T}:{S_T+1}], vcc')
    e(f'v_cmp_gt_u32 vcc, {RA//4}, v106')
    e('v_mov_b32 v126, 127')
    e('v_mov_b32 v15, 63')
    e('v_cndmask_b32 v126, v126, v15, vcc')
    e(f's_mov_b64 exec, s[{S_T}:{S_T+1}]')
    for i in range(4):
        a0 = 108 + 2*i; a1 = a0 + 1
        e(f'v_lshrrev_b32 v{a0}, 2, v{a0}')
        e(f'v_lshrrev_b32 v{a1}, 2, v{a1}')
        e(f'v_min_u32 v15, 7, v{a0}')
        e(f'v_min_u32 v59, 7, v{a1}')
        e(f'v_lshl_add_u32 v15, v15, 3, v59')
        e(f'v_sub_u32 v15, v126, v15')
        e(f'v_lshlrev_b32 v{116+i}, 2, v15')
        e(f'ds_add_rtn_u32 v{120+i}, v{116+i}, v104 offset:{L_H2}')
    e('s_mov_b64 exec, -1')
    e('s_waitcnt lgkmcnt(0)')
    e(f'ds_read_b64 v[124:125], v107 offset:{L_H2}')
    e('s_waitcnt lgkmcnt(0)')
    e('v_add_u32 v125, v124, v125')
    e('v_mov_b32 v62, v125')
    wave_scan(62)
    e('v_sub_u32 v62, v62, v125')
    e('v_cmp_lt_u32 vcc, 31, v106')
    e('v_mov_b32 v63, 0')
    e('v_mov_b32 v15, 8')
    e('v_cndmask_b32 v63, v63, v15, vcc')
    e('v_add_u32 v62, v62, v63')
    e('v_add_u32 v63, v62, v124')
    e(f'ds_write_b64 v107, v[62:63] offset:{L_H2+512}')
    e('s_mov_b64 exec, 0xff')
    e(f'v_mov_b32 v60, {R}')
    e('v_mov_b32 v61, 0')
    e('v_lshlrev_b32 v15, 3, v106')
    e(f'ds_write_b64 v15, v[60:61] offset:{L_DESC + RA*8}')
    e(f's_mov_b64 exec, s[{S_T}:{S_T+1}]')
    e('s_waitcnt lgkmcnt(0)')
    for i in range(4):
        e(f'ds_read_b32 v{116+i}, v{116+i} offset:{L_H2+512}')
    for i in range(4):
        e(f'v_lshl_add_u32 v15, v106, 2, {i}')
        e(f'v_lshl_or_b32 v{32+2*i}, v{48+2*i}, 6, v15')
        e(f'v_lshl_or_b32 v{33+2*i}, v{109+2*i}, 16, v{108+2*i}')
    e('s_waitcnt lgkmcnt(0)')
    for i in range(4):
        e(f'v_add_lshl_u32 v{116+i}, v{116+i}, v{120+i}, 3')
        e(f'ds_write_b64 v{116+i}, v[{32+2*i}:{33+2*i}] offset:{L_DESC}')
    e('s_mov_b64 exec, -1')
    e(f's_branch {pf}_DESC_DONE')
    lab(f'{pf}_DESC_REDO')
    e('v_cmp_gt_u32 vcc, 52, v106')
    e('s_mov_b64 exec, vcc')
    e(f'ds_read_b128 v[108:111], v14 offset:{L_DESC}')
    e(f'ds_read_b128 v[112:115], v14 offset:{L_DESC+16}')
    e('s_waitcnt lgkmcnt(0)')
    for i in range(4):
        d0 = 108 + 2*i
        e(f'v_and_b32 v{d0}, 255, v{d0}')
        e(f'v_lshlrev_b32 v15, 3, v{d0}')
        e(f'v_add_u32 v15, {L_OFF}, v15')
        e(f'ds_read2_b32 v[{48+4*i}:{49+4*i}], v15 offset0:0 offset1:1')
        e(f'ds_read_b32 v{50+4*i}, v15 offset:8')
    e('s_waitcnt lgkmcnt(0)')
    for i in range(4):
        d0 = 108 + 2*i
        e(f'v_lshl_or_b32 v{d0}, v{48+4*i}, 6, v{d0}')
        e(f'v_sub_u32 v15, v{49+4*i}, v{48+4*i}')
        e(f'v_lshrrev_b32 v15, 2, v15')
        e(f'v_sub_u32 v{d0+1}, v{50+4*i}, v{49+4*i}')
        e(f'v_lshl_or_b32 v{d0+1}, v{d0+1}, 14, v15')
    e(f'ds_write_b128 v14, v[108:111] offset:{L_DESC}')
    e(f'ds_write_b128 v14, v[112:115] offset:{L_DESC+16}')
    e('s_mov_b64 exec, -1')
    lab(f'{pf}_DESC_DONE')
    if WLATE:
        e(f's_or_b32 s{S_TMP}, s{S_PASS}, s{S_ROUND}')
        e(f's_cmp_lg_u32 s{S_TMP}, 0')
        e(f's_cbranch_scc1 {pf}_NOW2')
        e('v_lshlrev_b32 v14, 4, v0')
        e(f'v_add_u32 v14, {L_W}, v14')
        e(f's_waitcnt vmcnt({1 if PF2 else 0})')
        e('ds_write_b128 v14, v[16:19]')
        e(f'v_cmp_gt_u32 vcc, {1536-NT}, v0')
        e(f's_and_saveexec_b64 s[{S_T}:{S_T+1}], vcc')
        e(f'ds_write_b128 v14, v[20:23] offset:{IMG}')
        e(f's_mov_b64 exec, s[{S_T}:{S_T+1}]')
        lab(f'{pf}_NOW2')
    e('s_waitcnt lgkmcnt(0)')
    e('s_barrier')
    stamp(7)
    hd(6, 88)

    BOFF = (RA + 8) * 8
    lab(f'{pf}_PHASE_B')
    e(f's_mov_b32 s{S_PH}, 0')
    e(f'v_mov_b32 v15, {L_MAX}')
    e('ds_read_b32 v6, v15')
    e('v_and_b32 v14, 1, v0')
    e(f's_mov_b32 s{S_TMP}, 0x0c0c0302')
    e(f's_mov_b32 s{S_TMP2}, 0x03020c0c')
    e('v_cmp_eq_u32 vcc, 0, v14')
    e(f'v_mov_b32 v14, s{S_TMP2}')
    e(f'v_mov_b32 v15, s{S_TMP}')
    e('v_cndmask_b32 v14, v14, v15, vcc')
    e('v_and_b32 v15, 2, v0')
    e('v_cmp_eq_u32 vcc, 0, v15')
    e('v_mov_b32 v15, 0x0c0c0c0c')
    e('s_nop 0')
    e(f'v_cndmask_b32 v{V_SEL0}, v15, v14, vcc')
    e(f'v_cndmask_b32 v{V_SEL1}, v14, v15, vcc')
    e('s_waitcnt lgkmcnt(0)')
    e(f'v_readfirstlane_b32 s{S_NR}, v6')
    lab(f'{pf}_SEG')
    e('v_bfe_u32 v15, v0, 3, 3')
    e(f'v_lshl_add_u32 v14, v15, 3, s{S_PAIR}')
    e('ds_read_b64 v[8:9], v14')
    e(f'ds_read_b64 v[10:11], v14 offset:{BOFF}')
    e(f's_cmp_lg_u32 s{S_PASS}, 0')
    e(f's_cbranch_scc1 {pf}_SEG2')
    e(f's_setprio {P1S0}')
    e(f's_movk_i32 s{S_INC}, 32')
    e('s_waitcnt lgkmcnt(0)')
    e('v_and_b32 v14, 255, v8')
    e('v_and_b32 v15, 255, v10')
    e(f'v_lshl_or_b32 v{V_ROWS}, v15, 16, v14')
    e(f's_cmp_eq_u32 s{S_PH}, 0')
    e(f's_cbranch_scc1 {pf}_SEG1A')
    e(f's_setprio {P1S1}')
    e('v_mov_b32 v8, v10')
    e('v_mov_b32 v9, v11')
    lab(f'{pf}_SEG1A')
    e(f'v_lshrrev_b32 v{V_PA}, 8, v8')
    e(f'v_lshlrev_b32 v{V_PA}, 4, v{V_PA}')
    e(f'v_add_u32 v{V_PA}, {L_SORT}, v{V_PA}')
    e('v_and_b32 v14, 0xffff, v9')
    e('v_lshrrev_b32 v15, 16, v9')
    e('v_add_u32 v14, v14, v15')
    e(f'v_lshl_add_u32 v{V_EA}, v14, 4, v{V_PA}')
    e(f'v_add_u32 v{V_PB}, 16, v{V_PA}')
    e(f'v_mov_b32 v{V_EB}, v{V_EA}')
    e(f's_branch {pf}_GW_OK')
    lab(f'{pf}_SEG2')
    e(f's_movk_i32 s{S_INC}, 16')
    e(f's_lshl_b32 s{S_TMP}, s{S_PH}, 2')
    e(f's_add_u32 s{S_TMP}, s{S_TMP}, {L_SYNC+8}')
    e(f'v_mov_b32 v14, s{S_TMP}')
    e('ds_read_b32 v15, v14')
    e('s_waitcnt lgkmcnt(0)')
    e(f'v_readfirstlane_b32 s{S_TMP2}, v15')
    for (D, P, EE) in ((8, V_PA, V_EA), (10, V_PB, V_EB)):
        e(f'v_lshrrev_b32 v{P}, 8, v{D}')
        e(f'v_lshlrev_b32 v{P}, 4, v{P}')
        e(f'v_add_u32 v{P}, {L_SORT}, v{P}')
        e(f'v_and_b32 v{EE}, 0xffff, v{D+1}')
        e(f'v_lshl_add_u32 v{EE}, v{EE}, 4, v{P}')
    e(f's_setprio {P2S0}')
    e(f's_cmp_eq_u32 s{S_PH}, 0')
    e(f's_cbranch_scc1 {pf}_SEG2A')
    e(f's_setprio {P2S1}')
    for (D, P, EE) in ((8, V_PA, V_EA), (10, V_PB, V_EB)):
        e(f'v_mov_b32 v{P}, v{EE}')
        e(f'v_lshrrev_b32 v{D+1}, 16, v{D+1}')
        e(f'v_lshl_add_u32 v{EE}, v{D+1}, 4, v{EE}')
    lab(f'{pf}_SEG2A')
    e(f's_cmp_lg_u32 s{S_TMP2}, 0')
    e(f's_cbranch_scc1 {pf}_GW_OK')
    e(f's_cmp_eq_u32 s{S_POST}, 0')
    e(f's_cbranch_scc1 {pf}_RET1')
    e(f's_mov_b32 s{S_RET}, 1')
    e(f's_mov_b32 s{S_NOUT}, 0')
    e(f's_branch {pf}_POSTWORK')
    lab(f'{pf}_RET1')
    e(f's_lshl_b32 s{S_TMP}, s{S_PH}, 2')
    e(f's_add_u32 s{S_TMP}, s{S_TMP}, {L_SYNC+8}')
    e(f'v_mov_b32 v14, s{S_TMP}')
    e('v_mov_b32 v15, 1')
    e('v_and_b32 v64, 15, v0')
    e('v_lshlrev_b32 v64, 2, v64')
    e('s_mov_b64 exec, 1')
    e('ds_add_rtn_u32 v15, v14, v15 offset:8')
    e(f's_mov_b32 s{S_SPIN}, 0')
    e('s_waitcnt lgkmcnt(0)')
    e(f'v_readfirstlane_b32 s{S_TMP}, v15')
    e(f's_cmp_lg_u32 s{S_TMP}, 0')
    e(f's_cbranch_scc1 {pf}_GW_SPIN')
    e(f's_lshl_b32 s{S_TMP2}, s{S_PH}, 13')
    e(f's_add_u32 s{S_TMP2}, s{S_TMP2}, {hex(WS_BAR+2048)}')
    e(f's_and_b32 s{S_TMP}, s2, 31')
    e(f's_lshl_b32 s{S_TMP}, s{S_TMP}, 7')
    e(f's_add_u32 s{S_TMP2}, s{S_TMP2}, s{S_TMP}')
    if SCAL:
        lab(f'{pf}_POLL')
        e(f's_mov_b32 s{S_TMP}, 0')
        e(f's_atomic_add s{S_TMP}, s[12:13], s{S_TMP2} glc')
        e('s_waitcnt lgkmcnt(0)')
        e(f's_add_u32 s{S_SPIN}, s{S_SPIN}, 1')
        e(f's_cmp_ge_u32 s{S_TMP}, {NB if DIRECT else 16}')
        e(f's_cbranch_scc1 {pf}_POLLED')
    else:
        e('s_mov_b64 exec, 0xffff')
        lab(f'{pf}_POLL')
        e(f'buffer_load_dword v65, v64, s[{S_WS}:{S_WS+3}], s{S_TMP2} offen sc1')
        e('s_waitcnt vmcnt(0)')
        e('v_cmp_eq_u32 vcc, 0, v65')
        e(f's_add_u32 s{S_SPIN}, s{S_SPIN}, 1')
        e(f's_cbranch_vccz {pf}_POLLED')
    e(f's_cmp_ge_u32 s{S_SPIN}, {SPIN_MAX}')
    e(f's_cbranch_scc1 {pf}_POLLED')
    e(f's_sleep {SLP}')
    e(f's_branch {pf}_POLL')
    lab(f'{pf}_POLLED')
    if HD:
        e('s_mov_b32 s92, s90')
        e('s_cmp_eq_u32 s91, 0')
        e('s_cselect_b32 s90, 1, 0')
        e(f's_cmp_lg_u32 s{S_PH}, 0')
        e(f's_cbranch_scc1 {pf}_HD1')
        hd(9, 88, True); hd(10, 88)
        e(f's_branch {pf}_HD2')
        lab(f'{pf}_HD1')
        hd(11, 88, True); hd(12, 88)
        lab(f'{pf}_HD2')
        e('s_mov_b32 s90, s92')
    e('v_mov_b32 v15, 1')
    e('ds_write_b32 v14, v15')
    e(f's_branch {pf}_GW_DONE')
    lab(f'{pf}_GW_SPIN')
    e('s_sleep 1')
    e('ds_read_b32 v15, v14')
    e('s_waitcnt lgkmcnt(0)')
    e(f'v_readfirstlane_b32 s{S_TMP}, v15')
    e(f's_cmp_eq_u32 s{S_TMP}, 0')
    e(f's_cbranch_scc1 {pf}_GW_SPIN')
    lab(f'{pf}_GW_DONE')
    e('s_mov_b64 exec, -1')
    e('s_waitcnt lgkmcnt(0)')
    lab(f'{pf}_GW_OK')
    if INSTR:
        e(f's_lshl_b32 s{S_TMP}, s{S_PASS}, 1')
        e(f's_or_b32 s{S_TMP}, s{S_TMP}, s{S_PH}')
        e(f's_cmp_lg_u32 s{S_TMP}, 2')
        e(f's_cbranch_scc1 {pf}_ST9')
        stamp(9)
        lab(f'{pf}_ST9')
        e(f's_cmp_lg_u32 s{S_TMP}, 3')
        e(f's_cbranch_scc1 {pf}_ST4')
        stamp(4)
        lab(f'{pf}_ST4')
    next_entries(0, 0)
    next_entries(0, 1)
    e(f's_or_b64 s[{S_T}:{S_T+1}], vcc, s[{S_MASKB}:{S_MASKB+1}]')
    e(f's_cselect_b32 s{S_TMP2}, 1, 0')
    next_entries(1, 0)
    next_entries(1, 1)
    e(f's_or_b64 s[{S_T}:{S_T+1}], vcc, s[{S_MASKB}:{S_MASKB+1}]')
    e(f's_cselect_b32 s{S_TMP}, 2, 0')
    e(f's_or_b32 s{S_NST}, s{S_TMP}, s{S_TMP2}')
    e(f's_bitcmp1_b32 s{S_NST}, 0')
    e(f's_cbranch_scc0 {pf}_PRO_DONE')
    e('s_waitcnt lgkmcnt(3)')
    issue(0, 0)
    e('s_waitcnt lgkmcnt(2)')
    issue(0, 1)
    e(f's_bitcmp1_b32 s{S_NST}, 1')
    e(f's_cbranch_scc0 {pf}_PRO_DONE')
    e('s_waitcnt lgkmcnt(1)')
    issue(1, 0)
    e('s_waitcnt lgkmcnt(0)')
    issue(1, 1)
    lab(f'{pf}_PRO_DONE')
    e(f's_cmp_eq_u32 s{S_POST}, 0')
    e(f's_cbranch_scc1 {pf}_RET2')
    e(f's_mov_b32 s{S_RET}, 2')
    e(f's_mov_b32 s{S_NOUT}, s{S_NST}')
    e(f's_branch {pf}_POSTWORK')
    lab(f'{pf}_RET2')
    e(f's_and_b32 s{S_TMP}, s{S_PASS}, s{S_PH}')
    e(f's_cmp_lg_u32 s{S_TMP}, 0')
    e(f's_cbranch_scc1 {pf}_GO')
    for r in range(16):
        e(f'v_mov_b32 v{ACC[0]+r}, 0')
    e(f's_cmp_eq_u32 s{S_ROUND}, 0')
    e(f's_cbranch_scc1 {pf}_GO')
    part_addrs()
    e(f's_cmp_lg_u32 s{S_PASS}, 0')
    e(f's_cbranch_scc1 {pf}_LP2')
    e(f's_cmp_eq_u32 s{S_PH}, 0')
    e(f's_cbranch_scc1 {pf}_LP1')
    e('v_mov_b32 v14, v15')
    e(f's_branch {pf}_LP1')
    lab(f'{pf}_LP2')
    e(f'buffer_load_dwordx4 v[40:43], v15, s[{S_WS}:{S_WS+3}], s{S_TMP} offen')
    e(f'buffer_load_dwordx4 v[44:47], v15, s[{S_WS}:{S_WS+3}], s{S_TMP} offen offset:16')
    lab(f'{pf}_LP1')
    e(f'buffer_load_dwordx4 v[32:35], v14, s[{S_WS}:{S_WS+3}], s{S_TMP} offen')
    e(f'buffer_load_dwordx4 v[36:39], v14, s[{S_WS}:{S_WS+3}], s{S_TMP} offen offset:16')
    e('s_waitcnt vmcnt(0)')
    lab(f'{pf}_GO')
    e(f's_cmp_eq_u32 s{S_NST}, 0')
    e(f's_cbranch_scc1 {pf}_SEG_END')
    e(f's_cmp_eq_u32 s{S_NST}, 1')
    e(f's_cbranch_scc1 {pf}_DRAIN0')
    lab(f'{pf}_LOOP')
    for p in (0, 1):
        e('s_waitcnt vmcnt(12)')
        consume(p, 0)
        next_entries(p, 0)
        e('s_waitcnt vmcnt(8)')
        consume(p, 1)
        next_entries(p, 1)
        e(f's_or_b64 s[{S_T}:{S_T+1}], vcc, s[{S_MASKB}:{S_MASKB+1}]')
        e(f's_cbranch_scc0 {pf}_DRAIN{p^1}')
        e('s_waitcnt lgkmcnt(1)')
        issue(p, 0)
        e('s_waitcnt lgkmcnt(0)')
        issue(p, 1)
    e(f's_branch {pf}_LOOP')
    for q in (1, 0):
        lab(f'{pf}_DRAIN{q}')
        e('s_waitcnt vmcnt(4)')
        consume(q, 0)
        e('s_waitcnt vmcnt(0)')
        consume(q, 1)
        if q == 1:
            e(f's_branch {pf}_SEG_END')
    lab(f'{pf}_SEG_END')
    e('s_nop 4')
    e('s_waitcnt lgkmcnt(0)')
    e(f's_add_u32 s{S_TMP}, s{S_ROUND}, 1')
    e(f's_mul_i32 s{S_TMP}, s{S_TMP}, {S}')
    e(f's_cmp_ge_u32 s{S_TMP}, s{S_NR}')
    e(f's_cselect_b32 s{S_FIRST}, 1, 0')
    e(f's_cmp_lg_u32 s{S_PASS}, 0')
    e(f's_cbranch_scc1 {pf}_END_P2')
    for r in range(8):
        e(f'v_add_f32 v{32+r}, v{32+r}, v{40+r}')
    e(f's_cmp_eq_u32 s{S_WAVE}, {NW-1}')
    e(f's_cselect_b32 s{S_TMP}, 1, 0')
    e(f's_andn2_b32 s{S_TMP}, s{S_TMP}, s{S_PH}')
    e(f's_cmp_lg_u32 s{S_TMP}, 0')
    e(f's_cbranch_scc1 {pf}_P1NEXT')
    e(f's_cmp_lg_u32 s{S_FIRST}, 0')
    e(f's_cbranch_scc1 {pf}_PUB')
    part_addrs()
    e(f's_cmp_eq_u32 s{S_PH}, 0')
    e(f's_cbranch_scc1 {pf}_SP1')
    e('v_mov_b32 v14, v15')
    lab(f'{pf}_SP1')
    e(f'buffer_store_dwordx4 v[32:35], v14, s[{S_WS}:{S_WS+3}], s{S_TMP} offen')
    e(f'buffer_store_dwordx4 v[36:39], v14, s[{S_WS}:{S_WS+3}], s{S_TMP} offen offset:16')
    e('s_waitcnt vmcnt(0)')
    e(f's_branch {pf}_P1NEXT')
    lab(f'{pf}_PUB')
    e(f's_cmp_lg_u32 s{S_PH}, 0')
    e(f's_cbranch_scc1 {pf}_PUBB')
    for d in range(4):
        e(f'v_cvt_pk_bf16_f32 v{24+d}, v{32+2*d}, v{33+2*d}')
    e(f'v_mad_u32_u16 v14, v{V_ROWS}, s{S_128}, v{V_J}')
    e(f'v_add_u32 v14, s{S_ROW0}, v14')
    e(f'buffer_store_dwordx4 v[24:27], v14, s[{S_T1}:{S_T1+3}], 0 offen sc1')
    if DBL: e(f'buffer_store_dwordx4 v[24:27], v14, s[{S_T1}:{S_T1+3}], 0 offen')
    e(f'buffer_load_dwordx4 v[16:19], v14, s[{S_X}:{S_X+3}], 0 offen')
    if 'sig' in XP: stamp(7)
    e(f's_branch {pf}_SIG')
    lab(f'{pf}_PUBB')
    stamp(8)
    hd(8, 88); hd(7, 88, True)
    for d in range(4):
        e(f'v_cvt_pk_bf16_f32 v{28+d}, v{32+2*d}, v{33+2*d}')
    e(f'v_mad_u32_u16 v14, v{V_ROWS}, s{S_128}, v{V_J} op_sel:[1,0,0,0]')
    e(f'v_add_u32 v14, s{S_ROW0}, v14')
    e(f'buffer_store_dwordx4 v[28:31], v14, s[{S_T1}:{S_T1+3}], 0 offen sc1')
    if DBL: e(f'buffer_store_dwordx4 v[28:31], v14, s[{S_T1}:{S_T1+3}], 0 offen')
    e(f'buffer_load_dwordx4 v[20:23], v14, s[{S_X}:{S_X+3}], 0 offen')
    lab(f'{pf}_SIG')
    e(f's_add_u32 s{S_POST}, s{S_PH}, 1')
    e(f's_mov_b32 s{S_RET}, 4')
    e(f's_mov_b32 s{S_NOUT}, 0')
    e(f's_branch {pf}_POSTWORK')
    lab(f'{pf}_P1NEXT')
    e(f's_cmp_lg_u32 s{S_PH}, 0')
    e(f's_cbranch_scc1 {pf}_P1DONE')
    e(f's_mov_b32 s{S_PH}, 1')
    gate('A', 0, KA)
    e(f's_branch {pf}_SEG')
    lab(f'{pf}_P1DONE')
    e(f's_cmp_lg_u32 s{S_FIRST}, 0')
    e(f's_cbranch_scc1 {pf}_TOP2')
    lab(f'{pf}_NEXTROUND')
    e(f's_add_u32 s{S_ROUND}, s{S_ROUND}, 1')
    e('s_waitcnt vmcnt(0) lgkmcnt(0)')
    e('s_barrier')
    e(f's_branch {pf}_ROUND')
    lab(f'{pf}_TOP2')
    for i in range(4):
        e(f's_mov_b32 s{S_TAB+i}, s{S_T1+i}')
    e(f's_mov_b32 s{S_PASS}, 1')
    e(f's_mov_b32 s{S_ROUND}, 0')
    e(f's_mov_b32 s{S_PH}, 0')
    gate('B', 1, KB)
    e(f's_cmp_eq_u32 s{S_NR}, 0')
    e(f's_cbranch_scc1 {pf}_SEG')
    e(f's_mov_b32 s{S_RET}, 3')
    e(f's_mov_b32 s{S_NOUT}, 0')
    e(f's_branch {pf}_POSTWORK')
    lab(f'{pf}_RET3')
    e('s_waitcnt lgkmcnt(0)')
    e('s_barrier')
    e(f's_branch {pf}_ROUND')

    def wait3(k, tag):
        e(f's_cmp_eq_u32 s{S_NOUT}, 3')
        e(f's_cbranch_scc1 {pf}_W16{tag}')
        e(f's_cmp_eq_u32 s{S_NOUT}, 1')
        e(f's_cbranch_scc1 {pf}_W8{tag}')
        e(f's_waitcnt vmcnt({k})')
        lab(f'{pf}_W8{tag}')
        e(f's_waitcnt vmcnt({8+k})')
        lab(f'{pf}_W16{tag}')
        e(f's_waitcnt vmcnt({16+k})')
    lab(f'{pf}_POSTWORK')
    e(f's_cmp_eq_u32 s{S_POST}, 3')
    e(f's_cbranch_scc1 {pf}_PGEMM')
    e(f's_sub_u32 s{S_POST}, s{S_POST}, 1')
    e('v_mov_b32 v33, 1')
    e(f's_lshl_b32 s{S_TMP}, s{S_POST}, 2')
    e(f's_add_u32 s{S_TMP}, s{S_TMP}, {L_SYNC}')
    e(f'v_mov_b32 v34, s{S_TMP}')
    e(f's_lshl_b32 s{S_TMP2}, s{S_POST}, 13')
    e(f's_add_u32 s{S_TMP2}, s{S_TMP2}, {hex(WS_BAR)}')
    e(f's_and_b32 s{S_SPIN}, s2, 15')
    e(f's_lshl_b32 s{S_TMP}, s{S_SPIN}, 7')
    e(f's_add_u32 s{S_T}, s{S_TMP}, s{S_TMP2}')
    e(f's_cmp_lt_u32 s{S_SPIN}, {NB % 16}')
    e(f's_cselect_b32 s{S_SPIN}, {NB//16}, {NB//16 - 1}')
    e('v_and_b32 v36, 31, v0')
    e('v_lshlrev_b32 v36, 7, v36')
    e('s_waitcnt vmcnt(1)')
    e('s_mov_b64 exec, 1')
    e('ds_add_rtn_u32 v35, v34, v33')
    e('s_waitcnt lgkmcnt(0)')
    e(f'v_readfirstlane_b32 s{S_TMP}, v35')
    e(f's_sub_u32 s{S_TMP}, s{S_TMP}, s{S_POST}')
    e(f's_cmp_lg_u32 s{S_TMP}, 11')
    e(f's_cbranch_scc1 {pf}_NOSIG')
    if not DIRECT:
        e(f's_mov_b32 s{S_TMP}, 1')
        e(f's_atomic_add s{S_TMP}, s[12:13], s{S_T} glc')
        e('s_waitcnt lgkmcnt(0)')
        e(f's_cmp_lg_u32 s{S_TMP}, s{S_SPIN}')
        e(f's_cbranch_scc1 {pf}_NOSIG')
    e('s_mov_b32 exec_lo, -1')
    e(f'buffer_atomic_add v33, v36, s[{S_WS}:{S_WS+3}], s{S_TMP2} offen offset:2048')
    e('s_nop 1')
    lab(f'{pf}_NOSIG')
    e('s_mov_b64 exec, -1')
    e(f's_mul_i32 s{S_POST}, s{S_POST}, 3')
    e(f's_branch {pf}_P1NEXT')
    lab(f'{pf}_PGEMM')
    e(f's_mov_b32 s{S_POST}, 0')
    tile_regs(14, 15, 6)
    e('ds_write_b128 v14, v[24:27] offset:128')
    e(f'ds_write_b128 v14, v[28:31] offset:{8*ROW_STRIDE+128}')
    e('s_waitcnt vmcnt(17)')
    wait3(0, 'b')
    e('ds_write_b128 v14, v[16:19]')
    e(f'ds_write_b128 v14, v[20:23] offset:{8*ROW_STRIDE}')
    e('s_waitcnt lgkmcnt(0)')
    for r in range(16):
        e(f'v_mov_b32 v{ACCO+r}, 0')
    gemm_steps(range(4), 15, 6, 32, [36, 40, 44], lambda ks: (ks >> 1) * 128)
    lab(f'{pf}_POSTEND')
    e(f's_cmp_eq_u32 s{S_RET}, 2')
    e(f's_cbranch_scc1 {pf}_RET2')
    e(f's_cmp_eq_u32 s{S_RET}, 1')
    e(f's_cbranch_scc1 {pf}_RET1')
    e(f's_cmp_eq_u32 s{S_RET}, 4')
    e(f's_cbranch_scc1 {pf}_P1NEXT')
    e(f's_branch {pf}_RET3')
    lab(f'{pf}_END_P2')
    e(f's_cmp_lg_u32 s{S_PH}, 0')
    e(f's_cbranch_scc1 {pf}_P2DONE')
    if 'p2' in XP: stamp(7)
    e(f's_mov_b32 s{S_PH}, 1')
    e(f's_branch {pf}_SEG')
    lab(f'{pf}_P2DONE')
    e(f's_cmp_lg_u32 s{S_FIRST}, 0')
    e(f's_cbranch_scc1 {pf}_FINAL2')
    part_addrs()
    e(f'buffer_store_dwordx4 v[40:43], v15, s[{S_WS}:{S_WS+3}], s{S_TMP} offen')
    e(f'buffer_store_dwordx4 v[44:47], v15, s[{S_WS}:{S_WS+3}], s{S_TMP} offen offset:16')
    e(f's_cmp_eq_u32 s{S_WAVE}, {NW-1}')
    e(f's_cbranch_scc1 {pf}_NEXTROUND')
    e(f'buffer_store_dwordx4 v[32:35], v14, s[{S_WS}:{S_WS+3}], s{S_TMP} offen')
    e(f'buffer_store_dwordx4 v[36:39], v14, s[{S_WS}:{S_WS+3}], s{S_TMP} offen offset:16')
    e(f's_branch {pf}_NEXTROUND')

    lab(f'{pf}_FINAL2')
    if 'sig' not in XP: stamp(2)
    tile_regs(14, 15, 94)
    e('ds_read_b128 v[64:67], v14')
    e(f'ds_read_b128 v[68:71], v14 offset:{8*ROW_STRIDE}')
    e('v_and_b32 v93, 7, v0')
    e(f'v_lshl_add_u32 v93, v93, 3, s{S_PAIR}')
    e('v_bfe_u32 v92, v0, 3, 1')
    e(f'v_mul_u32_u24 v92, {(RA+8)*8}, v92')
    e('v_add_u32 v93, v93, v92')
    e('ds_read_b32 v93, v93')
    for f in range(8):
        e(f'ds_read_b128 v[{96+4*f}:{99+4*f}], v94 offset:{(16+f)*1024}')
    e('s_waitcnt lgkmcnt(9)')
    for h in range(2):
        for d in range(4):
            xs = 64 + 4*h + d
            e(f'v_lshlrev_b32 v88, 16, v{xs}')
            e(f'v_and_b32 v89, s{S_HI}, v{xs}')
            e(f'v_fma_f32 v88, 2.0, v{ACC[h]+2*d}, -v88')
            e(f'v_fma_f32 v89, 2.0, v{ACC[h]+2*d+1}, -v89')
            e(f'v_cvt_pk_bf16_f32 v{80+4*h+d}, v88, v89')
    e('ds_write_b128 v14, v[80:83] offset:128')
    e(f'ds_write_b128 v14, v[84:87] offset:{8*ROW_STRIDE+128}')
    e('ds_read_b128 v[72:75], v15 offset:128')
    e('ds_read_b128 v[76:79], v15 offset:192')
    mfma_run(16, 24, lambda ks: 72 + 4*(ks-4), ['d'] + ['A%d' % i for i in range(16, 24)] + ['w', 'w', 'B4', 'B5'], 94)
    e('v_and_b32 v93, 255, v93')
    e('v_bfe_u32 v14, v0, 4, 2')
    e('v_lshlrev_b32 v14, 5, v14')
    e('v_lshl_add_u32 v14, v93, 7, v14')
    e(f'v_add_u32 v14, s{S_ROW0}, v14')
    e(f'v_cmp_gt_u32 vcc, {R}, v93')
    e('s_and_b64 exec, exec, vcc')
    e('s_nop 7')
    for mt in range(4):
        e(f'v_cvt_pk_bf16_f32 v{64+2*mt}, v{ACCO+4*mt}, v{ACCO+4*mt+1}')
        e(f'v_cvt_pk_bf16_f32 v{65+2*mt}, v{ACCO+4*mt+2}, v{ACCO+4*mt+3}')
    e(f'buffer_store_dwordx4 v[64:67], v14, s[{S_OUT}:{S_OUT+3}], 0 offen ' + OPOL)
    e(f'buffer_store_dwordx4 v[68:71], v14, s[{S_OUT}:{S_OUT+3}], 0 offen offset:16 ' + OPOL)
    lab(f'{pf}_END')
    if HD:
        e('s_waitcnt vmcnt(0)')
        hd(14, 88); hd(13, 88, True)
    dump_stamps(1, S_WS)
    lab(f'{pf}_END2')
    e('s_endpgm')
    out.extend(cold)
    lab('M_CODE_END')

def gen_wprep():
    e(f's_cmp_gt_u32 s2, {NC+1}')
    e('s_cbranch_scc1 K1_CPF')
    e('s_load_dwordx2 s[10:11], s[0:1], 32')
    e('s_load_dwordx2 s[12:13], s[0:1], 56')
    e(f's_sub_u32 s36, s2, {NC}')
    e('s_mul_i32 s36, s36, 768')
    e('v_cmp_gt_u32 vcc, 768, v0')
    e('s_and_saveexec_b64 s[40:41], vcc')
    e('s_cbranch_execz K1_ZBAR')
    e('v_add_u32 v1, s36, v0')
    e('v_lshrrev_b32 v2, 6, v1')
    e('v_and_b32 v3, 3, v2')
    e('v_lshrrev_b32 v4, 2, v2')
    e('v_and_b32 v5, 15, v1')
    e('v_bfe_u32 v6, v1, 4, 2')
    e('v_lshrrev_b32 v7, 2, v5')
    e('v_lshlrev_b32 v7, 4, v7')
    e('v_lshl_add_u32 v7, v3, 2, v7')
    e('v_and_b32 v8, 3, v5')
    e('v_add_u32 v7, v7, v8')
    e('v_readfirstlane_b32 s38, v4')
    e('v_lshlrev_b32 v9, 12, v4')
    e('s_waitcnt lgkmcnt(0)')
    srd(16, 10, 11, 3 * 64 * 64 * 2)
    srd(28, 12, 13, WS_SIZE)
    e(f's_mov_b32 s37, {hex(WS_WT)}')
    e('s_lshr_b32 s38, s38, 1')
    e('s_cmp_eq_u32 s38, 1')
    e('s_cbranch_scc1 K2_WP')
    e('v_lshl_add_u32 v9, v6, 10, v9')
    e('v_lshl_add_u32 v9, v7, 1, v9')
    for j in range(8):
        e(f'buffer_load_ushort v{10+j}, v9, s[16:19], 0 offen offset:{j*128}')
    e('s_branch K2_WQ')
    lab('K2_WP')
    e('v_lshl_add_u32 v9, v6, 7, v9')
    e('v_lshl_add_u32 v9, v7, 1, v9')
    for j in range(8):
        e(f'buffer_load_ushort v{10+j}, v9, s[16:19], 0 offen offset:{(j&3)*1024 + (j>>2)*512}')
    lab('K2_WQ')
    e('s_waitcnt vmcnt(0)')
    for j in range(4):
        e(f'v_lshl_or_b32 v{20+j}, v{11+2*j}, 16, v{10+2*j}')
    e('v_lshlrev_b32 v1, 4, v1')
    e('buffer_store_dwordx4 v[20:23], v1, s[28:31], s37 offen')
    e('s_endpgm')
    lab('K1_ZBAR')
    e('s_mov_b64 exec, -1')
    e('v_and_b32 v1, 255, v0')
    e('v_lshlrev_b32 v1, 4, v1')
    for i in range(4):
        e(f'v_mov_b32 v{4+i}, 0')
    e('s_waitcnt lgkmcnt(0)')
    srd(28, 12, 13, WS_SIZE)
    e(f's_mov_b32 s37, {hex(WS_BAR)}')
    e('buffer_store_dwordx4 v[4:7], v1, s[28:31], s37 offen')
    for k in range(1, 4):
        e(f's_mov_b32 s37, {hex(WS_BAR+4096*k)}')
        e('buffer_store_dwordx4 v[4:7], v1, s[28:31], s37 offen')

S_NST = 74
S_PAIR = 75
def part_addrs():
    e(f'v_mad_u32_u16 v14, v{V_ROWS}, s{S_128}, v{V_J}')
    e(f'v_mad_u32_u16 v15, v{V_ROWS}, s{S_128}, v{V_J} op_sel:[1,0,0,0]')
    e('v_lshlrev_b32 v14, 1, v14')
    e('v_lshlrev_b32 v15, 1, v15')
    e(f's_lshl_b32 s{S_TMP}, s{S_ROW0}, 1')
    e(f's_add_u32 s{S_TMP}, s{S_TMP}, {hex(WS_PART)}')

def kd(name, vgpr, sgpr):
    out.append('.p2align 6')
    out.append(f'.amdhsa_kernel {name}')
    out.append(f'  .amdhsa_next_free_vgpr {vgpr}')
    out.append(f'  .amdhsa_next_free_sgpr {sgpr}')
    out.append(f'  .amdhsa_accum_offset {(vgpr+3)//4*4}')
    out.append('  .amdhsa_group_segment_fixed_size 0')
    out.append('  .amdhsa_kernarg_size 64')
    out.append('  .amdhsa_user_sgpr_count 2')
    out.append('  .amdhsa_user_sgpr_kernarg_segment_ptr 1')
    out.append('  .amdhsa_system_sgpr_workgroup_id_x 1')
    out.append('.end_amdhsa_kernel')

hdr = open('standalone__spectral_conv_chebnet__graph.s.ref').read().split('\n')
for l in hdr:
    if l.startswith(';') and '@launch' not in l and 'Override launch' not in l and 'grid=ceil' not in l:
        out.append(l)
    elif not l.startswith(';'):
        break
G1 = NC + 2 + (8 if CPF else 0) + (48 if PFH else 0)
out.append(f'; @launch kernel=part_kernel grid=({G1},1,1) block=(1024,1,1) lds={4096+32768}')
out.append(f'; @launch kernel=main_kernel grid=({NB},1,1) block=({NT},1,1) lds={L_END3}')
out.append('.amdgcn_target "amdgcn-amd-amdhsa--gfx950"')
out.append('.text')
gen_k1()
gen_main()
out.append('.section .rodata,"a"')
kd('part_kernel', 64, 102 if (INSTR or HD) else 56)
kd('main_kernel', 128, 102 if (INSTR or HD) else 88)
dst = sys.argv[1] if len(sys.argv) > 1 else 'standalone__spectral_conv_chebnet__graph.s'
open(dst, 'w').write('\n'.join(out) + '\n')
print('wrote', dst, len(out), 'lines')
```

```python
import sys

N = 50000; E = 800000
R = 200
NB = 250
CH = 4096
NC = 196
S = 48
NIT = S // 8
NW = 13
NT = NW * 64

WS_ENT = 0x0000000
WS_SEG = 0x0800000
WS_WT  = 0x0900000
WS_BAR = 0x0A00000
WS_CSR = 0x1000000
CSR_STRIDE = 0x10000
WS_T1  = 0x2000000
WS_PART = 0x3000000
WS_SIZE = 268435456

L_CNT = 0
L_OFF = 2048
L_MAX = 4096
L_DESC = 4112
L_SYNC = 5792
L_H2 = 5888
L_JUNK = 6912
L_SORT = 7168
RA = 96
SORT_BYTES = NT * 16 * 4
L_DUMMY = L_SORT + SORT_BYTES - 16
L_END2 = L_SORT + SORT_BYTES
L_W = L_END2
L_ROWS = L_W + 24576
ROW_STRIDE = 272
L_END3 = L_ROWS + 208 * ROW_STRIDE
HALF = 25000

import os
INSTR = int(os.environ.get('INSTR', '0'))
PF2 = int(os.environ.get('PF2', '32'))
PF3 = int(os.environ.get('PF3', '24'))
PFB2 = int(os.environ.get('PFB2', '0'))
PFB3 = int(os.environ.get('PFB3', '0'))
PFBW = int(os.environ.get('PFBW', '0'))
BAL = int(os.environ.get('BAL', '1'))
XP = os.environ.get('XP', '')
PF1 = int(os.environ.get('PF1', '0'))
PF2BASE = 6144 * int(os.environ.get('PFH', '0'))
RENUM = int(os.environ.get('RENUM', '1'))
WS_DBG = 0x8000000
S_ST = 40
NSTAMP = 12
SPIN_MAX = int(os.environ.get('SPIN_MAX', '6000000'))
SCAL = int(os.environ.get('SCAL', '1'))
CPF = int(os.environ.get('CPF', '1'))
PAIR = int(os.environ.get('PAIR', '0'))
OPOL = os.environ.get('OPOL', 'nt')
IPOL = os.environ.get('IPOL', 'nt')
DPOL = os.environ.get('DPOL', 'sc1')
EPOL = os.environ.get('EPOL', '')
SKIP = int(os.environ.get('SKIP', '1'))
S_SKIP = 64
cold = []
_uid = [0]
DBL = int(os.environ.get('DBL', '0'))
TLBW = int(os.environ.get('TLBW', '0'))
LATE = int(os.environ.get('LATE', '1'))
WLATE = int(os.environ.get('WLATE', '0'))
TPF = int(os.environ.get('TPF', '1'))
PFL = int(os.environ.get('PFL', '0'))
ROWSEG = int(os.environ.get('ROWSEG', '1'))
KA = int(os.environ.get('KA', '0')); KB = int(os.environ.get('KB', '0'))
def gate(tag, word, k):
    if not k: return
    e(f's_cmp_lg_u32 s{S_NR}, 0')
    e(f's_cbranch_scc1 M_GATE{tag}X')
    e(f'v_mov_b32 v14, {L_SYNC + 4*word}')
    lab(f'M_GATE{tag}')
    e('ds_read_b32 v15, v14')
    e('s_waitcnt lgkmcnt(0)')
    e(f'v_readfirstlane_b32 s{S_TMP}, v15')
    e(f's_cmp_ge_u32 s{S_TMP}, {k}')
    e(f's_cbranch_scc1 M_GATE{tag}X')
    e('s_sleep 1')
    e(f's_branch M_GATE{tag}')
    lab(f'M_GATE{tag}X')
DIRECT = int(os.environ.get('DIRECT', '0'))
PFH = int(os.environ.get('PFH', '0'))
HD = int(os.environ.get('HD', '0'))
def hd(slot, base, neg=False, tmp=86):
    if not HD: return
    global _hdn
    _hdn += 1
    e('s_cmp_eq_u32 s90, 0')
    e(f's_cbranch_scc1 HDSKIP{_hdn}')
    e(f's_memrealtime s[{tmp}:{tmp+1}]')
    e('s_waitcnt lgkmcnt(0)')
    if neg: e(f's_not_b32 s{tmp}, s{tmp}')
    e(f's_atomic_umax s{tmp}, s[{base}:{base+1}], {slot*4}')
    lab(f'HDSKIP{_hdn}')
_hdn = 0
FLAGV = int(os.environ.get('FLAGV', '1'))
SELFPF = int(os.environ.get('SELFPF', '1'))
P1S0 = int(os.environ.get('P1S0', '3')); P1S1 = int(os.environ.get('P1S1', '2')); P2S0 = int(os.environ.get('P2S0', '1')); P2S1 = int(os.environ.get('P2S1', '0'))
P0B = int(os.environ.get('P0B', '3'))
P1A = int(os.environ.get('P1A', '2')); P1B = int(os.environ.get('P1B', '1'))
P2PRIO = int(os.environ.get('P2PRIO', '1'))
NREP = int(os.environ.get('NREP', '16'))
SLP = int(os.environ.get('SLP', '2'))
STMAP = {0: 86, 1: 88, 2: 90, 4: 92, 7: 94, 8: 96, 9: 98, 10: 100, 11: 14}
def stamp(i, real=False):
    if INSTR and i in STMAP:
        r = STMAP[i]
        e(f's_memrealtime s[{r}:{r+1}]' if real else f's_memtime s[{r}:{r+1}]')
def dump_stamps(kidx, ws_srd, wave_sgpr_from_v0=True):
    if not INSTR: return
    e('s_waitcnt vmcnt(0) lgkmcnt(0)')
    stamp(NSTAMP-2); stamp(NSTAMP-1, True)
    e('s_waitcnt lgkmcnt(0)')
    e('s_mov_b64 exec, -1')
    e('v_lshrrev_b32 v1, 6, v0')
    e('s_lshl_b32 s70, s2, 4')
    e('v_add_u32 v1, s70, v1')
    e('v_lshlrev_b32 v1, 7, v1')
    e(f's_mov_b32 s70, {hex(WS_DBG + kidx*0x100000)}')
    e('s_mov_b64 exec, 1')
    for i in range(NSTAMP):
        if i not in STMAP: continue
        e(f'v_mov_b32 v2, s{STMAP[i]}')
        e(f'v_mov_b32 v3, s{STMAP[i]+1}')
        e(f'buffer_store_dwordx2 v[2:3], v1, s[{ws_srd}:{ws_srd+3}], s70 offen offset:{8*i}')
        e('s_nop 1')

out = []
def e(s=''):
    out.append('    ' + s if s and not s.endswith(':') else s)
def lab(s):
    out.append(s + ':')

def srd(d, lo, hi, nbytes, add=0):
    if add:
        e(f's_add_u32 s{d}, s{lo}, {hex(add)}')
        e(f's_addc_u32 s{d+1}, s{hi}, 0')
    else:
        e(f's_mov_b32 s{d}, s{lo}')
        e(f's_mov_b32 s{d+1}, s{hi}')
    e(f's_mov_b32 s{d+2}, {hex(nbytes)}')
    e(f's_mov_b32 s{d+3}, 0x00020000')

def wave_scan(v, op='v_add_u32'):
    for sh in (1, 2, 4, 8):
        e('s_nop 1')
        e(f'{op}_dpp v{v}, v{v}, v{v} row_shr:{sh} row_mask:0xf bank_mask:0xf bound_ctrl:0')
    e('s_nop 1')
    e(f'{op}_dpp v{v}, v{v}, v{v} row_bcast:15 row_mask:0xa bank_mask:0xf')
    e('s_nop 1')
    e(f'{op}_dpp v{v}, v{v}, v{v} row_bcast:31 row_mask:0xc bank_mask:0xf')

def kernel_head(name):
    out.append(f'.globl {name}')
    out.append('.p2align 8')
    out.append(f'.type {name},@function')
    lab(name)

K1T = int(os.environ.get('K1T', '1024'))
EPT = CH // K1T
def gen_k1():
    n = EPT; q = n // 4
    D0 = 4; S0 = D0 + n; W0 = S0 + n
    B0 = W0 + n // 2 + ((n // 2) & 1)
    B0 += B0 & 1
    K0 = B0 + n
    P0 = K0 + n
    T0 = P0 + 2 * n
    T0 += (-T0) % 4
    kernel_head('part_kernel')
    e(f's_cmp_ge_u32 s2, {NC}')
    e('s_cbranch_scc1 K1_XTRA')
    stamp(0, True); stamp(1)
    e('s_load_dwordx4 s[4:7], s[0:1], 8')
    e('s_load_dwordx2 s[8:9], s[0:1], 24')
    e('s_load_dwordx2 s[12:13], s[0:1], 56')
    if SELFPF:
        e('s_getpc_b64 s[46:47]')
        e(f'v_and_b32 v{T0}, 31, v0')
        e(f'v_lshlrev_b32 v{T0}, 6, v{T0}')
        e(f'global_load_dword v{T0+1}, v{T0}, s[46:47]')
    e('v_lshlrev_b32 v1, 2, v0')
    e('s_lshl_b32 s14, s2, 12')
    e(f'v_lshl_add_u32 v3, v0, {n.bit_length()-1}, s14')
    e(f's_mov_b32 s15, {E}')
    e('v_cmp_gt_u32 vcc, s15, v3')
    e(f'v_lshlrev_b32 v{T0+2}, 2, v3')
    e(f'v_lshlrev_b32 v{T0+3}, 1, v3')
    e('v_mov_b32 v2, 0')
    e('ds_write_b32 v1, v2')
    e('s_mov_b64 s[32:33], vcc')
    e('s_and_saveexec_b64 s[38:39], vcc')
    e('s_waitcnt lgkmcnt(0)')
    stamp(2)
    e('s_cbranch_execz K1_NOLD')
    for k in range(q):
        e(f'global_load_dwordx4 v[{D0+4*k}:{D0+4*k+3}], v{T0+2}, s[6:7] offset:{16*k} ' + IPOL)
    lab('K1_NOLD')
    srd(28, 12, 13, WS_SIZE)
    e('s_mov_b32 s34, 83887')
    e(f's_mov_b32 s35, {-R & 0xffffffff:#x}')
    e('s_mov_b32 s36, 0xffff0000')
    e('v_mov_b32 v2, 1')
    e('s_barrier')
    e('s_waitcnt vmcnt(0)')
    e('s_cbranch_execz K1_NOLD2')
    for k in range(q):
        e(f'global_load_dwordx4 v[{S0+4*k}:{S0+4*k+3}], v{T0+2}, s[4:5] offset:{16*k} ' + IPOL)
    if n == 4:
        e(f'global_load_dwordx2 v[{W0}:{W0+1}], v{T0+3}, s[8:9] ' + IPOL)
    else:
        e(f'global_load_dwordx4 v[{W0}:{W0+3}], v{T0+3}, s[8:9] ' + IPOL)
    lab('K1_NOLD2')
    stamp(3)
    for i in range(n):
        e(f'v_mul_u32_u24 v{B0+i}, s34, v{D0+i}')
        e(f'v_lshrrev_b32 v{B0+i}, 24, v{B0+i}')
        e(f'v_mad_i32_i24 v{P0+1+2*i}, v{B0+i}, s35, v{D0+i}')
        e(f'v_and_b32 v3, 7, v{B0+i}')
        e(f'v_lshrrev_b32 v{B0+i}, 3, v{B0+i}')
        e(f'v_lshlrev_b32 v{B0+i}, 2, v{B0+i}')
        e(f'v_lshl_or_b32 v{B0+i}, v3, 7, v{B0+i}')
        e(f'ds_add_rtn_u32 v{K0+i}, v{B0+i}, v2')
    e('s_mov_b64 exec, -1')
    e('s_waitcnt lgkmcnt(0)')
    e('s_barrier')
    stamp(4)
    t = T0
    e('v_cmp_gt_u32 vcc, 64, v0')
    e('s_cbranch_vccz K1_SCAN_DONE')
    e(f'v_lshlrev_b32 v{t}, 4, v0')
    e(f'ds_read_b128 v[{t+4}:{t+7}], v{t}')
    e('s_waitcnt lgkmcnt(0)')
    e(f'v_add_u32 v{t+9}, v{t+4}, v{t+5}')
    e(f'v_add_u32 v{t+10}, v{t+9}, v{t+6}')
    e(f'v_add_u32 v{t+11}, v{t+10}, v{t+7}')
    e(f'v_mov_b32 v{t+8}, v{t+11}')
    wave_scan(t+8)
    e(f'v_sub_u32 v{t+12}, v{t+8}, v{t+11}')
    e(f'v_add_u32 v{t+13}, v{t+12}, v{t+4}')
    e(f'v_add_u32 v{t+14}, v{t+12}, v{t+9}')
    e(f'v_add_u32 v{t+15}, v{t+12}, v{t+10}')
    e(f'ds_write_b128 v{t}, v[{t+12}:{t+15}] offset:1024')
    for i in range(4):
        e(f'v_lshl_or_b32 v{t+16+i}, v{t+4+i}, 16, v{t+12+i}')
    e('s_lshl_b32 s37, s2, 10')
    e(f's_add_u32 s37, s37, {hex(WS_SEG)}')
    e(f'buffer_store_dwordx4 v[{t+16}:{t+19}], v{t}, s[28:31], s37 offen ' + DPOL)
    e('s_waitcnt lgkmcnt(0)')
    lab('K1_SCAN_DONE')
    e('s_barrier')
    e('s_mov_b64 exec, s[32:33]')
    for i in range(n):
        e(f'ds_read_b32 v{B0+i}, v{B0+i} offset:1024')
    e('s_waitcnt vmcnt(1)')
    e('v_cmp_gt_u32 vcc, 64, v0')
    e('s_cbranch_vccnz K1_W0')
    e('s_waitcnt vmcnt(0)')
    lab('K1_W0')
    e(f's_movk_i32 s37, {RA}')
    for i in range(n):
        e(f'v_mul_u32_u24 v3, s34, v{S0+i}')
        e('v_lshrrev_b32 v3, 24, v3')
        e(f'v_mad_i32_i24 v3, v3, s35, v{S0+i}')
        e(f'v_cmp_le_u32 s[{48+2*i}:{49+2*i}], s37, v3')
    for i in range(n):
        if i & 1 == 0:
            e(f'v_lshl_or_b32 v{P0+2*i}, v{W0+i//2}, 16, v{S0+i}')
        else:
            e(f'v_and_or_b32 v{P0+2*i}, v{W0+i//2}, s36, v{S0+i}')
    for i in range(n):
        e(f'v_addc_co_u32 v{P0+1+2*i}, vcc, v{P0+1+2*i}, v{P0+1+2*i}, s[{48+2*i}:{49+2*i}]')
    e('s_waitcnt lgkmcnt(0)')
    for i in range(n):
        e(f'v_add_lshl_u32 v{B0+i}, v{B0+i}, v{K0+i}, 3')
        e(f'ds_write_b64 v{B0+i}, v[{P0+2*i}:{P0+1+2*i}] offset:4096')
    e('s_mov_b64 exec, -1')
    e('s_waitcnt lgkmcnt(0)')
    e('s_barrier')
    nc = 32768 // (K1T * 16)
    e('v_lshlrev_b32 v1, 4, v0')
    for k in range(nc):
        e(f'ds_read_b128 v[{4+4*k}:{7+4*k}], v1 offset:{4096 + k*K1T*16}')
    e('s_lshl_b32 s37, s2, 15')
    pol = '' if 'Eplain' in XP else ' sc1'
    for k in range(nc):
        e(f's_waitcnt lgkmcnt({nc-1-k})')
        e(f'buffer_store_dwordx4 v[{4+4*k}:{7+4*k}], v1, s[28:31], s37 offen' + pol)
        e(f's_add_u32 s37, s37, {K1T*16}')
    stamp(7)
    dump_stamps(0, 28)
    e('s_endpgm')
    global K1_VGPR
    K1_VGPR = T0 + 24
    lab('K1_XTRA')
    gen_wprep()
    e('s_endpgm')
    lab('K1_CPF')
    if CPF:
        e(f's_cmp_gt_u32 s2, {NC+NWP+7}')
        e('s_cbranch_scc1 K1_HELP')
        e('s_getpc_b64 s[4:5]')
        lab('K1_PCREF')
        e('s_add_u32 s4, s4, main_kernel-K1_PCREF')
        e('s_addc_u32 s5, s5, 0')
        e('v_lshlrev_b32 v1, 6, v0')
        e('s_mov_b32 s6, M_CODE_END-main_kernel')
        e('v_cmp_gt_u32 vcc, s6, v1')
        e('s_and_saveexec_b64 s[8:9], vcc')
        e('s_cbranch_execz K1_TLB' if TLBW else 's_cbranch_execz K1_END')
        e('global_load_dword v2, v1, s[4:5]')
        e('s_waitcnt vmcnt(0)')
        e('s_endpgm')
        if TLBW:
            lab('K1_TLB')
            e('s_mov_b64 exec, -1')
            e('s_load_dwordx2 s[4:5], s[0:1], 0')
            e('s_load_dwordx2 s[6:7], s[0:1], 40')
            e('s_load_dwordx2 s[10:11], s[0:1], 56')
            e('v_subrev_u32 v1, 512, v0')
            e(f'v_mul_u32_u24 v2, {TLBW*1024}, v1')
            e(f'v_cmp_gt_u32 vcc, {N*128 // (TLBW*1024)}, v1')
            e('s_and_saveexec_b64 s[8:9], vcc')
            e('s_cbranch_execz K1_END')
            e('s_waitcnt lgkmcnt(0)')
            e(f's_add_u32 s10, s10, {hex(WS_T1)}')
            e('s_addc_u32 s11, s11, 0')
            e('global_load_dword v3, v2, s[4:5]')
            e('global_load_dword v4, v2, s[6:7]')
            e('global_load_dword v5, v2, s[10:11]')
            e('s_waitcnt vmcnt(0)')
            e('s_endpgm')
        lab('K1_HELP')
        if PFH:
            e(f's_cmp_gt_u32 s2, {NC+9+48}')
            e('s_cbranch_scc1 K1_END')
            e('s_load_dwordx2 s[4:5], s[0:1], 0')
            e(f's_sub_u32 s6, s2, {NC+10}')
            e('s_lshr_b32 s6, s6, 3')
            e(f's_mul_i32 s6, s6, {1024*PFH*128}')
            e('v_lshlrev_b32 v1, 7, v0')
            e('v_add_u32 v1, s6, v1')
            e('s_waitcnt lgkmcnt(0)')
            for i in range(PFH):
                e(f'global_load_dword v{2+i}, v1, s[4:5]')
                e('v_add_u32 v1, 0x20000, v1')
            e('s_waitcnt vmcnt(0)')
    lab('K1_END')
    e('s_endpgm')

X = [64, 96]
EN = [48, 56]
ACC = [32, 40]
ACCO = 16
V_J = 1; V_PA = 2; V_EA = 3; V_PB = 4; V_EB = 5; V_TA = 6; V_TB = 7
V_W = 8
V_ROWS = 12
S_TAB = 16; S_WS = 20; S_OUT = 24; S_X = 28
S_128 = 32; S_HI = 33; S_ROUND = 34; S_NR = 35
S_MASKB = 36
S_T = 38
S_M = 40
S_CSR = 64; S_TMP = 65; S_TMP2 = 66; S_WAVE = 67; S_ROW0 = 68; S_TOT = 69; S_DUM = 70; S_TILE = 71
IMG = NT * 16

def issue(p, half):
    x = X[p] + 16 * half
    en = EN[p] + 4 * half
    if SKIP:
        _uid[0] += 1; u_ = _uid[0]
        e(f's_bitcmp1_b32 s{S_SKIP}, {2*p+half}')
        e(f's_cbranch_scc1 M_CH{u_}')
    if PAIR:
        e(f'v_cmp_ne_u32 s[{S_T}:{S_T+1}], s{S_FFFF}, v{en+2}')
        e(f's_bitset0_b32 s{S_SKIP}, {4+2*p+half}')
    for u in range(2 if PAIR else 4):
        e(f'v_mad_u32_u16 v{x+4*u}, v{en+u}, s{S_128}, v{V_J}')
    for u in range(2 if PAIR else 4):
        e(f'buffer_load_dwordx4 v[{x+4*u}:{x+4*u+3}], v{x+4*u}, s[{S_TAB}:{S_TAB+3}], 0 offen sc1')
    if PAIR:
        e(f's_cmp_eq_u64 s[{S_T}:{S_T+1}], 0')
        e(f's_cbranch_scc1 M_PH{u_}')
        for u in (2, 3):
            e(f'v_mad_u32_u16 v{x+4*u}, v{en+u}, s{S_128}, v{V_J}')
        for u in (2, 3):
            e(f'buffer_load_dwordx4 v[{x+4*u}:{x+4*u+3}], v{x+4*u}, s[{S_TAB}:{S_TAB+3}], 0 offen sc1')
        cold.append(f'M_PH{u_}:')
        cold.append(f'    s_bitset1_b32 s{S_SKIP}, {4+2*p+half}')
        cold.append('    s_mov_b64 exec, 1')
        for u in (2, 3):
            cold.append(f'    buffer_load_dword v{x+4*u}, v{V_SEL0}, s[{S_TAB}:{S_TAB+3}], 0 offen')
        cold.append('    s_mov_b64 exec, -1')
        cold.append(f'    s_branch M_CR{u_}')
    if SKIP:
        lab(f'M_CR{u_}')
        cold.append(f'M_CH{u_}:')
        cold.append('    s_mov_b64 exec, 1')
        for u in range(4):
            cold.append(f'    buffer_load_dword v{x+4*u}, v{V_SEL0}, s[{S_TAB}:{S_TAB+3}], 0 offen')
        cold.append('    s_mov_b64 exec, -1')
        cold.append(f'    s_branch M_CR{u_}')

V_SEL0 = 7; V_SEL1 = 13
def consume(p, half):
    x = X[p] + 16 * half
    en = EN[p] + 4 * half
    acc = ACC[half]
    def perm(bs, u):
        e(f'v_perm_b32 v{V_W+2*bs}, v{en+u}, v{en+u}, v{V_SEL0}')
        e(f'v_perm_b32 v{V_W+2*bs+1}, v{en+u}, v{en+u}, v{V_SEL1}')
    def mm(bs, u):
        e(f'v_mfma_f32_4x4x4_16b_bf16 v[{acc}:{acc+3}], v[{x+4*u}:{x+4*u+1}], v[{V_W+2*bs}:{V_W+2*bs+1}], v[{acc}:{acc+3}]')
        e(f'v_mfma_f32_4x4x4_16b_bf16 v[{acc+4}:{acc+7}], v[{x+4*u+2}:{x+4*u+3}], v[{V_W+2*bs}:{V_W+2*bs+1}], v[{acc+4}:{acc+7}]')
    if SKIP:
        _uid[0] += 1; u_ = _uid[0]
        e(f's_bitcmp1_b32 s{S_SKIP}, {2*p+half}')
        e(f's_cbranch_scc1 M_CS{u_}')
    if PAIR:
        perm(0, 0); perm(1, 1)
        mm(0, 0)
        e(f's_bitcmp1_b32 s{S_SKIP}, {4+2*p+half}')
        mm(1, 1)
        e(f's_cbranch_scc1 M_CS{u_}')
        perm(0, 2); perm(1, 3)
        mm(0, 2)
        e('s_nop 0')
        mm(1, 3)
    else:
        perm(0, 0); perm(1, 1)
        mm(0, 0)
        perm(0, 2)
        mm(1, 1)
        perm(1, 3)
        mm(0, 2)
        e('s_nop 0')
        mm(1, 3)
    if SKIP:
        lab(f'M_CS{u_}')

def next_entries(p, half):
    P = V_PA if half == 0 else V_PB
    EE = V_EA if half == 0 else V_EB
    T = V_TA
    en = EN[p] + 4 * half
    m = 'vcc' if half == 0 else f's[{S_MASKB}:{S_MASKB+1}]'
    e(f'v_cmp_lt_u32 {m}, v{P}, v{EE}')
    e(f'v_mov_b32 v{T}, s{S_DUM}')
    if SKIP:
        e(f's_bitset0_b32 s{S_SKIP}, {2*p+half}')
    else:
        e('s_nop 0')
    e(f'v_cndmask_b32 v{T}, v{T}, v{P}, {m}')
    if SKIP:
        e(f's_cmp_eq_u64 {m}, 0')
        e(f's_cselect_b32 s{S_SPIN}, {1 << (2*p+half)}, 0')
        e(f's_or_b32 s{S_SKIP}, s{S_SKIP}, s{S_SPIN}')
    e(f'v_add_u32 v{P}, s{S_INC}, v{P}')
    e(f'ds_read_b128 v[{en}:{en+3}], v{T}')

def masked_loop(pf, tag, body, first_check=2):
    for i in range(NIT):
        e(f's_mov_b64 exec, s[{S_M+4*i}:{S_M+4*i+1}]')
        if i >= first_check:
            e(f's_cbranch_execz {pf}_{tag}_X')
        body(i, 0)
        if body.__code__.co_argcount == 2 and getattr(body, 'two', True):
            e(f's_mov_b64 exec, s[{S_M+4*i+2}:{S_M+4*i+3}]')
            body(i, 1)
    lab(f'{pf}_{tag}_X')
    e('s_mov_b64 exec, -1')

def gemm_steps(ks_list, vB, vA, tB, tA, part_off):
    for ks in ks_list:
        e(f'ds_read_b128 v[{tB}:{tB+3}], v{vB} offset:{(ks&1)*64 + part_off(ks)}')
        for mt in range(3):
            e(f'ds_read_b128 v[{tA[mt]}:{tA[mt]+3}], v{vA} offset:{(ks*4+mt)*1024}')
        e('s_waitcnt lgkmcnt(2)')
        e(f'v_mfma_f32_16x16x32_bf16 v[{ACCO}:{ACCO+3}], v[{tA[0]}:{tA[0]+3}], v[{tB}:{tB+3}], v[{ACCO}:{ACCO+3}]')
        e(f'ds_read_b128 v[{tA[0]}:{tA[0]+3}], v{vA} offset:{(ks*4+3)*1024}')
        e('s_waitcnt lgkmcnt(2)')
        e(f'v_mfma_f32_16x16x32_bf16 v[{ACCO+4}:{ACCO+7}], v[{tA[1]}:{tA[1]+3}], v[{tB}:{tB+3}], v[{ACCO+4}:{ACCO+7}]')
        e('s_waitcnt lgkmcnt(1)')
        e(f'v_mfma_f32_16x16x32_bf16 v[{ACCO+8}:{ACCO+11}], v[{tA[2]}:{tA[2]+3}], v[{tB}:{tB+3}], v[{ACCO+8}:{ACCO+11}]')
        e('s_waitcnt lgkmcnt(0)')
        e(f'v_mfma_f32_16x16x32_bf16 v[{ACCO+12}:{ACCO+15}], v[{tA[0]}:{tA[0]+3}], v[{tB}:{tB+3}], v[{ACCO+12}:{ACCO+15}]')

def frag_addrs(vb, va, vrow):
    e(f'v_and_b32 v{vrow}, 15, v0')
    e(f's_lshl_b32 s{S_TMP}, s{S_WAVE}, 7')
    e(f's_add_u32 s{S_TMP}, s{S_TMP}, {L_DESC}')
    e(f'v_lshl_add_u32 v{vrow}, v{vrow}, 3, s{S_TMP}')
    e(f'ds_read_b32 v{vrow}, v{vrow}')
    e(f'v_bfe_u32 v{va}, v0, 4, 2')
    e(f'v_lshlrev_b32 v{vb}, 4, v{va}')
    e(f'v_add_u32 v{vb}, {L_ROWS}, v{vb}')
    e(f'v_and_b32 v{va}, 63, v0')
    e(f'v_lshlrev_b32 v{va}, 4, v{va}')
    e(f'v_add_u32 v{va}, {L_W}, v{va}')
    e('s_waitcnt lgkmcnt(0)')
    e(f'v_and_b32 v{vrow}, 255, v{vrow}')
    e(f'v_mad_u32_u24 v{vb}, v{vrow}, s{S_RS}, v{vb}')

def prefetch(lanes, base_line, vdst, vtmp):
    if lanes == 0: return
    e(f's_lshr_b32 s{S_TMP}, s2, 3')
    e(f's_min_u32 s{S_TMP}, s{S_TMP}, 30')
    e(f's_mul_i32 s{S_TMP}, s{S_TMP}, {NW}')
    e(f's_add_u32 s{S_TMP}, s{S_TMP}, s{S_WAVE}')
    e(f's_mul_i32 s{S_TMP}, s{S_TMP}, {lanes}')
    e(f's_add_u32 s{S_TMP}, s{S_TMP}, {base_line}')
    e(f'v_and_b32 v{vtmp}, 63, v0')
    e(f'v_add_u32 v{vtmp}, s{S_TMP}, v{vtmp}')
    e(f'v_lshlrev_b32 v{vtmp}, 7, v{vtmp}')
    if lanes < 64:
        m = (1 << lanes) - 1
        e(f's_mov_b32 exec_lo, {hex(m & 0xffffffff)}')
        e(f's_mov_b32 exec_hi, {hex(m >> 32)}')
    e(f's_mov_b32 m0, {L_JUNK}')
    e('s_nop 0')
    e(f'buffer_load_dword v{vtmp}, s[{S_TAB}:{S_TAB+3}], 0 offen lds')
    e('s_mov_b64 exec, -1')

S_RS = S_TILE
S_PH = 72
S_FIRST = 73

S_T1 = 76
S_DBG = 80
S_PASS = 84
S_SPIN = 85
S_ONE = 80
S_FFFF = 80
S_POST = 81
S_RET = 82
S_NOUT = 83
S_INC = 69

def tile_regs(vw, vb, va):
    e(f's_mul_i32 s{S_TMP}, s{S_WAVE}, {16*ROW_STRIDE}')
    e(f's_add_u32 s{S_TMP}, s{S_TMP}, {L_ROWS}')
    e(f'v_bfe_u32 v{vw}, v0, 3, 3')
    e(f'v_mad_u32_u24 v{vw}, v{vw}, s{S_RS}, v{V_J}')
    e(f'v_add_u32 v{vw}, s{S_TMP}, v{vw}')
    e(f'v_and_b32 v{va}, 15, v0')
    e(f'v_bfe_u32 v{vb}, v0, 4, 2')
    e(f'v_lshlrev_b32 v{vb}, 4, v{vb}')
    e(f'v_mad_u32_u24 v{vb}, v{va}, s{S_RS}, v{vb}')
    e(f'v_add_u32 v{vb}, s{S_TMP}, v{vb}')
    e(f'v_and_b32 v{va}, 63, v0')
    e(f'v_lshlrev_b32 v{va}, 4, v{va}')
    e(f'v_add_u32 v{va}, {L_W}, v{va}')

def mfma_run(f0, f1, bfrag, pend, va):
    pend = list(pend)
    for f in range(f0, f1):
        ks, mt = f // 4, f % 4
        need = ['A%d' % f, 'B%d' % ks]
        idxs = [pend.index(n) for n in need if n in pend]
        if idxs:
            idx = max(idxs)
            rem = len(pend) - 1 - idx
            e(f's_waitcnt lgkmcnt({min(rem, 15)})')
            pend = pend[idx+1:]
        sl = 96 + 4*(f % 8)
        bq = bfrag(ks)
        e(f'v_mfma_f32_16x16x32_bf16 v[{ACCO+4*mt}:{ACCO+4*mt+3}], v[{sl}:{sl+3}], v[{bq}:{bq+3}], v[{ACCO+4*mt}:{ACCO+4*mt+3}]')
        if f + 8 < f1:
            e(f'ds_read_b128 v[{sl}:{sl+3}], v{va} offset:{(f+8)*1024}')
            pend.append('A%d' % (f+8))

def gen_main():
    pf = 'M'
    kernel_head('main_kernel')
    e(f's_cmp_ge_u32 s2, {NB}')
    e(f's_cbranch_scc1 {pf}_END2')
    stamp(0, True); stamp(1)
    e('s_load_dwordx2 s[4:5], s[0:1], 0')
    e('s_load_dwordx4 s[8:11], s[0:1], 40')
    e('s_load_dwordx2 s[12:13], s[0:1], 56')
    e('v_lshrrev_b32 v14, 6, v0')
    e('v_and_b32 v15, 7, v0')
    e(f'v_readfirstlane_b32 s{S_WAVE}, v14')
    e(f'v_lshlrev_b32 v{V_J}, 4, v15')
    e(f's_movk_i32 s{S_128}, 128')
    e(f's_mov_b32 s{S_HI}, 0xffff0000')
    e(f's_mov_b32 s{S_ROUND}, 0')
    e(f's_mov_b32 s{S_PASS}, 0')
    e(f's_mov_b32 s{S_POST}, 0')
    e(f's_mov_b32 s{S_SKIP}, 0')
    e(f's_mov_b32 s{S_FFFF}, 0xffff')
    e(f's_mov_b32 s{S_DUM}, {L_DUMMY}')
    e(f's_mul_i32 s{S_ROW0}, s2, {R*128}')
    e(f's_movk_i32 s{S_RS}, {ROW_STRIDE}')
    tbl = {1: [3, 0, 1, 2, 4, 7, 6, 5, 11, 8, 9, 10, 12], 2: [9, 0, 1, 2, 10, 5, 4, 3, 11, 6, 7, 8, 12], 0: list(range(13))}[BAL]
    t64 = sum(v << (4*i) for i, v in enumerate(tbl))
    e(f's_mov_b32 s{S_T}, {hex(t64 & 0xffffffff)}')
    e(f's_mov_b32 s{S_T+1}, {hex(t64 >> 32)}')
    e(f's_lshl_b32 s{S_TMP}, s{S_WAVE}, 2')
    e(f's_lshr_b64 s[{S_T}:{S_T+1}], s[{S_T}:{S_T+1}], s{S_TMP}')
    e(f's_and_b32 s{S_PAIR}, s{S_T}, 15')
    e(f's_lshl_b32 s{S_PAIR}, s{S_PAIR}, 6')
    e(f's_add_u32 s{S_PAIR}, s{S_PAIR}, {L_DESC}')
    e('v_mov_b32 v14, 0')
    e(f'v_mov_b32 v15, {L_MAX}')
    e('ds_write_b32 v15, v14')
    e('v_and_b32 v15, 7, v0')
    e('v_lshlrev_b32 v15, 2, v15')
    e(f'ds_write_b32 v15, v14 offset:{L_SYNC}')
    e('s_waitcnt lgkmcnt(0)')
    stamp(2)
    if HD:
        e('s_mov_b32 s88, s10')
        e('s_mov_b32 s89, s11')
        e(f's_and_b32 s91, s2, 3')
        e(f's_cmp_eq_u32 s{S_WAVE}, 9')
        e('s_cselect_b32 s90, 1, 0')
        e('s_cmp_eq_u32 s91, 0')
        e('s_cselect_b32 s90, s90, 0')
        hd(4, 88, True); hd(5, 88)
    srd(S_WS, 12, 13, WS_SIZE)

    lab(f'{pf}_ROUND')
    e('v_lshrrev_b32 v100, 2, v0')
    e(f'v_lshlrev_b32 v14, {10 if ROWSEG else 2}, v100')
    e(f's_and_b32 s{S_TMP}, s2, 7')
    e(f's_lshl_b32 s{S_TMP}, s{S_TMP}, 5')
    e(f's_lshr_b32 s{S_TMP2}, s2, 3')
    e(f's_add_u32 s{S_TMP}, s{S_TMP}, s{S_TMP2}')
    e(f's_lshl_b32 s{S_TMP}, s{S_TMP}, {2 if ROWSEG else 10}')
    e(f's_add_u32 s{S_TMP}, s{S_TMP}, {hex(WS_SEG)}')
    e('v_mov_b32 v103, 0')
    e(f'v_cmp_gt_u32 vcc, {NC*4}, v0')
    e(f's_and_saveexec_b64 s[{S_T}:{S_T+1}], vcc')
    e(f'buffer_load_dword v103, v14, s[{S_WS}:{S_WS+3}], s{S_TMP} offen')
    e(f's_mov_b64 exec, s[{S_T}:{S_T+1}]')
    e(f's_or_b32 s{S_TMP}, s{S_PASS}, s{S_ROUND}')
    e(f's_cmp_lg_u32 s{S_TMP}, 0')
    e(f's_cbranch_scc1 {pf}_NOSRD')
    srd(S_TAB, 4, 5, N * 128)
    srd(S_X, 4, 5, N * 128)
    srd(S_T1, 12, 13, N * 128, WS_T1)
    srd(S_OUT, 8, 9, N * 128)
    if not WLATE:
        e('v_lshlrev_b32 v14, 4, v0')
        e(f's_mov_b32 s{S_TMP}, {hex(WS_WT)}')
        e(f'buffer_load_dwordx4 v[16:19], v14, s[{S_WS}:{S_WS+3}], s{S_TMP} offen')
        e(f's_add_u32 s{S_TMP}, s{S_TMP}, {IMG}')
        e(f'buffer_load_dwordx4 v[20:23], v14, s[{S_WS}:{S_WS+3}], s{S_TMP} offen')
    lab(f'{pf}_NOSRD')
    e('v_lshlrev_b32 v14, 2, v0')
    e('v_mov_b32 v15, 0')
    e('v_cmp_gt_u32 vcc, 512, v0')
    e(f's_and_saveexec_b64 s[{S_T}:{S_T+1}], vcc')
    e('ds_write_b32 v14, v15')
    e(f's_mov_b64 exec, s[{S_T}:{S_T+1}]')
    for i in range(4):
        e(f'v_mov_b32 v{88+i}, 0xffff')
    e('v_lshlrev_b32 v14, 4, v0')
    for i in range(4):
        e(f'ds_write_b128 v14, v[88:91] offset:{L_SORT + i*IMG}')
    e('v_and_b32 v102, 3, v0')
    e('v_lshlrev_b32 v102, 1, v102')
    e(f's_mul_i32 s{S_TMP}, s{S_ROUND}, {S}')
    e(f'v_add_u32 v102, s{S_TMP}, v102')
    e('v_mov_b32 v104, 1')
    e('s_waitcnt vmcnt(0)' if WLATE else 's_waitcnt vmcnt(2)')
    e(f's_or_b32 s{S_TMP}, s{S_PASS}, s{S_ROUND}')
    e(f's_cmp_eq_u32 s{S_TMP}, 0')
    e(f's_cbranch_scc1 {pf}_DW')
    e('s_waitcnt vmcnt(0)')
    lab(f'{pf}_DW')
    stamp(3)
    e('v_and_b32 v101, 0xffff, v103')
    e('v_lshrrev_b32 v103, 16, v103')
    e('v_add_u32 v101, v101, v102')
    e('v_lshlrev_b32 v101, 3, v101')
    e('v_lshl_add_u32 v101, v100, 15, v101')
    e('v_sub_u32 v105, v103, v102')
    for i in range(NIT):
        e(f'v_cmp_lt_i32 s[{S_M+4*i}:{S_M+4*i+1}], {8*i}, v105')
        e(f'v_cmp_lt_i32 s[{S_M+4*i+2}:{S_M+4*i+3}], {8*i+1}, v105')
    def b_load(i, w):
        e(f'buffer_load_dwordx4 v[{64+4*i}:{67+4*i}], v101, s[{S_WS}:{S_WS+3}], 0 offen offset:{64*i} ' + EPOL)
    b_load.two = False
    masked_loop(pf, 'LD', b_load, 0)
    e('s_waitcnt lgkmcnt(0)')
    e('s_barrier')
    e(f'v_cmp_lt_u32 vcc, {S}, v103')
    e(f's_cbranch_vccz {pf}_NOMAX')
    e(f'v_mov_b32 v15, {L_MAX}')
    e('ds_max_u32 v15, v103')
    lab(f'{pf}_NOMAX')
    e('s_waitcnt vmcnt(0)')
    e(f's_or_b32 s{S_TMP}, s{S_PASS}, s{S_ROUND}')
    e(f's_cmp_lg_u32 s{S_TMP}, 0')
    e(f's_cbranch_scc1 {pf}_NOW')
    if WLATE:
        e('v_lshlrev_b32 v14, 4, v0')
        e(f's_mov_b32 s{S_TMP}, {hex(WS_WT)}')
        e(f'buffer_load_dwordx4 v[16:19], v14, s[{S_WS}:{S_WS+3}], s{S_TMP} offen')
        e(f's_add_u32 s{S_TMP}, s{S_TMP}, {IMG}')
        e(f'buffer_load_dwordx4 v[20:23], v14, s[{S_WS}:{S_WS+3}], s{S_TMP} offen')
        if not PFL: prefetch(PF2, PF2BASE, 127, 126)
    else:
        if TPF:
            e(f's_mov_b32 m0, {L_JUNK}')
            for k in range(TPF):
                lo = 64 + 2*k; mk = S_M + 2*k
                e(f's_mov_b64 exec, s[{mk}:{mk+1}]')
                e(f'v_cmp_gt_u32 vcc, {2*RA}, v{lo+1}')
                e(f'v_mad_u32_u16 v126, v{lo}, s{S_128}, 0')
                e('s_and_b64 exec, exec, vcc')
                e(f's_cbranch_execz {pf}_TP{k}')
                e(f'buffer_load_dword v126, s[{S_TAB}:{S_TAB+3}], 0 offen lds')
                lab(f'{pf}_TP{k}')
            e('s_mov_b64 exec, -1')
        else:
            prefetch(PF2, PF2BASE, 127, 126)
        e('v_lshlrev_b32 v14, 4, v0')
        e(f'v_add_u32 v14, {L_W}, v14')
        e('ds_write_b128 v14, v[16:19]')
        e(f'v_cmp_gt_u32 vcc, {1536-NT}, v0')
        e(f's_and_saveexec_b64 s[{S_T}:{S_T+1}], vcc')
        e(f'ds_write_b128 v14, v[20:23] offset:{IMG}')
        e(f's_mov_b64 exec, s[{S_T}:{S_T+1}]')
    lab(f'{pf}_NOW')
    def b_atom(i, w):
        r = 65 + 4*i + 2*w
        e(f'v_lshlrev_b32 v{r}, 2, v{r}')
        e(f'ds_add_rtn_u32 v{88+2*i+w}, v{r}, v104')
    masked_loop(pf, 'AT', b_atom)
    e('s_waitcnt lgkmcnt(0)')
    e('s_barrier')
    stamp(5)
    if PFL:
        e(f's_or_b32 s{S_TMP}, s{S_PASS}, s{S_ROUND}')
        e(f's_cmp_lg_u32 s{S_TMP}, 0')
        e(f's_cbranch_scc1 {pf}_NOPFL')
        prefetch(PF2, PF2BASE, 127, 126)
        lab(f'{pf}_NOPFL')
    e(f's_cmp_lg_u32 s{S_WAVE}, {NW-1}')
    e(f's_cbranch_scc1 {pf}_SCAN_DONE')
    e('v_and_b32 v106, 63, v0')
    e('v_lshlrev_b32 v14, 5, v106')
    e('ds_read_b128 v[108:111], v14')
    e('ds_read_b128 v[112:115], v14 offset:16')
    e('v_mov_b32 v60, 0')
    e('v_mov_b32 v61, 0')
    e('v_lshlrev_b32 v107, 3, v106')
    e(f'ds_write_b64 v107, v[60:61] offset:{L_H2}')
    e('v_cmp_gt_u32 vcc, 50, v106')
    e(f's_mov_b64 s[{S_MASKB}:{S_MASKB+1}], vcc')
    e(f'v_cmp_gt_u32 vcc, {RA//4}, v106')
    e('v_mov_b32 v126, 127')
    e('v_mov_b32 v15, 63')
    e('v_cndmask_b32 v126, v126, v15, vcc')
    e('s_waitcnt lgkmcnt(1)')
    e(f's_mov_b64 exec, s[{S_MASKB}:{S_MASKB+1}]')
    for i in range(4):
        a0 = 108 + 2*i; a1 = a0 + 1
        if PAIR:
            e(f'v_add_u32 v15, -1, v{a0}')
            e(f'v_add_u32 v59, -1, v{a1}')
            e('v_ashrrev_i32 v15, 1, v15')
            e('v_ashrrev_i32 v59, 1, v59')
            e('v_med3_i32 v15, v15, 0, 7')
            e('v_med3_i32 v59, v59, 0, 7')
            e('v_and_b32 v58, 1, v15')
            e('v_add_u32 v58, -1, v58')
            e('v_and_b32 v58, 7, v58')
            e('v_xor_b32 v59, v59, v58')
        else:
            e(f'v_add_u32 v15, 3, v{a0}')
            e(f'v_add_u32 v59, 3, v{a1}')
            e('v_lshrrev_b32 v15, 2, v15')
            e('v_lshrrev_b32 v59, 2, v59')
            e('v_min_u32 v15, 7, v15')
            e('v_min_u32 v59, 7, v59')
        e('v_lshl_add_u32 v15, v15, 3, v59')
        e('v_sub_u32 v15, v126, v15')
        e(f'v_lshlrev_b32 v{116+i}, 2, v15')
        e(f'ds_add_rtn_u32 v{120+i}, v{116+i}, v104 offset:{L_H2}')
    e('s_mov_b64 exec, -1')
    for i in range(8):
        e(f'v_add_u32 v{108+i}, 3, v{108+i}')
        e(f'v_and_b32 v{108+i}, -4, v{108+i}')
    e('v_mov_b32 v48, 0')
    e('v_mov_b32 v49, v108')
    for i in range(2, 8):
        e(f'v_add_u32 v{48+i}, v{47+i}, v{107+i}')
    e('v_add_u32 v56, v55, v115')
    e('v_mov_b32 v57, v56')
    wave_scan(57)
    e('v_sub_u32 v58, v57, v56')
    for i in range(8):
        e(f'v_add_u32 v{48+i}, v58, v{48+i}')
    e(f'ds_write_b128 v14, v[48:51] offset:{L_OFF}')
    e(f'ds_write_b128 v14, v[52:55] offset:{L_OFF+16}')
    e('s_waitcnt lgkmcnt(0)')
    lab(f'{pf}_SCAN_DONE')
    e('s_barrier')
    stamp(6)
    def b_rd(i, w):
        r = 65 + 4*i + 2*w
        e(f'ds_read_b32 v{r}, v{r} offset:{L_OFF}')
    masked_loop(pf, 'RD', b_rd)
    e('s_waitcnt lgkmcnt(0)')
    def b_wr(i, w):
        r = 65 + 4*i + 2*w
        e(f'v_add_lshl_u32 v{r}, v{r}, v{88+2*i+w}, 2')
        e(f'ds_write_b32 v{r}, v{r-1} offset:{L_SORT}')
    masked_loop(pf, 'WR', b_wr)
    e(f's_cmp_lg_u32 s{S_WAVE}, {NW-1}')
    e(f's_cbranch_scc1 {pf}_DESC_DONE')
    e(f's_or_b32 s{S_TMP}, s{S_PASS}, s{S_ROUND}')
    e(f's_cmp_lg_u32 s{S_TMP}, 0')
    e(f's_cbranch_scc1 {pf}_DESC_REDO')
    e(f's_mov_b64 s[{S_T}:{S_T+1}], s[{S_MASKB}:{S_MASKB+1}]')
    for i in range(8):
        e(f'v_lshrrev_b32 v{108+i}, 2, v{108+i}')
    e(f'ds_read_b64 v[124:125], v107 offset:{L_H2}')
    e('s_waitcnt lgkmcnt(0)')
    e('v_add_u32 v125, v124, v125')
    e('v_mov_b32 v62, v125')
    wave_scan(62)
    e('v_sub_u32 v62, v62, v125')
    e('v_cmp_lt_u32 vcc, 31, v106')
    e('v_mov_b32 v63, 0')
    e('v_mov_b32 v15, 8')
    e('v_cndmask_b32 v63, v63, v15, vcc')
    e('v_add_u32 v62, v62, v63')
    e('v_add_u32 v63, v62, v124')
    e(f'ds_write_b64 v107, v[62:63] offset:{L_H2+512}')
    e('s_mov_b64 exec, 0xff')
    e(f'v_mov_b32 v60, {R}')
    e('v_mov_b32 v61, 0')
    e('v_lshlrev_b32 v15, 3, v106')
    e(f'ds_write_b64 v15, v[60:61] offset:{L_DESC + RA*8}')
    e(f's_mov_b64 exec, s[{S_T}:{S_T+1}]')
    e('s_waitcnt lgkmcnt(0)')
    for i in range(4):
        e(f'ds_read_b32 v{116+i}, v{116+i} offset:{L_H2+512}')
    for i in range(4):
        e(f'v_lshl_add_u32 v15, v106, 2, {i}')
        e(f'v_lshl_or_b32 v{32+2*i}, v{48+2*i}, 6, v15')
        e(f'v_lshl_or_b32 v{33+2*i}, v{109+2*i}, 16, v{108+2*i}')
    e('s_waitcnt lgkmcnt(0)')
    for i in range(4):
        e(f'v_add_lshl_u32 v{116+i}, v{116+i}, v{120+i}, 3')
        e(f'ds_write_b64 v{116+i}, v[{32+2*i}:{33+2*i}] offset:{L_DESC}')
    e('s_mov_b64 exec, -1')
    e(f's_branch {pf}_DESC_DONE')
    lab(f'{pf}_DESC_REDO')
    e('v_cmp_gt_u32 vcc, 52, v106')
    e('s_mov_b64 exec, vcc')
    e(f'ds_read_b128 v[108:111], v14 offset:{L_DESC}')
    e(f'ds_read_b128 v[112:115], v14 offset:{L_DESC+16}')
    e('s_waitcnt lgkmcnt(0)')
    for i in range(4):
        d0 = 108 + 2*i
        e(f'v_and_b32 v{d0}, 255, v{d0}')
        e(f'v_lshlrev_b32 v15, 3, v{d0}')
        e(f'v_add_u32 v15, {L_OFF}, v15')
        e(f'ds_read2_b32 v[{48+4*i}:{49+4*i}], v15 offset0:0 offset1:1')
        e(f'ds_read_b32 v{50+4*i}, v15 offset:8')
    e('s_waitcnt lgkmcnt(0)')
    for i in range(4):
        d0 = 108 + 2*i
        e(f'v_lshl_or_b32 v{d0}, v{48+4*i}, 6, v{d0}')
        e(f'v_sub_u32 v15, v{49+4*i}, v{48+4*i}')
        e(f'v_lshrrev_b32 v15, 2, v15')
        e(f'v_sub_u32 v{d0+1}, v{50+4*i}, v{49+4*i}')
        e(f'v_lshl_or_b32 v{d0+1}, v{d0+1}, 14, v15')
    e(f'ds_write_b128 v14, v[108:111] offset:{L_DESC}')
    e(f'ds_write_b128 v14, v[112:115] offset:{L_DESC+16}')
    e('s_mov_b64 exec, -1')
    lab(f'{pf}_DESC_DONE')
    if WLATE:
        e(f's_or_b32 s{S_TMP}, s{S_PASS}, s{S_ROUND}')
        e(f's_cmp_lg_u32 s{S_TMP}, 0')
        e(f's_cbranch_scc1 {pf}_NOW2')
        e('v_lshlrev_b32 v14, 4, v0')
        e(f'v_add_u32 v14, {L_W}, v14')
        e(f's_waitcnt vmcnt({1 if PF2 else 0})')
        e('ds_write_b128 v14, v[16:19]')
        e(f'v_cmp_gt_u32 vcc, {1536-NT}, v0')
        e(f's_and_saveexec_b64 s[{S_T}:{S_T+1}], vcc')
        e(f'ds_write_b128 v14, v[20:23] offset:{IMG}')
        e(f's_mov_b64 exec, s[{S_T}:{S_T+1}]')
        lab(f'{pf}_NOW2')
    e('s_waitcnt lgkmcnt(0)')
    e('s_barrier')
    stamp(7)
    hd(6, 88)

    BOFF = (RA + 8) * 8
    lab(f'{pf}_PHASE_B')
    e(f's_mov_b32 s{S_PH}, 0')
    e(f'v_mov_b32 v15, {L_MAX}')
    e('ds_read_b32 v6, v15')
    e('v_and_b32 v14, 1, v0')
    e(f's_mov_b32 s{S_TMP}, 0x0c0c0302')
    e(f's_mov_b32 s{S_TMP2}, 0x03020c0c')
    e('v_cmp_eq_u32 vcc, 0, v14')
    e(f'v_mov_b32 v14, s{S_TMP2}')
    e(f'v_mov_b32 v15, s{S_TMP}')
    e('v_cndmask_b32 v14, v14, v15, vcc')
    e('v_and_b32 v15, 2, v0')
    e('v_cmp_eq_u32 vcc, 0, v15')
    e('v_mov_b32 v15, 0x0c0c0c0c')
    e('s_nop 0')
    e(f'v_cndmask_b32 v{V_SEL0}, v15, v14, vcc')
    e(f'v_cndmask_b32 v{V_SEL1}, v14, v15, vcc')
    e('s_waitcnt lgkmcnt(0)')
    e(f'v_readfirstlane_b32 s{S_NR}, v6')
    lab(f'{pf}_SEG')
    e('v_bfe_u32 v15, v0, 3, 3')
    e(f'v_lshl_add_u32 v14, v15, 3, s{S_PAIR}')
    e('ds_read_b64 v[8:9], v14')
    e(f'ds_read_b64 v[10:11], v14 offset:{BOFF}')
    e(f's_cmp_lg_u32 s{S_PASS}, 0')
    e(f's_cbranch_scc1 {pf}_SEG2')
    e(f's_setprio {P1S0}')
    e(f's_movk_i32 s{S_INC}, 32')
    e('s_waitcnt lgkmcnt(0)')
    e('v_and_b32 v14, 255, v8')
    e('v_and_b32 v15, 255, v10')
    e(f'v_lshl_or_b32 v{V_ROWS}, v15, 16, v14')
    e(f's_cmp_eq_u32 s{S_PH}, 0')
    e(f's_cbranch_scc1 {pf}_SEG1A')
    e(f's_setprio {P1S1}')
    e('v_mov_b32 v8, v10')
    e('v_mov_b32 v9, v11')
    lab(f'{pf}_SEG1A')
    e(f'v_lshrrev_b32 v{V_PA}, 8, v8')
    e(f'v_lshlrev_b32 v{V_PA}, 4, v{V_PA}')
    e(f'v_add_u32 v{V_PA}, {L_SORT}, v{V_PA}')
    e('v_and_b32 v14, 0xffff, v9')
    e('v_lshrrev_b32 v15, 16, v9')
    e('v_add_u32 v14, v14, v15')
    e(f'v_lshl_add_u32 v{V_EA}, v14, 4, v{V_PA}')
    e(f'v_add_u32 v{V_PB}, 16, v{V_PA}')
    e(f'v_mov_b32 v{V_EB}, v{V_EA}')
    e(f's_branch {pf}_GW_OK')
    lab(f'{pf}_SEG2')
    e(f's_movk_i32 s{S_INC}, 16')
    e(f's_lshl_b32 s{S_TMP}, s{S_PH}, 2')
    e(f's_add_u32 s{S_TMP}, s{S_TMP}, {L_SYNC+8}')
    e(f'v_mov_b32 v14, s{S_TMP}')
    e('ds_read_b32 v15, v14')
    e('s_waitcnt lgkmcnt(0)')
    e(f'v_readfirstlane_b32 s{S_TMP2}, v15')
    for (D, P, EE) in ((8, V_PA, V_EA), (10, V_PB, V_EB)):
        e(f'v_lshrrev_b32 v{P}, 8, v{D}')
        e(f'v_lshlrev_b32 v{P}, 4, v{P}')
        e(f'v_add_u32 v{P}, {L_SORT}, v{P}')
        e(f'v_and_b32 v{EE}, 0xffff, v{D+1}')
        e(f'v_lshl_add_u32 v{EE}, v{EE}, 4, v{P}')
    e(f's_setprio {P2S0}')
    e(f's_cmp_eq_u32 s{S_PH}, 0')
    e(f's_cbranch_scc1 {pf}_SEG2A')
    e(f's_setprio {P2S1}')
    for (D, P, EE) in ((8, V_PA, V_EA), (10, V_PB, V_EB)):
        e(f'v_mov_b32 v{P}, v{EE}')
        e(f'v_lshrrev_b32 v{D+1}, 16, v{D+1}')
        e(f'v_lshl_add_u32 v{EE}, v{D+1}, 4, v{EE}')
    lab(f'{pf}_SEG2A')
    e(f's_cmp_lg_u32 s{S_TMP2}, 0')
    e(f's_cbranch_scc1 {pf}_GW_OK')
    e(f's_cmp_eq_u32 s{S_POST}, 0')
    e(f's_cbranch_scc1 {pf}_RET1')
    e(f's_mov_b32 s{S_RET}, 1')
    e(f's_mov_b32 s{S_NOUT}, 0')
    e(f's_branch {pf}_POSTWORK')
    lab(f'{pf}_RET1')
    e(f's_lshl_b32 s{S_TMP}, s{S_PH}, 2')
    e(f's_add_u32 s{S_TMP}, s{S_TMP}, {L_SYNC+8}')
    e(f'v_mov_b32 v14, s{S_TMP}')
    e('v_mov_b32 v15, 1')
    e('v_and_b32 v64, 15, v0')
    e('v_lshlrev_b32 v64, 2, v64')
    e('s_mov_b64 exec, 1')
    e('ds_add_rtn_u32 v15, v14, v15 offset:8')
    e(f's_mov_b32 s{S_SPIN}, 0')
    e('s_waitcnt lgkmcnt(0)')
    e(f'v_readfirstlane_b32 s{S_TMP}, v15')
    e(f's_cmp_lg_u32 s{S_TMP}, 0')
    e(f's_cbranch_scc1 {pf}_GW_SPIN')
    e(f's_lshl_b32 s{S_TMP2}, s{S_PH}, 13')
    e(f's_add_u32 s{S_TMP2}, s{S_TMP2}, {hex(WS_BAR+2048)}')
    e(f's_and_b32 s{S_TMP}, s2, 31')
    e(f's_lshl_b32 s{S_TMP}, s{S_TMP}, 7')
    e(f's_add_u32 s{S_TMP2}, s{S_TMP2}, s{S_TMP}')
    if SCAL:
        lab(f'{pf}_POLL')
        e(f's_mov_b32 s{S_TMP}, 0')
        e(f's_atomic_add s{S_TMP}, s[12:13], s{S_TMP2} glc')
        e('s_waitcnt lgkmcnt(0)')
        e(f's_add_u32 s{S_SPIN}, s{S_SPIN}, 1')
        e(f's_cmp_ge_u32 s{S_TMP}, {NB if DIRECT else 16}')
        e(f's_cbranch_scc1 {pf}_POLLED')
    else:
        e('s_mov_b64 exec, 0xffff')
        lab(f'{pf}_POLL')
        e(f'buffer_load_dword v65, v64, s[{S_WS}:{S_WS+3}], s{S_TMP2} offen sc1')
        e('s_waitcnt vmcnt(0)')
        e('v_cmp_eq_u32 vcc, 0, v65')
        e(f's_add_u32 s{S_SPIN}, s{S_SPIN}, 1')
        e(f's_cbranch_vccz {pf}_POLLED')
    e(f's_cmp_ge_u32 s{S_SPIN}, {SPIN_MAX}')
    e(f's_cbranch_scc1 {pf}_POLLED')
    e(f's_sleep {SLP}')
    e(f's_branch {pf}_POLL')
    lab(f'{pf}_POLLED')
    if HD:
        e('s_mov_b32 s92, s90')
        e('s_cmp_eq_u32 s91, 0')
        e('s_cselect_b32 s90, 1, 0')
        e(f's_cmp_lg_u32 s{S_PH}, 0')
        e(f's_cbranch_scc1 {pf}_HD1')
        hd(9, 88, True); hd(10, 88)
        e(f's_branch {pf}_HD2')
        lab(f'{pf}_HD1')
        hd(11, 88, True); hd(12, 88)
        lab(f'{pf}_HD2')
        e('s_mov_b32 s90, s92')
    e('v_mov_b32 v15, 1')
    e('ds_write_b32 v14, v15')
    e(f's_branch {pf}_GW_DONE')
    lab(f'{pf}_GW_SPIN')
    e('s_sleep 1')
    e('ds_read_b32 v15, v14')
    e('s_waitcnt lgkmcnt(0)')
    e(f'v_readfirstlane_b32 s{S_TMP}, v15')
    e(f's_cmp_eq_u32 s{S_TMP}, 0')
    e(f's_cbranch_scc1 {pf}_GW_SPIN')
    lab(f'{pf}_GW_DONE')
    e('s_mov_b64 exec, -1')
    e('s_waitcnt lgkmcnt(0)')
    lab(f'{pf}_GW_OK')
    if INSTR:
        e(f's_lshl_b32 s{S_TMP}, s{S_PASS}, 1')
        e(f's_or_b32 s{S_TMP}, s{S_TMP}, s{S_PH}')
        e(f's_cmp_lg_u32 s{S_TMP}, 2')
        e(f's_cbranch_scc1 {pf}_ST9')
        stamp(9)
        lab(f'{pf}_ST9')
        e(f's_cmp_lg_u32 s{S_TMP}, 3')
        e(f's_cbranch_scc1 {pf}_ST4')
        stamp(4)
        lab(f'{pf}_ST4')
    next_entries(0, 0)
    next_entries(0, 1)
    e(f's_or_b64 s[{S_T}:{S_T+1}], vcc, s[{S_MASKB}:{S_MASKB+1}]')
    e(f's_cselect_b32 s{S_TMP2}, 1, 0')
    next_entries(1, 0)
    next_entries(1, 1)
    e(f's_or_b64 s[{S_T}:{S_T+1}], vcc, s[{S_MASKB}:{S_MASKB+1}]')
    e(f's_cselect_b32 s{S_TMP}, 2, 0')
    e(f's_or_b32 s{S_NST}, s{S_TMP}, s{S_TMP2}')
    e(f's_bitcmp1_b32 s{S_NST}, 0')
    e(f's_cbranch_scc0 {pf}_PRO_DONE')
    e('s_waitcnt lgkmcnt(3)')
    issue(0, 0)
    e('s_waitcnt lgkmcnt(2)')
    issue(0, 1)
    e(f's_bitcmp1_b32 s{S_NST}, 1')
    e(f's_cbranch_scc0 {pf}_PRO_DONE')
    e('s_waitcnt lgkmcnt(1)')
    issue(1, 0)
    e('s_waitcnt lgkmcnt(0)')
    issue(1, 1)
    lab(f'{pf}_PRO_DONE')
    e(f's_cmp_eq_u32 s{S_POST}, 0')
    e(f's_cbranch_scc1 {pf}_RET2')
    e(f's_mov_b32 s{S_RET}, 2')
    e(f's_mov_b32 s{S_NOUT}, s{S_NST}')
    e(f's_branch {pf}_POSTWORK')
    lab(f'{pf}_RET2')
    e(f's_and_b32 s{S_TMP}, s{S_PASS}, s{S_PH}')
    e(f's_cmp_lg_u32 s{S_TMP}, 0')
    e(f's_cbranch_scc1 {pf}_GO')
    for r in range(16):
        e(f'v_mov_b32 v{ACC[0]+r}, 0')
    e(f's_cmp_eq_u32 s{S_ROUND}, 0')
    e(f's_cbranch_scc1 {pf}_GO')
    part_addrs()
    e(f's_cmp_lg_u32 s{S_PASS}, 0')
    e(f's_cbranch_scc1 {pf}_LP2')
    e(f's_cmp_eq_u32 s{S_PH}, 0')
    e(f's_cbranch_scc1 {pf}_LP1')
    e('v_mov_b32 v14, v15')
    e(f's_branch {pf}_LP1')
    lab(f'{pf}_LP2')
    e(f'buffer_load_dwordx4 v[40:43], v15, s[{S_WS}:{S_WS+3}], s{S_TMP} offen')
    e(f'buffer_load_dwordx4 v[44:47], v15, s[{S_WS}:{S_WS+3}], s{S_TMP} offen offset:16')
    lab(f'{pf}_LP1')
    e(f'buffer_load_dwordx4 v[32:35], v14, s[{S_WS}:{S_WS+3}], s{S_TMP} offen')
    e(f'buffer_load_dwordx4 v[36:39], v14, s[{S_WS}:{S_WS+3}], s{S_TMP} offen offset:16')
    e('s_waitcnt vmcnt(0)')
    lab(f'{pf}_GO')
    e(f's_cmp_eq_u32 s{S_NST}, 0')
    e(f's_cbranch_scc1 {pf}_SEG_END')
    e(f's_cmp_eq_u32 s{S_NST}, 1')
    e(f's_cbranch_scc1 {pf}_DRAIN0')
    lab(f'{pf}_LOOP')
    for p in (0, 1):
        e('s_waitcnt vmcnt(12)')
        consume(p, 0)
        next_entries(p, 0)
        e('s_waitcnt vmcnt(8)')
        consume(p, 1)
        next_entries(p, 1)
        e(f's_or_b64 s[{S_T}:{S_T+1}], vcc, s[{S_MASKB}:{S_MASKB+1}]')
        e(f's_cbranch_scc0 {pf}_DRAIN{p^1}')
        e('s_waitcnt lgkmcnt(1)')
        issue(p, 0)
        e('s_waitcnt lgkmcnt(0)')
        issue(p, 1)
    e(f's_branch {pf}_LOOP')
    for q in (1, 0):
        lab(f'{pf}_DRAIN{q}')
        e('s_waitcnt vmcnt(4)')
        consume(q, 0)
        e('s_waitcnt vmcnt(0)')
        consume(q, 1)
        if q == 1:
            e(f's_branch {pf}_SEG_END')
    lab(f'{pf}_SEG_END')
    e('s_nop 4')
    e('s_waitcnt lgkmcnt(0)')
    e(f's_add_u32 s{S_TMP}, s{S_ROUND}, 1')
    e(f's_mul_i32 s{S_TMP}, s{S_TMP}, {S}')
    e(f's_cmp_ge_u32 s{S_TMP}, s{S_NR}')
    e(f's_cselect_b32 s{S_FIRST}, 1, 0')
    e(f's_cmp_lg_u32 s{S_PASS}, 0')
    e(f's_cbranch_scc1 {pf}_END_P2')
    for r in range(8):
        e(f'v_add_f32 v{32+r}, v{32+r}, v{40+r}')
    e(f's_cmp_eq_u32 s{S_WAVE}, {NW-1}')
    e(f's_cselect_b32 s{S_TMP}, 1, 0')
    e(f's_andn2_b32 s{S_TMP}, s{S_TMP}, s{S_PH}')
    e(f's_cmp_lg_u32 s{S_TMP}, 0')
    e(f's_cbranch_scc1 {pf}_P1NEXT')
    e(f's_cmp_lg_u32 s{S_FIRST}, 0')
    e(f's_cbranch_scc1 {pf}_PUB')
    part_addrs()
    e(f's_cmp_eq_u32 s{S_PH}, 0')
    e(f's_cbranch_scc1 {pf}_SP1')
    e('v_mov_b32 v14, v15')
    lab(f'{pf}_SP1')
    e(f'buffer_store_dwordx4 v[32:35], v14, s[{S_WS}:{S_WS+3}], s{S_TMP} offen')
    e(f'buffer_store_dwordx4 v[36:39], v14, s[{S_WS}:{S_WS+3}], s{S_TMP} offen offset:16')
    e('s_waitcnt vmcnt(0)')
    e(f's_branch {pf}_P1NEXT')
    lab(f'{pf}_PUB')
    e(f's_cmp_lg_u32 s{S_PH}, 0')
    e(f's_cbranch_scc1 {pf}_PUBB')
    for d in range(4):
        e(f'v_cvt_pk_bf16_f32 v{24+d}, v{32+2*d}, v{33+2*d}')
    e(f'v_mad_u32_u16 v14, v{V_ROWS}, s{S_128}, v{V_J}')
    e(f'v_add_u32 v14, s{S_ROW0}, v14')
    e(f'buffer_store_dwordx4 v[24:27], v14, s[{S_T1}:{S_T1+3}], 0 offen sc1')
    if DBL: e(f'buffer_store_dwordx4 v[24:27], v14, s[{S_T1}:{S_T1+3}], 0 offen')
    e(f'buffer_load_dwordx4 v[16:19], v14, s[{S_X}:{S_X+3}], 0 offen')
    if 'sig' in XP: stamp(7)
    e(f's_branch {pf}_SIG')
    lab(f'{pf}_PUBB')
    stamp(8)
    hd(8, 88); hd(7, 88, True)
    for d in range(4):
        e(f'v_cvt_pk_bf16_f32 v{28+d}, v{32+2*d}, v{33+2*d}')
    e(f'v_mad_u32_u16 v14, v{V_ROWS}, s{S_128}, v{V_J} op_sel:[1,0,0,0]')
    e(f'v_add_u32 v14, s{S_ROW0}, v14')
    e(f'buffer_store_dwordx4 v[28:31], v14, s[{S_T1}:{S_T1+3}], 0 offen sc1')
    if DBL: e(f'buffer_store_dwordx4 v[28:31], v14, s[{S_T1}:{S_T1+3}], 0 offen')
    e(f'buffer_load_dwordx4 v[20:23], v14, s[{S_X}:{S_X+3}], 0 offen')
    lab(f'{pf}_SIG')
    e(f's_add_u32 s{S_POST}, s{S_PH}, 1')
    e(f's_mov_b32 s{S_RET}, 4')
    e(f's_mov_b32 s{S_NOUT}, 0')
    e(f's_branch {pf}_POSTWORK')
    lab(f'{pf}_P1NEXT')
    e(f's_cmp_lg_u32 s{S_PH}, 0')
    e(f's_cbranch_scc1 {pf}_P1DONE')
    e(f's_mov_b32 s{S_PH}, 1')
    gate('A', 0, KA)
    e(f's_branch {pf}_SEG')
    lab(f'{pf}_P1DONE')
    e(f's_cmp_lg_u32 s{S_FIRST}, 0')
    e(f's_cbranch_scc1 {pf}_TOP2')
    lab(f'{pf}_NEXTROUND')
    e(f's_add_u32 s{S_ROUND}, s{S_ROUND}, 1')
    e('s_waitcnt vmcnt(0) lgkmcnt(0)')
    e('s_barrier')
    e(f's_branch {pf}_ROUND')
    lab(f'{pf}_TOP2')
    for i in range(4):
        e(f's_mov_b32 s{S_TAB+i}, s{S_T1+i}')
    e(f's_mov_b32 s{S_PASS}, 1')
    e(f's_mov_b32 s{S_ROUND}, 0')
    e(f's_mov_b32 s{S_PH}, 0')
    gate('B', 1, KB)
    e(f's_cmp_eq_u32 s{S_NR}, 0')
    e(f's_cbranch_scc1 {pf}_SEG')
    e(f's_mov_b32 s{S_RET}, 3')
    e(f's_mov_b32 s{S_NOUT}, 0')
    e(f's_branch {pf}_POSTWORK')
    lab(f'{pf}_RET3')
    e('s_waitcnt lgkmcnt(0)')
    e('s_barrier')
    e(f's_branch {pf}_ROUND')

    def wait3(k, tag):
        e(f's_cmp_eq_u32 s{S_NOUT}, 3')
        e(f's_cbranch_scc1 {pf}_W16{tag}')
        e(f's_cmp_eq_u32 s{S_NOUT}, 1')
        e(f's_cbranch_scc1 {pf}_W8{tag}')
        e(f's_waitcnt vmcnt({k})')
        lab(f'{pf}_W8{tag}')
        e(f's_waitcnt vmcnt({8+k})')
        lab(f'{pf}_W16{tag}')
        e(f's_waitcnt vmcnt({16+k})')
    lab(f'{pf}_POSTWORK')
    e(f's_cmp_eq_u32 s{S_POST}, 3')
    e(f's_cbranch_scc1 {pf}_PGEMM')
    e(f's_sub_u32 s{S_POST}, s{S_POST}, 1')
    e('v_mov_b32 v33, 1')
    e(f's_lshl_b32 s{S_TMP}, s{S_POST}, 2')
    e(f's_add_u32 s{S_TMP}, s{S_TMP}, {L_SYNC}')
    e(f'v_mov_b32 v34, s{S_TMP}')
    e(f's_lshl_b32 s{S_TMP2}, s{S_POST}, 13')
    e(f's_add_u32 s{S_TMP2}, s{S_TMP2}, {hex(WS_BAR)}')
    e(f's_and_b32 s{S_SPIN}, s2, 15')
    e(f's_lshl_b32 s{S_TMP}, s{S_SPIN}, 7')
    e(f's_add_u32 s{S_T}, s{S_TMP}, s{S_TMP2}')
    e(f's_cmp_lt_u32 s{S_SPIN}, {NB % 16}')
    e(f's_cselect_b32 s{S_SPIN}, {NB//16}, {NB//16 - 1}')
    e('v_and_b32 v36, 31, v0')
    e('v_lshlrev_b32 v36, 7, v36')
    e('s_waitcnt vmcnt(1)')
    e('s_mov_b64 exec, 1')
    e('ds_add_rtn_u32 v35, v34, v33')
    e('s_waitcnt lgkmcnt(0)')
    e(f'v_readfirstlane_b32 s{S_TMP}, v35')
    e(f's_sub_u32 s{S_TMP}, s{S_TMP}, s{S_POST}')
    e(f's_cmp_lg_u32 s{S_TMP}, 11')
    e(f's_cbranch_scc1 {pf}_NOSIG')
    if not DIRECT:
        e(f's_mov_b32 s{S_TMP}, 1')
        e(f's_atomic_add s{S_TMP}, s[12:13], s{S_T} glc')
        e('s_waitcnt lgkmcnt(0)')
        e(f's_cmp_lg_u32 s{S_TMP}, s{S_SPIN}')
        e(f's_cbranch_scc1 {pf}_NOSIG')
    e('s_mov_b32 exec_lo, -1')
    e(f'buffer_atomic_add v33, v36, s[{S_WS}:{S_WS+3}], s{S_TMP2} offen offset:2048')
    e('s_nop 1')
    lab(f'{pf}_NOSIG')
    e('s_mov_b64 exec, -1')
    e(f's_mul_i32 s{S_POST}, s{S_POST}, 3')
    e(f's_branch {pf}_P1NEXT')
    lab(f'{pf}_PGEMM')
    e(f's_mov_b32 s{S_POST}, 0')
    tile_regs(14, 15, 6)
    e('ds_write_b128 v14, v[24:27] offset:128')
    e(f'ds_write_b128 v14, v[28:31] offset:{8*ROW_STRIDE+128}')
    e('s_waitcnt vmcnt(17)')
    wait3(0, 'b')
    e('ds_write_b128 v14, v[16:19]')
    e(f'ds_write_b128 v14, v[20:23] offset:{8*ROW_STRIDE}')
    e('s_waitcnt lgkmcnt(0)')
    for r in range(16):
        e(f'v_mov_b32 v{ACCO+r}, 0')
    gemm_steps(range(4), 15, 6, 32, [36, 40, 44], lambda ks: (ks >> 1) * 128)
    lab(f'{pf}_POSTEND')
    e(f's_cmp_eq_u32 s{S_RET}, 2')
    e(f's_cbranch_scc1 {pf}_RET2')
    e(f's_cmp_eq_u32 s{S_RET}, 1')
    e(f's_cbranch_scc1 {pf}_RET1')
    e(f's_cmp_eq_u32 s{S_RET}, 4')
    e(f's_cbranch_scc1 {pf}_P1NEXT')
    e(f's_branch {pf}_RET3')
    lab(f'{pf}_END_P2')
    e(f's_cmp_lg_u32 s{S_PH}, 0')
    e(f's_cbranch_scc1 {pf}_P2DONE')
    if 'p2' in XP: stamp(7)
    e(f's_mov_b32 s{S_PH}, 1')
    e(f's_branch {pf}_SEG')
    lab(f'{pf}_P2DONE')
    e(f's_cmp_lg_u32 s{S_FIRST}, 0')
    e(f's_cbranch_scc1 {pf}_FINAL2')
    part_addrs()
    e(f'buffer_store_dwordx4 v[40:43], v15, s[{S_WS}:{S_WS+3}], s{S_TMP} offen')
    e(f'buffer_store_dwordx4 v[44:47], v15, s[{S_WS}:{S_WS+3}], s{S_TMP} offen offset:16')
    e(f's_cmp_eq_u32 s{S_WAVE}, {NW-1}')
    e(f's_cbranch_scc1 {pf}_NEXTROUND')
    e(f'buffer_store_dwordx4 v[32:35], v14, s[{S_WS}:{S_WS+3}], s{S_TMP} offen')
    e(f'buffer_store_dwordx4 v[36:39], v14, s[{S_WS}:{S_WS+3}], s{S_TMP} offen offset:16')
    e(f's_branch {pf}_NEXTROUND')

    lab(f'{pf}_FINAL2')
    if 'sig' not in XP: stamp(2)
    tile_regs(14, 15, 94)
    e('ds_read_b128 v[64:67], v14')
    e(f'ds_read_b128 v[68:71], v14 offset:{8*ROW_STRIDE}')
    e('v_and_b32 v93, 7, v0')
    e(f'v_lshl_add_u32 v93, v93, 3, s{S_PAIR}')
    e('v_bfe_u32 v92, v0, 3, 1')
    e(f'v_mul_u32_u24 v92, {(RA+8)*8}, v92')
    e('v_add_u32 v93, v93, v92')
    e('ds_read_b32 v93, v93')
    for f in range(8):
        e(f'ds_read_b128 v[{96+4*f}:{99+4*f}], v94 offset:{(16+f)*1024}')
    e('s_waitcnt lgkmcnt(9)')
    for h in range(2):
        for d in range(4):
            xs = 64 + 4*h + d
            e(f'v_lshlrev_b32 v88, 16, v{xs}')
            e(f'v_and_b32 v89, s{S_HI}, v{xs}')
            e(f'v_fma_f32 v88, 2.0, v{ACC[h]+2*d}, -v88')
            e(f'v_fma_f32 v89, 2.0, v{ACC[h]+2*d+1}, -v89')
            e(f'v_cvt_pk_bf16_f32 v{80+4*h+d}, v88, v89')
    e('ds_write_b128 v14, v[80:83] offset:128')
    e(f'ds_write_b128 v14, v[84:87] offset:{8*ROW_STRIDE+128}')
    e('ds_read_b128 v[72:75], v15 offset:128')
    e('ds_read_b128 v[76:79], v15 offset:192')
    mfma_run(16, 24, lambda ks: 72 + 4*(ks-4), ['d'] + ['A%d' % i for i in range(16, 24)] + ['w', 'w', 'B4', 'B5'], 94)
    e('v_and_b32 v93, 255, v93')
    e('v_bfe_u32 v14, v0, 4, 2')
    e('v_lshlrev_b32 v14, 5, v14')
    e('v_lshl_add_u32 v14, v93, 7, v14')
    e(f'v_add_u32 v14, s{S_ROW0}, v14')
    e(f'v_cmp_gt_u32 vcc, {R}, v93')
    e('s_and_b64 exec, exec, vcc')
    e('s_nop 7')
    for mt in range(4):
        e(f'v_cvt_pk_bf16_f32 v{64+2*mt}, v{ACCO+4*mt}, v{ACCO+4*mt+1}')
        e(f'v_cvt_pk_bf16_f32 v{65+2*mt}, v{ACCO+4*mt+2}, v{ACCO+4*mt+3}')
    e(f'buffer_store_dwordx4 v[64:67], v14, s[{S_OUT}:{S_OUT+3}], 0 offen ' + OPOL)
    e(f'buffer_store_dwordx4 v[68:71], v14, s[{S_OUT}:{S_OUT+3}], 0 offen offset:16 ' + OPOL)
    lab(f'{pf}_END')
    if HD:
        e('s_waitcnt vmcnt(0)')
        hd(14, 88); hd(13, 88, True)
    dump_stamps(1, S_WS)
    lab(f'{pf}_END2')
    e('s_endpgm')
    out.extend(cold)
    lab('M_CODE_END')

WPC = K1T // 2 if K1T == 512 else 768
NWP = 1536 // WPC
def gen_wprep():
    e(f's_cmp_gt_u32 s2, {NC+NWP-1}')
    e('s_cbranch_scc1 K1_CPF')
    e('s_load_dwordx2 s[10:11], s[0:1], 32')
    e('s_load_dwordx2 s[12:13], s[0:1], 56')
    e(f's_sub_u32 s36, s2, {NC}')
    e(f's_mul_i32 s36, s36, {WPC}')
    e(f'v_cmp_gt_u32 vcc, {WPC}, v0')
    e('s_and_saveexec_b64 s[40:41], vcc')
    e('s_cbranch_execz K1_ZBAR')
    e('v_add_u32 v1, s36, v0')
    e('v_lshrrev_b32 v2, 6, v1')
    e('v_and_b32 v3, 3, v2')
    e('v_lshrrev_b32 v4, 2, v2')
    e('v_and_b32 v5, 15, v1')
    e('v_bfe_u32 v6, v1, 4, 2')
    e('v_lshrrev_b32 v7, 2, v5')
    e('v_lshlrev_b32 v7, 4, v7')
    e('v_lshl_add_u32 v7, v3, 2, v7')
    e('v_and_b32 v8, 3, v5')
    e('v_add_u32 v7, v7, v8')
    e('v_readfirstlane_b32 s38, v4')
    e('v_lshlrev_b32 v9, 12, v4')
    e('s_waitcnt lgkmcnt(0)')
    srd(16, 10, 11, 3 * 64 * 64 * 2)
    srd(28, 12, 13, WS_SIZE)
    e(f's_mov_b32 s37, {hex(WS_WT)}')
    e('s_lshr_b32 s38, s38, 1')
    e('s_cmp_eq_u32 s38, 1')
    e('s_cbranch_scc1 K2_WP')
    e('v_lshl_add_u32 v9, v6, 10, v9')
    e('v_lshl_add_u32 v9, v7, 1, v9')
    for j in range(8):
        e(f'buffer_load_ushort v{10+j}, v9, s[16:19], 0 offen offset:{j*128}')
    e('s_branch K2_WQ')
    lab('K2_WP')
    e('v_lshl_add_u32 v9, v6, 7, v9')
    e('v_lshl_add_u32 v9, v7, 1, v9')
    for j in range(8):
        e(f'buffer_load_ushort v{10+j}, v9, s[16:19], 0 offen offset:{(j&3)*1024 + (j>>2)*512}')
    lab('K2_WQ')
    e('s_waitcnt vmcnt(0)')
    for j in range(4):
        e(f'v_lshl_or_b32 v{20+j}, v{11+2*j}, 16, v{10+2*j}')
    e('v_lshlrev_b32 v1, 4, v1')
    e('buffer_store_dwordx4 v[20:23], v1, s[28:31], s37 offen')
    e('s_endpgm')
    lab('K1_ZBAR')
    e('s_mov_b64 exec, -1')
    e('v_and_b32 v1, 255, v0')
    e('v_lshlrev_b32 v1, 4, v1')
    for i in range(4):
        e(f'v_mov_b32 v{4+i}, 0')
    e('s_waitcnt lgkmcnt(0)')
    srd(28, 12, 13, WS_SIZE)
    e(f's_mov_b32 s37, {hex(WS_BAR)}')
    e('buffer_store_dwordx4 v[4:7], v1, s[28:31], s37 offen')
    for k in range(1, 4):
        e(f's_mov_b32 s37, {hex(WS_BAR+4096*k)}')
        e('buffer_store_dwordx4 v[4:7], v1, s[28:31], s37 offen')

S_NST = 74
S_PAIR = 75
def part_addrs():
    e(f'v_mad_u32_u16 v14, v{V_ROWS}, s{S_128}, v{V_J}')
    e(f'v_mad_u32_u16 v15, v{V_ROWS}, s{S_128}, v{V_J} op_sel:[1,0,0,0]')
    e('v_lshlrev_b32 v14, 1, v14')
    e('v_lshlrev_b32 v15, 1, v15')
    e(f's_lshl_b32 s{S_TMP}, s{S_ROW0}, 1')
    e(f's_add_u32 s{S_TMP}, s{S_TMP}, {hex(WS_PART)}')

def kd(name, vgpr, sgpr):
    out.append('.p2align 6')
    out.append(f'.amdhsa_kernel {name}')
    out.append(f'  .amdhsa_next_free_vgpr {vgpr}')
    out.append(f'  .amdhsa_next_free_sgpr {sgpr}')
    out.append(f'  .amdhsa_accum_offset {(vgpr+3)//4*4}')
    out.append('  .amdhsa_group_segment_fixed_size 0')
    out.append('  .amdhsa_kernarg_size 64')
    out.append('  .amdhsa_user_sgpr_count 2')
    out.append('  .amdhsa_user_sgpr_kernarg_segment_ptr 1')
    out.append('  .amdhsa_system_sgpr_workgroup_id_x 1')
    out.append('.end_amdhsa_kernel')

hdr = open('standalone__spectral_conv_chebnet__graph.s.ref').read().split('\n')
for l in hdr:
    if l.startswith(';') and '@launch' not in l and 'Override launch' not in l and 'grid=ceil' not in l:
        out.append(l)
    elif not l.startswith(';'):
        break
G1 = NC + NWP + (8 if CPF else 0)
out.append(f'; @launch kernel=part_kernel grid=({G1},1,1) block=({K1T},1,1) lds={4096+32768}')
out.append(f'; @launch kernel=main_kernel grid=({NB},1,1) block=({NT},1,1) lds={L_END3}')
out.append('.amdgcn_target "amdgcn-amd-amdhsa--gfx950"')
out.append('.text')
gen_k1()
gen_main()
out.append('.section .rodata,"a"')
kd('part_kernel', max(64, K1_VGPR), 102 if (INSTR or HD) else 72)
kd('main_kernel', 128, 102 if (INSTR or HD) else 88)
dst = sys.argv[1] if len(sys.argv) > 1 else 'standalone__spectral_conv_chebnet__graph.s'
open(dst, 'w').write('\n'.join(out) + '\n')
print('wrote', dst, len(out), 'lines')
```

```python
import sys

N = 50000; E = 800000
R = 200
NB = 250
CH = 4096
NC = 196
S = 48
NIT = S // 8
NW = 13
NT = NW * 64

WS_ENT = 0x0000000
WS_SEG = 0x0800000
WS_WT  = 0x0900000
WS_BAR = 0x0A00000
WS_CSR = 0x1000000
CSR_STRIDE = 0x10000
WS_T1  = 0x2000000
WS_PART = 0x3000000
WS_SIZE = 268435456

L_CNT = 0
L_OFF = 2048
L_MAX = 4096
L_DESC = 4112
L_SYNC = 5792
L_H2 = 5888
L_JUNK = 6912
L_SORT = 7168
RA = 96
SORT_BYTES = NT * 16 * 4
L_DUMMY = L_SORT + SORT_BYTES - 16
L_END2 = L_SORT + SORT_BYTES
L_W = L_END2
L_ROWS = L_W + 24576
ROW_STRIDE = 272
L_END3 = L_ROWS + 208 * ROW_STRIDE
HALF = 25000

import os
INSTR = int(os.environ.get('INSTR', '0'))
PF2 = int(os.environ.get('PF2', '32'))
PF3 = int(os.environ.get('PF3', '24'))
PFB2 = int(os.environ.get('PFB2', '0'))
PFB3 = int(os.environ.get('PFB3', '0'))
PFBW = int(os.environ.get('PFBW', '0'))
BAL = int(os.environ.get('BAL', '3'))
XP = os.environ.get('XP', '')
PF1 = int(os.environ.get('PF1', '0'))
PF2BASE = 6144 * int(os.environ.get('PFH', '0'))
RENUM = int(os.environ.get('RENUM', '1'))
WS_DBG = 0x8000000
S_ST = 40
NSTAMP = 12
SPIN_MAX = int(os.environ.get('SPIN_MAX', '6000000'))
SCAL = int(os.environ.get('SCAL', '1'))
CPF = int(os.environ.get('CPF', '1'))
OCO = int(os.environ.get('OCO', '1'))
YP = int(os.environ.get('YP', '0'))
PAIR = int(os.environ.get('PAIR', '0'))
OPOL = os.environ.get('OPOL', 'nt')
IPOL = os.environ.get('IPOL', '')
DPOL = os.environ.get('DPOL', 'sc1')
EPOL = os.environ.get('EPOL', '')
SKIP = int(os.environ.get('SKIP', '1'))
S_SKIP = 64
cold = []
_uid = [0]
DBL = int(os.environ.get('DBL', '0'))
TLBW = int(os.environ.get('TLBW', '0'))
LATE = int(os.environ.get('LATE', '1'))
WLATE = int(os.environ.get('WLATE', '0'))
TPF = int(os.environ.get('TPF', '1'))
PFL = int(os.environ.get('PFL', '0'))
ROWSEG = int(os.environ.get('ROWSEG', '1'))
KA = int(os.environ.get('KA', '0')); KB = int(os.environ.get('KB', '0'))
def gate(tag, word, k):
    if not k: return
    e(f's_cmp_lg_u32 s{S_NR}, 0')
    e(f's_cbranch_scc1 M_GATE{tag}X')
    e(f'v_mov_b32 v14, {L_SYNC + 4*word}')
    lab(f'M_GATE{tag}')
    e('ds_read_b32 v15, v14')
    e('s_waitcnt lgkmcnt(0)')
    e(f'v_readfirstlane_b32 s{S_TMP}, v15')
    e(f's_cmp_ge_u32 s{S_TMP}, {k}')
    e(f's_cbranch_scc1 M_GATE{tag}X')
    e('s_sleep 1')
    e(f's_branch M_GATE{tag}')
    lab(f'M_GATE{tag}X')
DIRECT = int(os.environ.get('DIRECT', '0'))
PFH = int(os.environ.get('PFH', '0'))
HD = int(os.environ.get('HD', '0'))
def hd(slot, base, neg=False, tmp=86):
    if not HD: return
    global _hdn
    _hdn += 1
    e('s_cmp_eq_u32 s90, 0')
    e(f's_cbranch_scc1 HDSKIP{_hdn}')
    e(f's_memrealtime s[{tmp}:{tmp+1}]')
    e('s_waitcnt lgkmcnt(0)')
    if neg: e(f's_not_b32 s{tmp}, s{tmp}')
    e(f's_atomic_umax s{tmp}, s[{base}:{base+1}], {slot*4}')
    lab(f'HDSKIP{_hdn}')
_hdn = 0
FLAGV = int(os.environ.get('FLAGV', '1'))
SELFPF = int(os.environ.get('SELFPF', '1'))
P1S0 = int(os.environ.get('P1S0', '3')); P1S1 = int(os.environ.get('P1S1', '2')); P2S0 = int(os.environ.get('P2S0', '1')); P2S1 = int(os.environ.get('P2S1', '0'))
P0B = int(os.environ.get('P0B', '3'))
P1A = int(os.environ.get('P1A', '2')); P1B = int(os.environ.get('P1B', '1'))
P2PRIO = int(os.environ.get('P2PRIO', '1'))
NREP = int(os.environ.get('NREP', '16'))
SLP = int(os.environ.get('SLP', '2'))
STMAP = {0: 86, 1: 88, 2: 90, 4: 92, 7: 94, 8: 96, 9: 98, 10: 100, 11: 14}
def stamp(i, real=False):
    if INSTR and i in STMAP:
        r = STMAP[i]
        e(f's_memrealtime s[{r}:{r+1}]' if real else f's_memtime s[{r}:{r+1}]')
def dump_stamps(kidx, ws_srd, wave_sgpr_from_v0=True):
    if not INSTR: return
    e('s_waitcnt vmcnt(0) lgkmcnt(0)')
    stamp(NSTAMP-2); stamp(NSTAMP-1, True)
    e('s_waitcnt lgkmcnt(0)')
    e('s_mov_b64 exec, -1')
    e('v_lshrrev_b32 v1, 6, v0')
    e('s_lshl_b32 s70, s2, 4')
    e('v_add_u32 v1, s70, v1')
    e('v_lshlrev_b32 v1, 7, v1')
    e(f's_mov_b32 s70, {hex(WS_DBG + kidx*0x100000)}')
    e('s_mov_b64 exec, 1')
    for i in range(NSTAMP):
        if i not in STMAP: continue
        e(f'v_mov_b32 v2, s{STMAP[i]}')
        e(f'v_mov_b32 v3, s{STMAP[i]+1}')
        e(f'buffer_store_dwordx2 v[2:3], v1, s[{ws_srd}:{ws_srd+3}], s70 offen offset:{8*i}')
        e('s_nop 1')

out = []
def e(s=''):
    out.append('    ' + s if s and not s.endswith(':') else s)
def lab(s):
    out.append(s + ':')

def srd(d, lo, hi, nbytes, add=0):
    if add:
        e(f's_add_u32 s{d}, s{lo}, {hex(add)}')
        e(f's_addc_u32 s{d+1}, s{hi}, 0')
    else:
        e(f's_mov_b32 s{d}, s{lo}')
        e(f's_mov_b32 s{d+1}, s{hi}')
    e(f's_mov_b32 s{d+2}, {hex(nbytes)}')
    e(f's_mov_b32 s{d+3}, 0x00020000')

def wave_scan(v, op='v_add_u32'):
    for sh in (1, 2, 4, 8):
        e('s_nop 1')
        e(f'{op}_dpp v{v}, v{v}, v{v} row_shr:{sh} row_mask:0xf bank_mask:0xf bound_ctrl:0')
    e('s_nop 1')
    e(f'{op}_dpp v{v}, v{v}, v{v} row_bcast:15 row_mask:0xa bank_mask:0xf')
    e('s_nop 1')
    e(f'{op}_dpp v{v}, v{v}, v{v} row_bcast:31 row_mask:0xc bank_mask:0xf')

def kernel_head(name):
    out.append(f'.globl {name}')
    out.append('.p2align 8')
    out.append(f'.type {name},@function')
    lab(name)

K1T = int(os.environ.get('K1T', '1024'))
EPT = CH // K1T
def gen_k1():
    n = EPT; q = n // 4
    D0 = 4; S0 = D0 + n; W0 = S0 + n
    B0 = W0 + n // 2 + ((n // 2) & 1)
    B0 += B0 & 1
    K0 = B0 + n
    P0 = K0 + n
    T0 = P0 + 2 * n
    T0 += (-T0) % 4
    kernel_head('part_kernel')
    e(f's_cmp_ge_u32 s2, {NC}')
    e('s_cbranch_scc1 K1_XTRA')
    stamp(0, True); stamp(1)
    e('s_load_dwordx4 s[4:7], s[0:1], 8')
    e('s_load_dwordx2 s[8:9], s[0:1], 24')
    e('s_load_dwordx2 s[12:13], s[0:1], 56')
    if SELFPF:
        e('s_getpc_b64 s[46:47]')
        e(f'v_and_b32 v{T0}, 31, v0')
        e(f'v_lshlrev_b32 v{T0}, 6, v{T0}')
        e(f'global_load_dword v{T0+1}, v{T0}, s[46:47]')
    e('v_lshlrev_b32 v1, 2, v0')
    e('s_lshl_b32 s14, s2, 12')
    e(f'v_lshl_add_u32 v3, v0, {n.bit_length()-1}, s14')
    e(f's_mov_b32 s15, {E}')
    e('v_cmp_gt_u32 vcc, s15, v3')
    e(f'v_lshlrev_b32 v{T0+2}, 2, v3')
    e(f'v_lshlrev_b32 v{T0+3}, 1, v3')
    e('v_mov_b32 v2, 0')
    e('ds_write_b32 v1, v2')
    e('s_mov_b64 s[32:33], vcc')
    e('s_and_saveexec_b64 s[38:39], vcc')
    e('s_waitcnt lgkmcnt(0)')
    stamp(2)
    e('s_cbranch_execz K1_NOLD')
    for k in range(q):
        e(f'global_load_dwordx4 v[{D0+4*k}:{D0+4*k+3}], v{T0+2}, s[6:7] offset:{16*k} ' + IPOL)
    lab('K1_NOLD')
    srd(28, 12, 13, WS_SIZE)
    e('s_mov_b32 s34, 83887')
    e(f's_mov_b32 s35, {-R & 0xffffffff:#x}')
    e('s_mov_b32 s36, 0xffff0000')
    e('v_mov_b32 v2, 1')
    e('s_barrier')
    e('s_waitcnt vmcnt(0)')
    e('s_cbranch_execz K1_NOLD2')
    for k in range(q):
        e(f'global_load_dwordx4 v[{S0+4*k}:{S0+4*k+3}], v{T0+2}, s[4:5] offset:{16*k} ' + IPOL)
    if n == 4:
        e(f'global_load_dwordx2 v[{W0}:{W0+1}], v{T0+3}, s[8:9] ' + IPOL)
    else:
        e(f'global_load_dwordx4 v[{W0}:{W0+3}], v{T0+3}, s[8:9] ' + IPOL)
    lab('K1_NOLD2')
    stamp(3)
    for i in range(n):
        e(f'v_mul_u32_u24 v{B0+i}, s34, v{D0+i}')
        e(f'v_lshrrev_b32 v{B0+i}, 24, v{B0+i}')
        e(f'v_mad_i32_i24 v{P0+1+2*i}, v{B0+i}, s35, v{D0+i}')
        e(f'v_and_b32 v3, 7, v{B0+i}')
        e(f'v_lshrrev_b32 v{B0+i}, 3, v{B0+i}')
        e(f'v_lshlrev_b32 v{B0+i}, 2, v{B0+i}')
        e(f'v_lshl_or_b32 v{B0+i}, v3, 7, v{B0+i}')
        e(f'ds_add_rtn_u32 v{K0+i}, v{B0+i}, v2')
    e('s_mov_b64 exec, -1')
    e('s_waitcnt lgkmcnt(0)')
    e('s_barrier')
    stamp(4)
    t = T0
    e('v_cmp_gt_u32 vcc, 64, v0')
    e('s_cbranch_vccz K1_SCAN_DONE')
    e(f'v_lshlrev_b32 v{t}, 4, v0')
    e(f'ds_read_b128 v[{t+4}:{t+7}], v{t}')
    e('s_waitcnt lgkmcnt(0)')
    e(f'v_add_u32 v{t+9}, v{t+4}, v{t+5}')
    e(f'v_add_u32 v{t+10}, v{t+9}, v{t+6}')
    e(f'v_add_u32 v{t+11}, v{t+10}, v{t+7}')
    e(f'v_mov_b32 v{t+8}, v{t+11}')
    wave_scan(t+8)
    e(f'v_sub_u32 v{t+12}, v{t+8}, v{t+11}')
    e(f'v_add_u32 v{t+13}, v{t+12}, v{t+4}')
    e(f'v_add_u32 v{t+14}, v{t+12}, v{t+9}')
    e(f'v_add_u32 v{t+15}, v{t+12}, v{t+10}')
    e(f'ds_write_b128 v{t}, v[{t+12}:{t+15}] offset:1024')
    for i in range(4):
        e(f'v_lshl_or_b32 v{t+16+i}, v{t+4+i}, 16, v{t+12+i}')
    e('s_lshl_b32 s37, s2, 10')
    e(f's_add_u32 s37, s37, {hex(WS_SEG)}')
    e(f'buffer_store_dwordx4 v[{t+16}:{t+19}], v{t}, s[28:31], s37 offen ' + DPOL)
    e('s_waitcnt lgkmcnt(0)')
    lab('K1_SCAN_DONE')
    e('s_barrier')
    e('s_mov_b64 exec, s[32:33]')
    for i in range(n):
        e(f'ds_read_b32 v{B0+i}, v{B0+i} offset:1024')
    e('s_waitcnt vmcnt(1)')
    e('v_cmp_gt_u32 vcc, 64, v0')
    e('s_cbranch_vccnz K1_W0')
    e('s_waitcnt vmcnt(0)')
    lab('K1_W0')
    e(f's_movk_i32 s37, {RA}')
    for i in range(n):
        e(f'v_mul_u32_u24 v3, s34, v{S0+i}')
        e('v_lshrrev_b32 v3, 24, v3')
        e(f'v_mad_i32_i24 v3, v3, s35, v{S0+i}')
        e(f'v_cmp_le_u32 s[{48+2*i}:{49+2*i}], s37, v3')
    for i in range(n):
        if i & 1 == 0:
            e(f'v_lshl_or_b32 v{P0+2*i}, v{W0+i//2}, 16, v{S0+i}')
        else:
            e(f'v_and_or_b32 v{P0+2*i}, v{W0+i//2}, s36, v{S0+i}')
    for i in range(n):
        e(f'v_addc_co_u32 v{P0+1+2*i}, vcc, v{P0+1+2*i}, v{P0+1+2*i}, s[{48+2*i}:{49+2*i}]')
    e('s_waitcnt lgkmcnt(0)')
    for i in range(n):
        e(f'v_add_lshl_u32 v{B0+i}, v{B0+i}, v{K0+i}, 3')
        e(f'ds_write_b64 v{B0+i}, v[{P0+2*i}:{P0+1+2*i}] offset:4096')
    e('s_mov_b64 exec, -1')
    e('s_waitcnt lgkmcnt(0)')
    e('s_barrier')
    nc = 32768 // (K1T * 16)
    e('v_lshlrev_b32 v1, 4, v0')
    for k in range(nc):
        e(f'ds_read_b128 v[{4+4*k}:{7+4*k}], v1 offset:{4096 + k*K1T*16}')
    e('s_lshl_b32 s37, s2, 15')
    pol = '' if 'Eplain' in XP else ' sc1'
    for k in range(nc):
        e(f's_waitcnt lgkmcnt({nc-1-k})')
        e(f'buffer_store_dwordx4 v[{4+4*k}:{7+4*k}], v1, s[28:31], s37 offen' + pol)
        e(f's_add_u32 s37, s37, {K1T*16}')
    stamp(7)
    dump_stamps(0, 28)
    e('s_endpgm')
    global K1_VGPR
    K1_VGPR = T0 + 24
    lab('K1_XTRA')
    gen_wprep()
    e('s_endpgm')
    lab('K1_CPF')
    if CPF:
        e(f's_cmp_gt_u32 s2, {NC+NWP+7}')
        e('s_cbranch_scc1 K1_HELP')
        e('s_getpc_b64 s[4:5]')
        lab('K1_PCREF')
        e('s_add_u32 s4, s4, main_kernel-K1_PCREF')
        e('s_addc_u32 s5, s5, 0')
        e('v_lshlrev_b32 v1, 6, v0')
        e('s_mov_b32 s6, M_CODE_END-main_kernel')
        e('v_cmp_gt_u32 vcc, s6, v1')
        e('s_and_saveexec_b64 s[8:9], vcc')
        e('s_cbranch_execz K1_TLB' if TLBW else 's_cbranch_execz K1_END')
        e('global_load_dword v2, v1, s[4:5]')
        e('s_waitcnt vmcnt(0)')
        e('s_endpgm')
        if TLBW:
            lab('K1_TLB')
            e('s_mov_b64 exec, -1')
            e('s_load_dwordx2 s[4:5], s[0:1], 0')
            e('s_load_dwordx2 s[6:7], s[0:1], 40')
            e('s_load_dwordx2 s[10:11], s[0:1], 56')
            e('v_subrev_u32 v1, 512, v0')
            e(f'v_mul_u32_u24 v2, {TLBW*1024}, v1')
            e(f'v_cmp_gt_u32 vcc, {N*128 // (TLBW*1024)}, v1')
            e('s_and_saveexec_b64 s[8:9], vcc')
            e('s_cbranch_execz K1_END')
            e('s_waitcnt lgkmcnt(0)')
            e(f's_add_u32 s10, s10, {hex(WS_T1)}')
            e('s_addc_u32 s11, s11, 0')
            e('global_load_dword v3, v2, s[4:5]')
            e('global_load_dword v4, v2, s[6:7]')
            e('global_load_dword v5, v2, s[10:11]')
            e('s_waitcnt vmcnt(0)')
            e('s_endpgm')
        lab('K1_HELP')
        if PFH:
            e(f's_cmp_gt_u32 s2, {NC+9+48}')
            e('s_cbranch_scc1 K1_END')
            e('s_load_dwordx2 s[4:5], s[0:1], 0')
            e(f's_sub_u32 s6, s2, {NC+10}')
            e('s_lshr_b32 s6, s6, 3')
            e(f's_mul_i32 s6, s6, {1024*PFH*128}')
            e('v_lshlrev_b32 v1, 7, v0')
            e('v_add_u32 v1, s6, v1')
            e('s_waitcnt lgkmcnt(0)')
            for i in range(PFH):
                e(f'global_load_dword v{2+i}, v1, s[4:5]')
                e('v_add_u32 v1, 0x20000, v1')
            e('s_waitcnt vmcnt(0)')
    lab('K1_END')
    e('s_endpgm')

X = [64, 96]
EN = [48, 56]
ACC = [32, 40]
ACCO = 16
V_J = 1; V_PA = 2; V_EA = 3; V_PB = 4; V_EB = 5; V_TA = 6; V_TB = 7
V_W = 8
V_ROWS = 12
S_TAB = 16; S_WS = 20; S_OUT = 24; S_X = 28
S_128 = 32; S_HI = 33; S_ROUND = 34; S_NR = 35
S_MASKB = 36
S_T = 38
S_M = 40
S_CSR = 64; S_TMP = 65; S_TMP2 = 66; S_WAVE = 67; S_ROW0 = 68; S_TOT = 69; S_DUM = 70; S_TILE = 71
IMG = NT * 16

def issue(p, half):
    x = X[p] + 16 * half
    en = EN[p] + 4 * half
    if SKIP:
        _uid[0] += 1; u_ = _uid[0]
        e(f's_bitcmp1_b32 s{S_SKIP}, {2*p+half}')
        e(f's_cbranch_scc1 M_CH{u_}')
    if PAIR:
        e(f'v_cmp_ne_u32 s[{S_T}:{S_T+1}], s{S_FFFF}, v{en+2}')
        e(f's_bitset0_b32 s{S_SKIP}, {4+2*p+half}')
    for u in range(2 if PAIR else 4):
        e(f'v_mad_u32_u16 v{x+4*u}, v{en+u}, s{S_128}, v{V_J}')
    for u in range(2 if PAIR else 4):
        e(f'buffer_load_dwordx4 v[{x+4*u}:{x+4*u+3}], v{x+4*u}, s[{S_TAB}:{S_TAB+3}], 0 offen sc1')
    if PAIR:
        e(f's_cmp_eq_u64 s[{S_T}:{S_T+1}], 0')
        e(f's_cbranch_scc1 M_PH{u_}')
        for u in (2, 3):
            e(f'v_mad_u32_u16 v{x+4*u}, v{en+u}, s{S_128}, v{V_J}')
        for u in (2, 3):
            e(f'buffer_load_dwordx4 v[{x+4*u}:{x+4*u+3}], v{x+4*u}, s[{S_TAB}:{S_TAB+3}], 0 offen sc1')
        cold.append(f'M_PH{u_}:')
        cold.append(f'    s_bitset1_b32 s{S_SKIP}, {4+2*p+half}')
        cold.append('    s_mov_b64 exec, 1')
        for u in (2, 3):
            cold.append(f'    buffer_load_dword v{x+4*u}, v{V_SEL0}, s[{S_TAB}:{S_TAB+3}], 0 offen')
        cold.append('    s_mov_b64 exec, -1')
        cold.append(f'    s_branch M_CR{u_}')
    if SKIP:
        lab(f'M_CR{u_}')
        cold.append(f'M_CH{u_}:')
        cold.append('    s_mov_b64 exec, 1')
        for u in range(4):
            cold.append(f'    buffer_load_dword v{x+4*u}, v{V_SEL0}, s[{S_TAB}:{S_TAB+3}], 0 offen')
        cold.append('    s_mov_b64 exec, -1')
        cold.append(f'    s_branch M_CR{u_}')

V_SEL0 = 7; V_SEL1 = 13
def consume(p, half):
    x = X[p] + 16 * half
    en = EN[p] + 4 * half
    acc = ACC[half]
    def perm(bs, u):
        e(f'v_perm_b32 v{V_W+2*bs}, v{en+u}, v{en+u}, v{V_SEL0}')
        e(f'v_perm_b32 v{V_W+2*bs+1}, v{en+u}, v{en+u}, v{V_SEL1}')
    def mm(bs, u):
        e(f'v_mfma_f32_4x4x4_16b_bf16 v[{acc}:{acc+3}], v[{x+4*u}:{x+4*u+1}], v[{V_W+2*bs}:{V_W+2*bs+1}], v[{acc}:{acc+3}]')
        e(f'v_mfma_f32_4x4x4_16b_bf16 v[{acc+4}:{acc+7}], v[{x+4*u+2}:{x+4*u+3}], v[{V_W+2*bs}:{V_W+2*bs+1}], v[{acc+4}:{acc+7}]')
    if SKIP:
        _uid[0] += 1; u_ = _uid[0]
        e(f's_bitcmp1_b32 s{S_SKIP}, {2*p+half}')
        e(f's_cbranch_scc1 M_CS{u_}')
    if PAIR:
        perm(0, 0); perm(1, 1)
        mm(0, 0)
        e(f's_bitcmp1_b32 s{S_SKIP}, {4+2*p+half}')
        mm(1, 1)
        e(f's_cbranch_scc1 M_CS{u_}')
        perm(0, 2); perm(1, 3)
        mm(0, 2)
        e('s_nop 0')
        mm(1, 3)
    else:
        perm(0, 0); perm(1, 1)
        mm(0, 0)
        perm(0, 2)
        mm(1, 1)
        perm(1, 3)
        mm(0, 2)
        e('s_nop 0')
        mm(1, 3)
    if SKIP:
        lab(f'M_CS{u_}')

def next_entries(p, half):
    P = V_PA if half == 0 else V_PB
    EE = V_EA if half == 0 else V_EB
    T = V_TA
    en = EN[p] + 4 * half
    m = 'vcc' if half == 0 else f's[{S_MASKB}:{S_MASKB+1}]'
    e(f'v_cmp_lt_u32 {m}, v{P}, v{EE}')
    e(f'v_mov_b32 v{T}, s{S_DUM}')
    if SKIP:
        e(f's_bitset0_b32 s{S_SKIP}, {2*p+half}')
    else:
        e('s_nop 0')
    e(f'v_cndmask_b32 v{T}, v{T}, v{P}, {m}')
    if SKIP:
        e(f's_cmp_eq_u64 {m}, 0')
        e(f's_cselect_b32 s{S_SPIN}, {1 << (2*p+half)}, 0')
        e(f's_or_b32 s{S_SKIP}, s{S_SKIP}, s{S_SPIN}')
    e(f'v_add_u32 v{P}, s{S_INC}, v{P}')
    e(f'ds_read_b128 v[{en}:{en+3}], v{T}')

def masked_loop(pf, tag, body, first_check=2):
    for i in range(NIT):
        e(f's_mov_b64 exec, s[{S_M+4*i}:{S_M+4*i+1}]')
        if i >= first_check:
            e(f's_cbranch_execz {pf}_{tag}_X')
        body(i, 0)
        if body.__code__.co_argcount == 2 and getattr(body, 'two', True):
            e(f's_mov_b64 exec, s[{S_M+4*i+2}:{S_M+4*i+3}]')
            body(i, 1)
    lab(f'{pf}_{tag}_X')
    e('s_mov_b64 exec, -1')

def gemm_steps(ks_list, vB, vA, tB, tA, part_off):
    for ks in ks_list:
        e(f'ds_read_b128 v[{tB}:{tB+3}], v{vB} offset:{(ks&1)*64 + part_off(ks)}')
        for mt in range(3):
            e(f'ds_read_b128 v[{tA[mt]}:{tA[mt]+3}], v{vA} offset:{(ks*4+mt)*1024}')
        e('s_waitcnt lgkmcnt(2)')
        e(f'v_mfma_f32_16x16x32_bf16 v[{ACCO}:{ACCO+3}], v[{tA[0]}:{tA[0]+3}], v[{tB}:{tB+3}], v[{ACCO}:{ACCO+3}]')
        e(f'ds_read_b128 v[{tA[0]}:{tA[0]+3}], v{vA} offset:{(ks*4+3)*1024}')
        e('s_waitcnt lgkmcnt(2)')
        e(f'v_mfma_f32_16x16x32_bf16 v[{ACCO+4}:{ACCO+7}], v[{tA[1]}:{tA[1]+3}], v[{tB}:{tB+3}], v[{ACCO+4}:{ACCO+7}]')
        e('s_waitcnt lgkmcnt(1)')
        e(f'v_mfma_f32_16x16x32_bf16 v[{ACCO+8}:{ACCO+11}], v[{tA[2]}:{tA[2]+3}], v[{tB}:{tB+3}], v[{ACCO+8}:{ACCO+11}]')
        e('s_waitcnt lgkmcnt(0)')
        e(f'v_mfma_f32_16x16x32_bf16 v[{ACCO+12}:{ACCO+15}], v[{tA[0]}:{tA[0]+3}], v[{tB}:{tB+3}], v[{ACCO+12}:{ACCO+15}]')

def frag_addrs(vb, va, vrow):
    e(f'v_and_b32 v{vrow}, 15, v0')
    e(f's_lshl_b32 s{S_TMP}, s{S_WAVE}, 7')
    e(f's_add_u32 s{S_TMP}, s{S_TMP}, {L_DESC}')
    e(f'v_lshl_add_u32 v{vrow}, v{vrow}, 3, s{S_TMP}')
    e(f'ds_read_b32 v{vrow}, v{vrow}')
    e(f'v_bfe_u32 v{va}, v0, 4, 2')
    e(f'v_lshlrev_b32 v{vb}, 4, v{va}')
    e(f'v_add_u32 v{vb}, {L_ROWS}, v{vb}')
    e(f'v_and_b32 v{va}, 63, v0')
    e(f'v_lshlrev_b32 v{va}, 4, v{va}')
    e(f'v_add_u32 v{va}, {L_W}, v{va}')
    e('s_waitcnt lgkmcnt(0)')
    e(f'v_and_b32 v{vrow}, 255, v{vrow}')
    e(f'v_mad_u32_u24 v{vb}, v{vrow}, s{S_RS}, v{vb}')

def prefetch(lanes, base_line, vdst, vtmp):
    if lanes == 0: return
    e(f's_lshr_b32 s{S_TMP}, s2, 3')
    e(f's_min_u32 s{S_TMP}, s{S_TMP}, 30')
    e(f's_mul_i32 s{S_TMP}, s{S_TMP}, {NW}')
    e(f's_add_u32 s{S_TMP}, s{S_TMP}, s{S_WAVE}')
    e(f's_mul_i32 s{S_TMP}, s{S_TMP}, {lanes}')
    e(f's_add_u32 s{S_TMP}, s{S_TMP}, {base_line}')
    e(f'v_and_b32 v{vtmp}, 63, v0')
    e(f'v_add_u32 v{vtmp}, s{S_TMP}, v{vtmp}')
    e(f'v_lshlrev_b32 v{vtmp}, 7, v{vtmp}')
    if lanes < 64:
        m = (1 << lanes) - 1
        e(f's_mov_b32 exec_lo, {hex(m & 0xffffffff)}')
        e(f's_mov_b32 exec_hi, {hex(m >> 32)}')
    e(f's_mov_b32 m0, {L_JUNK}')
    e('s_nop 0')
    e(f'buffer_load_dword v{vtmp}, s[{S_TAB}:{S_TAB+3}], 0 offen lds')
    e('s_mov_b64 exec, -1')

S_RS = S_TILE
S_PH = 72
S_FIRST = 73

S_T1 = 76
S_DBG = 80
S_PASS = 84
S_SPIN = 85
S_ONE = 80
S_FFFF = 80
S_POST = 81
S_RET = 82
S_NOUT = 83
S_INC = 69

def tile_regs(vw, vb, va):
    e(f's_mul_i32 s{S_TMP}, s{S_WAVE}, {16*ROW_STRIDE}')
    e(f's_add_u32 s{S_TMP}, s{S_TMP}, {L_ROWS}')
    e(f'v_bfe_u32 v{vw}, v0, 3, 3')
    e(f'v_mad_u32_u24 v{vw}, v{vw}, s{S_RS}, v{V_J}')
    e(f'v_add_u32 v{vw}, s{S_TMP}, v{vw}')
    e(f'v_and_b32 v{va}, 15, v0')
    e(f'v_bfe_u32 v{vb}, v0, 4, 2')
    e(f'v_lshlrev_b32 v{vb}, 4, v{vb}')
    e(f'v_mad_u32_u24 v{vb}, v{va}, s{S_RS}, v{vb}')
    e(f'v_add_u32 v{vb}, s{S_TMP}, v{vb}')
    e(f'v_and_b32 v{va}, 63, v0')
    e(f'v_lshlrev_b32 v{va}, 4, v{va}')
    e(f'v_add_u32 v{va}, {L_W}, v{va}')

def mfma_run(f0, f1, bfrag, pend, va):
    pend = list(pend)
    for f in range(f0, f1):
        ks, mt = f // 4, f % 4
        need = ['A%d' % f, 'B%d' % ks]
        idxs = [pend.index(n) for n in need if n in pend]
        if idxs:
            idx = max(idxs)
            rem = len(pend) - 1 - idx
            e(f's_waitcnt lgkmcnt({min(rem, 15)})')
            pend = pend[idx+1:]
        sl = 96 + 4*(f % 8)
        bq = bfrag(ks)
        e(f'v_mfma_f32_16x16x32_bf16 v[{ACCO+4*mt}:{ACCO+4*mt+3}], v[{sl}:{sl+3}], v[{bq}:{bq+3}], v[{ACCO+4*mt}:{ACCO+4*mt+3}]')
        if f + 8 < f1:
            e(f'ds_read_b128 v[{sl}:{sl+3}], v{va} offset:{(f+8)*1024}')
            pend.append('A%d' % (f+8))

def gen_main():
    pf = 'M'
    kernel_head('main_kernel')
    e(f's_cmp_ge_u32 s2, {NB}')
    e(f's_cbranch_scc1 {pf}_END2')
    stamp(0, True); stamp(1)
    e('s_load_dwordx2 s[4:5], s[0:1], 0')
    e('s_load_dwordx4 s[8:11], s[0:1], 40')
    e('s_load_dwordx2 s[12:13], s[0:1], 56')
    e('v_lshrrev_b32 v14, 6, v0')
    e('v_and_b32 v15, 7, v0')
    e(f'v_readfirstlane_b32 s{S_WAVE}, v14')
    e(f'v_lshlrev_b32 v{V_J}, 4, v15')
    e(f's_movk_i32 s{S_128}, 128')
    e(f's_mov_b32 s{S_HI}, 0xffff0000')
    e(f's_mov_b32 s{S_ROUND}, 0')
    e(f's_mov_b32 s{S_PASS}, 0')
    e(f's_mov_b32 s{S_POST}, 0')
    e(f's_mov_b32 s{S_SKIP}, 0')
    e(f's_mov_b32 s{S_FFFF}, 0xffff')
    e(f's_mov_b32 s{S_DUM}, {L_DUMMY}')
    e(f's_mul_i32 s{S_ROW0}, s2, {R*128}')
    e(f's_movk_i32 s{S_RS}, {ROW_STRIDE}')
    tbl = {1: [3, 0, 1, 2, 4, 7, 6, 5, 11, 8, 9, 10, 12], 2: [9, 0, 1, 2, 10, 5, 4, 3, 11, 6, 7, 8, 12], 0: list(range(13)), 3: [3, 0, 1, 2, 7, 4, 5, 6, 11, 10, 9, 8, 12], 4: [11, 8, 9, 10, 4, 7, 6, 5, 3, 0, 1, 2, 12], 5: [7, 0, 1, 2, 8, 5, 4, 3, 11, 6, 9, 10, 12]}[BAL]
    t64 = sum(v << (4*i) for i, v in enumerate(tbl))
    e(f's_mov_b32 s{S_T}, {hex(t64 & 0xffffffff)}')
    e(f's_mov_b32 s{S_T+1}, {hex(t64 >> 32)}')
    e(f's_lshl_b32 s{S_TMP}, s{S_WAVE}, 2')
    e(f's_lshr_b64 s[{S_T}:{S_T+1}], s[{S_T}:{S_T+1}], s{S_TMP}')
    e(f's_and_b32 s{S_PAIR}, s{S_T}, 15')
    e(f's_lshl_b32 s{S_PAIR}, s{S_PAIR}, 6')
    e(f's_add_u32 s{S_PAIR}, s{S_PAIR}, {L_DESC}')
    e('v_mov_b32 v14, 0')
    e(f'v_mov_b32 v15, {L_MAX}')
    e('ds_write_b32 v15, v14')
    e('v_and_b32 v15, 7, v0')
    e('v_lshlrev_b32 v15, 2, v15')
    e(f'ds_write_b32 v15, v14 offset:{L_SYNC}')
    e('s_waitcnt lgkmcnt(0)')
    stamp(2)
    if HD:
        e('s_mov_b32 s88, s10')
        e('s_mov_b32 s89, s11')
        e(f's_and_b32 s91, s2, 3')
        e(f's_cmp_eq_u32 s{S_WAVE}, 9')
        e('s_cselect_b32 s90, 1, 0')
        e('s_cmp_eq_u32 s91, 0')
        e('s_cselect_b32 s90, s90, 0')
        hd(4, 88, True); hd(5, 88)
    srd(S_WS, 12, 13, WS_SIZE)

    lab(f'{pf}_ROUND')
    e('v_lshrrev_b32 v100, 2, v0')
    e(f'v_lshlrev_b32 v14, {10 if ROWSEG else 2}, v100')
    e(f's_and_b32 s{S_TMP}, s2, 7')
    e(f's_lshl_b32 s{S_TMP}, s{S_TMP}, 5')
    e(f's_lshr_b32 s{S_TMP2}, s2, 3')
    e(f's_add_u32 s{S_TMP}, s{S_TMP}, s{S_TMP2}')
    e(f's_lshl_b32 s{S_TMP}, s{S_TMP}, {2 if ROWSEG else 10}')
    e(f's_add_u32 s{S_TMP}, s{S_TMP}, {hex(WS_SEG)}')
    e('v_mov_b32 v103, 0')
    e(f'v_cmp_gt_u32 vcc, {NC*4}, v0')
    e(f's_and_saveexec_b64 s[{S_T}:{S_T+1}], vcc')
    e(f'buffer_load_dword v103, v14, s[{S_WS}:{S_WS+3}], s{S_TMP} offen')
    e(f's_mov_b64 exec, s[{S_T}:{S_T+1}]')
    e(f's_or_b32 s{S_TMP}, s{S_PASS}, s{S_ROUND}')
    e(f's_cmp_lg_u32 s{S_TMP}, 0')
    e(f's_cbranch_scc1 {pf}_NOSRD')
    srd(S_TAB, 4, 5, N * 128)
    srd(S_X, 4, 5, N * 128)
    srd(S_T1, 12, 13, N * 128, WS_T1)
    srd(S_OUT, 8, 9, N * 128)
    if not WLATE:
        e('v_lshlrev_b32 v14, 4, v0')
        e(f's_mov_b32 s{S_TMP}, {hex(WS_WT)}')
        e(f'buffer_load_dwordx4 v[16:19], v14, s[{S_WS}:{S_WS+3}], s{S_TMP} offen')
        e(f's_add_u32 s{S_TMP}, s{S_TMP}, {IMG}')
        e(f'buffer_load_dwordx4 v[20:23], v14, s[{S_WS}:{S_WS+3}], s{S_TMP} offen')
    lab(f'{pf}_NOSRD')
    e('v_lshlrev_b32 v14, 2, v0')
    e('v_mov_b32 v15, 0')
    e('v_cmp_gt_u32 vcc, 512, v0')
    e(f's_and_saveexec_b64 s[{S_T}:{S_T+1}], vcc')
    e('ds_write_b32 v14, v15')
    e(f's_mov_b64 exec, s[{S_T}:{S_T+1}]')
    for i in range(4):
        e(f'v_mov_b32 v{88+i}, 0xffff')
    e('v_lshlrev_b32 v14, 4, v0')
    for i in range(4):
        e(f'ds_write_b128 v14, v[88:91] offset:{L_SORT + i*IMG}')
    e('v_and_b32 v102, 3, v0')
    e('v_lshlrev_b32 v102, 1, v102')
    e(f's_mul_i32 s{S_TMP}, s{S_ROUND}, {S}')
    e(f'v_add_u32 v102, s{S_TMP}, v102')
    e('v_mov_b32 v104, 1')
    e('s_waitcnt vmcnt(0)' if WLATE else 's_waitcnt vmcnt(2)')
    e(f's_or_b32 s{S_TMP}, s{S_PASS}, s{S_ROUND}')
    e(f's_cmp_eq_u32 s{S_TMP}, 0')
    e(f's_cbranch_scc1 {pf}_DW')
    e('s_waitcnt vmcnt(0)')
    lab(f'{pf}_DW')
    stamp(3)
    e('v_and_b32 v101, 0xffff, v103')
    e('v_lshrrev_b32 v103, 16, v103')
    e('v_add_u32 v101, v101, v102')
    e('v_lshlrev_b32 v101, 3, v101')
    e('v_lshl_add_u32 v101, v100, 15, v101')
    e('v_sub_u32 v105, v103, v102')
    for i in range(NIT):
        e(f'v_cmp_lt_i32 s[{S_M+4*i}:{S_M+4*i+1}], {8*i}, v105')
        e(f'v_cmp_lt_i32 s[{S_M+4*i+2}:{S_M+4*i+3}], {8*i+1}, v105')
    def b_load(i, w):
        e(f'buffer_load_dwordx4 v[{64+4*i}:{67+4*i}], v101, s[{S_WS}:{S_WS+3}], 0 offen offset:{64*i} ' + EPOL)
    b_load.two = False
    masked_loop(pf, 'LD', b_load, 0)
    e('s_waitcnt lgkmcnt(0)')
    e('s_barrier')
    e(f'v_cmp_lt_u32 vcc, {S}, v103')
    e(f's_cbranch_vccz {pf}_NOMAX')
    e(f'v_mov_b32 v15, {L_MAX}')
    e('ds_max_u32 v15, v103')
    lab(f'{pf}_NOMAX')
    e('s_waitcnt vmcnt(0)')
    e(f's_or_b32 s{S_TMP}, s{S_PASS}, s{S_ROUND}')
    e(f's_cmp_lg_u32 s{S_TMP}, 0')
    e(f's_cbranch_scc1 {pf}_NOW')
    if WLATE:
        e('v_lshlrev_b32 v14, 4, v0')
        e(f's_mov_b32 s{S_TMP}, {hex(WS_WT)}')
        e(f'buffer_load_dwordx4 v[16:19], v14, s[{S_WS}:{S_WS+3}], s{S_TMP} offen')
        e(f's_add_u32 s{S_TMP}, s{S_TMP}, {IMG}')
        e(f'buffer_load_dwordx4 v[20:23], v14, s[{S_WS}:{S_WS+3}], s{S_TMP} offen')
        if not PFL: prefetch(PF2, PF2BASE, 127, 126)
    else:
        if TPF:
            e(f's_mov_b32 m0, {L_JUNK}')
            for k in range(TPF):
                lo = 64 + 2*k; mk = S_M + 2*k
                e(f's_mov_b64 exec, s[{mk}:{mk+1}]')
                e(f'v_cmp_gt_u32 vcc, {2*RA}, v{lo+1}')
                e(f'v_mad_u32_u16 v126, v{lo}, s{S_128}, 0')
                e('s_and_b64 exec, exec, vcc')
                e(f's_cbranch_execz {pf}_TP{k}')
                e(f'buffer_load_dword v126, s[{S_TAB}:{S_TAB+3}], 0 offen lds')
                lab(f'{pf}_TP{k}')
            e('s_mov_b64 exec, -1')
        else:
            prefetch(PF2, PF2BASE, 127, 126)
        e('v_lshlrev_b32 v14, 4, v0')
        e(f'v_add_u32 v14, {L_W}, v14')
        e('ds_write_b128 v14, v[16:19]')
        e(f'v_cmp_gt_u32 vcc, {1536-NT}, v0')
        e(f's_and_saveexec_b64 s[{S_T}:{S_T+1}], vcc')
        e(f'ds_write_b128 v14, v[20:23] offset:{IMG}')
        e(f's_mov_b64 exec, s[{S_T}:{S_T+1}]')
    lab(f'{pf}_NOW')
    def b_atom(i, w):
        r = 65 + 4*i + 2*w
        e(f'v_lshlrev_b32 v{r}, 2, v{r}')
        e(f'ds_add_rtn_u32 v{88+2*i+w}, v{r}, v104')
    masked_loop(pf, 'AT', b_atom)
    e('s_waitcnt lgkmcnt(0)')
    e('s_barrier')
    stamp(5)
    if PFL:
        e(f's_or_b32 s{S_TMP}, s{S_PASS}, s{S_ROUND}')
        e(f's_cmp_lg_u32 s{S_TMP}, 0')
        e(f's_cbranch_scc1 {pf}_NOPFL')
        prefetch(PF2, PF2BASE, 127, 126)
        lab(f'{pf}_NOPFL')
    e(f's_cmp_lg_u32 s{S_WAVE}, {NW-1}')
    e(f's_cbranch_scc1 {pf}_SCAN_DONE')
    e('v_and_b32 v106, 63, v0')
    e('v_lshlrev_b32 v14, 5, v106')
    e('ds_read_b128 v[108:111], v14')
    e('ds_read_b128 v[112:115], v14 offset:16')
    e('v_mov_b32 v60, 0')
    e('v_mov_b32 v61, 0')
    e('v_lshlrev_b32 v107, 3, v106')
    e(f'ds_write_b64 v107, v[60:61] offset:{L_H2}')
    e('v_cmp_gt_u32 vcc, 50, v106')
    e(f's_mov_b64 s[{S_MASKB}:{S_MASKB+1}], vcc')
    e(f'v_cmp_gt_u32 vcc, {RA//4}, v106')
    e('v_mov_b32 v126, 127')
    e('v_mov_b32 v15, 63')
    e('v_cndmask_b32 v126, v126, v15, vcc')
    e('s_waitcnt lgkmcnt(1)')
    e(f's_mov_b64 exec, s[{S_MASKB}:{S_MASKB+1}]')
    for i in range(4):
        a0 = 108 + 2*i; a1 = a0 + 1
        if PAIR:
            e(f'v_add_u32 v15, -1, v{a0}')
            e(f'v_add_u32 v59, -1, v{a1}')
            e('v_ashrrev_i32 v15, 1, v15')
            e('v_ashrrev_i32 v59, 1, v59')
            e('v_med3_i32 v15, v15, 0, 7')
            e('v_med3_i32 v59, v59, 0, 7')
            e('v_and_b32 v58, 1, v15')
            e('v_add_u32 v58, -1, v58')
            e('v_and_b32 v58, 7, v58')
            e('v_xor_b32 v59, v59, v58')
        else:
            e(f'v_add_u32 v15, 3, v{a0}')
            e(f'v_add_u32 v59, 3, v{a1}')
            e('v_lshrrev_b32 v15, 2, v15')
            e('v_lshrrev_b32 v59, 2, v59')
            e('v_min_u32 v15, 7, v15')
            e('v_min_u32 v59, 7, v59')
        e('v_lshl_add_u32 v15, v15, 3, v59')
        e('v_sub_u32 v15, v126, v15')
        e(f'v_lshlrev_b32 v{116+i}, 2, v15')
        e(f'ds_add_rtn_u32 v{120+i}, v{116+i}, v104 offset:{L_H2}')
    e('s_mov_b64 exec, -1')
    for i in range(8):
        e(f'v_add_u32 v{108+i}, 3, v{108+i}')
        e(f'v_and_b32 v{108+i}, -4, v{108+i}')
    e('v_mov_b32 v48, 0')
    e('v_mov_b32 v49, v108')
    for i in range(2, 8):
        e(f'v_add_u32 v{48+i}, v{47+i}, v{107+i}')
    e('v_add_u32 v56, v55, v115')
    e('v_mov_b32 v57, v56')
    wave_scan(57)
    e('v_sub_u32 v58, v57, v56')
    for i in range(8):
        e(f'v_add_u32 v{48+i}, v58, v{48+i}')
    e(f'ds_write_b128 v14, v[48:51] offset:{L_OFF}')
    e(f'ds_write_b128 v14, v[52:55] offset:{L_OFF+16}')
    e('s_waitcnt lgkmcnt(0)')
    lab(f'{pf}_SCAN_DONE')
    e('s_barrier')
    stamp(6)
    def b_rd(i, w):
        r = 65 + 4*i + 2*w
        e(f'ds_read_b32 v{r}, v{r} offset:{L_OFF}')
    masked_loop(pf, 'RD', b_rd)
    e('s_waitcnt lgkmcnt(0)')
    def b_wr(i, w):
        r = 65 + 4*i + 2*w
        e(f'v_add_lshl_u32 v{r}, v{r}, v{88+2*i+w}, 2')
        e(f'ds_write_b32 v{r}, v{r-1} offset:{L_SORT}')
    masked_loop(pf, 'WR', b_wr)
    e(f's_cmp_lg_u32 s{S_WAVE}, {NW-1}')
    e(f's_cbranch_scc1 {pf}_DESC_DONE')
    e(f's_or_b32 s{S_TMP}, s{S_PASS}, s{S_ROUND}')
    e(f's_cmp_lg_u32 s{S_TMP}, 0')
    e(f's_cbranch_scc1 {pf}_DESC_REDO')
    e(f's_mov_b64 s[{S_T}:{S_T+1}], s[{S_MASKB}:{S_MASKB+1}]')
    for i in range(8):
        e(f'v_lshrrev_b32 v{108+i}, 2, v{108+i}')
    e(f'ds_read_b64 v[124:125], v107 offset:{L_H2}')
    e('s_waitcnt lgkmcnt(0)')
    e('v_add_u32 v125, v124, v125')
    e('v_mov_b32 v62, v125')
    wave_scan(62)
    e('v_sub_u32 v62, v62, v125')
    e('v_cmp_lt_u32 vcc, 31, v106')
    e('v_mov_b32 v63, 0')
    e('v_mov_b32 v15, 8')
    e('v_cndmask_b32 v63, v63, v15, vcc')
    e('v_add_u32 v62, v62, v63')
    e('v_add_u32 v63, v62, v124')
    e(f'ds_write_b64 v107, v[62:63] offset:{L_H2+512}')
    e('s_mov_b64 exec, 0xff')
    e(f'v_mov_b32 v60, {R}')
    e('v_mov_b32 v61, 0')
    e('v_lshlrev_b32 v15, 3, v106')
    e(f'ds_write_b64 v15, v[60:61] offset:{L_DESC + RA*8}')
    e(f's_mov_b64 exec, s[{S_T}:{S_T+1}]')
    e('s_waitcnt lgkmcnt(0)')
    for i in range(4):
        e(f'ds_read_b32 v{116+i}, v{116+i} offset:{L_H2+512}')
    for i in range(4):
        e(f'v_lshl_add_u32 v15, v106, 2, {i}')
        e(f'v_lshl_or_b32 v{32+2*i}, v{48+2*i}, 6, v15')
        e(f'v_lshl_or_b32 v{33+2*i}, v{109+2*i}, 16, v{108+2*i}')
    e('s_waitcnt lgkmcnt(0)')
    for i in range(4):
        e(f'v_add_lshl_u32 v{116+i}, v{116+i}, v{120+i}, 3')
        e(f'ds_write_b64 v{116+i}, v[{32+2*i}:{33+2*i}] offset:{L_DESC}')
    e('s_mov_b64 exec, -1')
    e(f's_branch {pf}_DESC_DONE')
    lab(f'{pf}_DESC_REDO')
    e('v_cmp_gt_u32 vcc, 52, v106')
    e('s_mov_b64 exec, vcc')
    e(f'ds_read_b128 v[108:111], v14 offset:{L_DESC}')
    e(f'ds_read_b128 v[112:115], v14 offset:{L_DESC+16}')
    e('s_waitcnt lgkmcnt(0)')
    for i in range(4):
        d0 = 108 + 2*i
        e(f'v_and_b32 v{d0}, 255, v{d0}')
        e(f'v_lshlrev_b32 v15, 3, v{d0}')
        e(f'v_add_u32 v15, {L_OFF}, v15')
        e(f'ds_read2_b32 v[{48+4*i}:{49+4*i}], v15 offset0:0 offset1:1')
        e(f'ds_read_b32 v{50+4*i}, v15 offset:8')
    e('s_waitcnt lgkmcnt(0)')
    for i in range(4):
        d0 = 108 + 2*i
        e(f'v_lshl_or_b32 v{d0}, v{48+4*i}, 6, v{d0}')
        e(f'v_sub_u32 v15, v{49+4*i}, v{48+4*i}')
        e(f'v_lshrrev_b32 v15, 2, v15')
        e(f'v_sub_u32 v{d0+1}, v{50+4*i}, v{49+4*i}')
        e(f'v_lshl_or_b32 v{d0+1}, v{d0+1}, 14, v15')
    e(f'ds_write_b128 v14, v[108:111] offset:{L_DESC}')
    e(f'ds_write_b128 v14, v[112:115] offset:{L_DESC+16}')
    e('s_mov_b64 exec, -1')
    lab(f'{pf}_DESC_DONE')
    if WLATE:
        e(f's_or_b32 s{S_TMP}, s{S_PASS}, s{S_ROUND}')
        e(f's_cmp_lg_u32 s{S_TMP}, 0')
        e(f's_cbranch_scc1 {pf}_NOW2')
        e('v_lshlrev_b32 v14, 4, v0')
        e(f'v_add_u32 v14, {L_W}, v14')
        e(f's_waitcnt vmcnt({1 if PF2 else 0})')
        e('ds_write_b128 v14, v[16:19]')
        e(f'v_cmp_gt_u32 vcc, {1536-NT}, v0')
        e(f's_and_saveexec_b64 s[{S_T}:{S_T+1}], vcc')
        e(f'ds_write_b128 v14, v[20:23] offset:{IMG}')
        e(f's_mov_b64 exec, s[{S_T}:{S_T+1}]')
        lab(f'{pf}_NOW2')
    e('s_waitcnt lgkmcnt(0)')
    e('s_barrier')
    stamp(7)
    hd(6, 88)

    BOFF = (RA + 8) * 8
    lab(f'{pf}_PHASE_B')
    e(f's_mov_b32 s{S_PH}, 0')
    e(f'v_mov_b32 v15, {L_MAX}')
    e('ds_read_b32 v6, v15')
    e('v_and_b32 v14, 1, v0')
    e(f's_mov_b32 s{S_TMP}, 0x0c0c0302')
    e(f's_mov_b32 s{S_TMP2}, 0x03020c0c')
    e('v_cmp_eq_u32 vcc, 0, v14')
    e(f'v_mov_b32 v14, s{S_TMP2}')
    e(f'v_mov_b32 v15, s{S_TMP}')
    e('v_cndmask_b32 v14, v14, v15, vcc')
    e('v_and_b32 v15, 2, v0')
    e('v_cmp_eq_u32 vcc, 0, v15')
    e('v_mov_b32 v15, 0x0c0c0c0c')
    e('s_nop 0')
    e(f'v_cndmask_b32 v{V_SEL0}, v15, v14, vcc')
    e(f'v_cndmask_b32 v{V_SEL1}, v14, v15, vcc')
    e('s_waitcnt lgkmcnt(0)')
    e(f'v_readfirstlane_b32 s{S_NR}, v6')
    lab(f'{pf}_SEG')
    e('v_bfe_u32 v15, v0, 3, 3')
    e(f'v_lshl_add_u32 v14, v15, 3, s{S_PAIR}')
    e('ds_read_b64 v[8:9], v14')
    e(f'ds_read_b64 v[10:11], v14 offset:{BOFF}')
    e(f's_cmp_lg_u32 s{S_PASS}, 0')
    e(f's_cbranch_scc1 {pf}_SEG2')
    e(f's_setprio {P1S0}')
    e(f's_movk_i32 s{S_INC}, 32')
    e('s_waitcnt lgkmcnt(0)')
    e('v_and_b32 v14, 255, v8')
    e('v_and_b32 v15, 255, v10')
    e(f'v_lshl_or_b32 v{V_ROWS}, v15, 16, v14')
    e(f's_cmp_eq_u32 s{S_PH}, 0')
    e(f's_cbranch_scc1 {pf}_SEG1A')
    e(f's_setprio {P1S1}')
    e('v_mov_b32 v8, v10')
    e('v_mov_b32 v9, v11')
    lab(f'{pf}_SEG1A')
    e(f'v_lshrrev_b32 v{V_PA}, 8, v8')
    e(f'v_lshlrev_b32 v{V_PA}, 4, v{V_PA}')
    e(f'v_add_u32 v{V_PA}, {L_SORT}, v{V_PA}')
    e('v_and_b32 v14, 0xffff, v9')
    e('v_lshrrev_b32 v15, 16, v9')
    e('v_add_u32 v14, v14, v15')
    e(f'v_lshl_add_u32 v{V_EA}, v14, 4, v{V_PA}')
    e(f'v_add_u32 v{V_PB}, 16, v{V_PA}')
    e(f'v_mov_b32 v{V_EB}, v{V_EA}')
    e(f's_branch {pf}_GW_OK')
    lab(f'{pf}_SEG2')
    e(f's_movk_i32 s{S_INC}, 16')
    e(f's_lshl_b32 s{S_TMP}, s{S_PH}, 2')
    e(f's_add_u32 s{S_TMP}, s{S_TMP}, {L_SYNC+8}')
    e(f'v_mov_b32 v14, s{S_TMP}')
    e('ds_read_b32 v15, v14')
    e('s_waitcnt lgkmcnt(0)')
    e(f'v_readfirstlane_b32 s{S_TMP2}, v15')
    for (D, P, EE) in ((8, V_PA, V_EA), (10, V_PB, V_EB)):
        e(f'v_lshrrev_b32 v{P}, 8, v{D}')
        e(f'v_lshlrev_b32 v{P}, 4, v{P}')
        e(f'v_add_u32 v{P}, {L_SORT}, v{P}')
        e(f'v_and_b32 v{EE}, 0xffff, v{D+1}')
        e(f'v_lshl_add_u32 v{EE}, v{EE}, 4, v{P}')
    e(f's_setprio {P2S0}')
    e(f's_cmp_eq_u32 s{S_PH}, 0')
    e(f's_cbranch_scc1 {pf}_SEG2A')
    e(f's_setprio {P2S1}')
    if YP:
        e(f's_cmp_lt_u32 s{S_WAVE}, 4')
        e(f's_cbranch_scc1 {pf}_YP')
        e('s_setprio 1')
        e(f's_cmp_lt_u32 s{S_WAVE}, 8')
        e(f's_cbranch_scc1 {pf}_YP')
        e('s_setprio 2')
        if YP == 2:
            e(f's_cmp_lt_u32 s{S_WAVE}, 12')
            e(f's_cbranch_scc1 {pf}_YP')
            e('s_setprio 3')
        lab(f'{pf}_YP')
    for (D, P, EE) in ((8, V_PA, V_EA), (10, V_PB, V_EB)):
        e(f'v_mov_b32 v{P}, v{EE}')
        e(f'v_lshrrev_b32 v{D+1}, 16, v{D+1}')
        e(f'v_lshl_add_u32 v{EE}, v{D+1}, 4, v{EE}')
    lab(f'{pf}_SEG2A')
    e(f's_cmp_lg_u32 s{S_TMP2}, 0')
    e(f's_cbranch_scc1 {pf}_GW_OK')
    e(f's_cmp_eq_u32 s{S_POST}, 0')
    e(f's_cbranch_scc1 {pf}_RET1')
    e(f's_mov_b32 s{S_RET}, 1')
    e(f's_mov_b32 s{S_NOUT}, 0')
    e(f's_branch {pf}_POSTWORK')
    lab(f'{pf}_RET1')
    e(f's_lshl_b32 s{S_TMP}, s{S_PH}, 2')
    e(f's_add_u32 s{S_TMP}, s{S_TMP}, {L_SYNC+8}')
    e(f'v_mov_b32 v14, s{S_TMP}')
    e('v_mov_b32 v15, 1')
    e('v_and_b32 v64, 15, v0')
    e('v_lshlrev_b32 v64, 2, v64')
    e('s_mov_b64 exec, 1')
    e('ds_add_rtn_u32 v15, v14, v15 offset:8')
    e(f's_mov_b32 s{S_SPIN}, 0')
    e('s_waitcnt lgkmcnt(0)')
    e(f'v_readfirstlane_b32 s{S_TMP}, v15')
    e(f's_cmp_lg_u32 s{S_TMP}, 0')
    e(f's_cbranch_scc1 {pf}_GW_SPIN')
    e(f's_lshl_b32 s{S_TMP2}, s{S_PH}, 13')
    e(f's_add_u32 s{S_TMP2}, s{S_TMP2}, {hex(WS_BAR+2048)}')
    e(f's_and_b32 s{S_TMP}, s2, 31')
    e(f's_lshl_b32 s{S_TMP}, s{S_TMP}, 7')
    e(f's_add_u32 s{S_TMP2}, s{S_TMP2}, s{S_TMP}')
    if SCAL:
        lab(f'{pf}_POLL')
        e(f's_mov_b32 s{S_TMP}, 0')
        e(f's_atomic_add s{S_TMP}, s[12:13], s{S_TMP2} glc')
        e('s_waitcnt lgkmcnt(0)')
        e(f's_add_u32 s{S_SPIN}, s{S_SPIN}, 1')
        e(f's_cmp_ge_u32 s{S_TMP}, {NB if DIRECT else 16}')
        e(f's_cbranch_scc1 {pf}_POLLED')
    else:
        e('s_mov_b64 exec, 0xffff')
        lab(f'{pf}_POLL')
        e(f'buffer_load_dword v65, v64, s[{S_WS}:{S_WS+3}], s{S_TMP2} offen sc1')
        e('s_waitcnt vmcnt(0)')
        e('v_cmp_eq_u32 vcc, 0, v65')
        e(f's_add_u32 s{S_SPIN}, s{S_SPIN}, 1')
        e(f's_cbranch_vccz {pf}_POLLED')
    e(f's_cmp_ge_u32 s{S_SPIN}, {SPIN_MAX}')
    e(f's_cbranch_scc1 {pf}_POLLED')
    e(f's_sleep {SLP}')
    e(f's_branch {pf}_POLL')
    lab(f'{pf}_POLLED')
    if HD:
        e('s_mov_b32 s92, s90')
        e('s_cmp_eq_u32 s91, 0')
        e('s_cselect_b32 s90, 1, 0')
        e(f's_cmp_lg_u32 s{S_PH}, 0')
        e(f's_cbranch_scc1 {pf}_HD1')
        hd(9, 88, True); hd(10, 88)
        e(f's_branch {pf}_HD2')
        lab(f'{pf}_HD1')
        hd(11, 88, True); hd(12, 88)
        lab(f'{pf}_HD2')
        e('s_mov_b32 s90, s92')
    e('v_mov_b32 v15, 1')
    e('ds_write_b32 v14, v15')
    e(f's_branch {pf}_GW_DONE')
    lab(f'{pf}_GW_SPIN')
    e('s_sleep 1')
    e('ds_read_b32 v15, v14')
    e('s_waitcnt lgkmcnt(0)')
    e(f'v_readfirstlane_b32 s{S_TMP}, v15')
    e(f's_cmp_eq_u32 s{S_TMP}, 0')
    e(f's_cbranch_scc1 {pf}_GW_SPIN')
    lab(f'{pf}_GW_DONE')
    e('s_mov_b64 exec, -1')
    e('s_waitcnt lgkmcnt(0)')
    lab(f'{pf}_GW_OK')
    if INSTR:
        e(f's_lshl_b32 s{S_TMP}, s{S_PASS}, 1')
        e(f's_or_b32 s{S_TMP}, s{S_TMP}, s{S_PH}')
        e(f's_cmp_lg_u32 s{S_TMP}, 2')
        e(f's_cbranch_scc1 {pf}_ST9')
        stamp(9)
        lab(f'{pf}_ST9')
        e(f's_cmp_lg_u32 s{S_TMP}, 3')
        e(f's_cbranch_scc1 {pf}_ST4')
        stamp(4)
        lab(f'{pf}_ST4')
    next_entries(0, 0)
    next_entries(0, 1)
    e(f's_or_b64 s[{S_T}:{S_T+1}], vcc, s[{S_MASKB}:{S_MASKB+1}]')
    e(f's_cselect_b32 s{S_TMP2}, 1, 0')
    next_entries(1, 0)
    next_entries(1, 1)
    e(f's_or_b64 s[{S_T}:{S_T+1}], vcc, s[{S_MASKB}:{S_MASKB+1}]')
    e(f's_cselect_b32 s{S_TMP}, 2, 0')
    e(f's_or_b32 s{S_NST}, s{S_TMP}, s{S_TMP2}')
    e(f's_bitcmp1_b32 s{S_NST}, 0')
    e(f's_cbranch_scc0 {pf}_PRO_DONE')
    e('s_waitcnt lgkmcnt(3)')
    issue(0, 0)
    e('s_waitcnt lgkmcnt(2)')
    issue(0, 1)
    e(f's_bitcmp1_b32 s{S_NST}, 1')
    e(f's_cbranch_scc0 {pf}_PRO_DONE')
    e('s_waitcnt lgkmcnt(1)')
    issue(1, 0)
    e('s_waitcnt lgkmcnt(0)')
    issue(1, 1)
    lab(f'{pf}_PRO_DONE')
    e(f's_cmp_eq_u32 s{S_POST}, 0')
    e(f's_cbranch_scc1 {pf}_RET2')
    e(f's_mov_b32 s{S_RET}, 2')
    e(f's_mov_b32 s{S_NOUT}, s{S_NST}')
    e(f's_branch {pf}_POSTWORK')
    lab(f'{pf}_RET2')
    e(f's_and_b32 s{S_TMP}, s{S_PASS}, s{S_PH}')
    e(f's_cmp_lg_u32 s{S_TMP}, 0')
    e(f's_cbranch_scc1 {pf}_GO')
    for r in range(16):
        e(f'v_mov_b32 v{ACC[0]+r}, 0')
    e(f's_cmp_eq_u32 s{S_ROUND}, 0')
    e(f's_cbranch_scc1 {pf}_GO')
    part_addrs()
    e(f's_cmp_lg_u32 s{S_PASS}, 0')
    e(f's_cbranch_scc1 {pf}_LP2')
    e(f's_cmp_eq_u32 s{S_PH}, 0')
    e(f's_cbranch_scc1 {pf}_LP1')
    e('v_mov_b32 v14, v15')
    e(f's_branch {pf}_LP1')
    lab(f'{pf}_LP2')
    e(f'buffer_load_dwordx4 v[40:43], v15, s[{S_WS}:{S_WS+3}], s{S_TMP} offen')
    e(f'buffer_load_dwordx4 v[44:47], v15, s[{S_WS}:{S_WS+3}], s{S_TMP} offen offset:16')
    lab(f'{pf}_LP1')
    e(f'buffer_load_dwordx4 v[32:35], v14, s[{S_WS}:{S_WS+3}], s{S_TMP} offen')
    e(f'buffer_load_dwordx4 v[36:39], v14, s[{S_WS}:{S_WS+3}], s{S_TMP} offen offset:16')
    e('s_waitcnt vmcnt(0)')
    lab(f'{pf}_GO')
    e(f's_cmp_eq_u32 s{S_NST}, 0')
    e(f's_cbranch_scc1 {pf}_SEG_END')
    e(f's_cmp_eq_u32 s{S_NST}, 1')
    e(f's_cbranch_scc1 {pf}_DRAIN0')
    lab(f'{pf}_LOOP')
    for p in (0, 1):
        e('s_waitcnt vmcnt(12)')
        consume(p, 0)
        next_entries(p, 0)
        e('s_waitcnt vmcnt(8)')
        consume(p, 1)
        next_entries(p, 1)
        e(f's_or_b64 s[{S_T}:{S_T+1}], vcc, s[{S_MASKB}:{S_MASKB+1}]')
        e(f's_cbranch_scc0 {pf}_DRAIN{p^1}')
        e('s_waitcnt lgkmcnt(1)')
        issue(p, 0)
        e('s_waitcnt lgkmcnt(0)')
        issue(p, 1)
    e(f's_branch {pf}_LOOP')
    for q in (1, 0):
        lab(f'{pf}_DRAIN{q}')
        e('s_waitcnt vmcnt(4)')
        consume(q, 0)
        e('s_waitcnt vmcnt(0)')
        consume(q, 1)
        if q == 1:
            e(f's_branch {pf}_SEG_END')
    lab(f'{pf}_SEG_END')
    e('s_nop 4')
    e('s_waitcnt lgkmcnt(0)')
    e(f's_add_u32 s{S_TMP}, s{S_ROUND}, 1')
    e(f's_mul_i32 s{S_TMP}, s{S_TMP}, {S}')
    e(f's_cmp_ge_u32 s{S_TMP}, s{S_NR}')
    e(f's_cselect_b32 s{S_FIRST}, 1, 0')
    e(f's_cmp_lg_u32 s{S_PASS}, 0')
    e(f's_cbranch_scc1 {pf}_END_P2')
    for r in range(8):
        e(f'v_add_f32 v{32+r}, v{32+r}, v{40+r}')
    e(f's_cmp_eq_u32 s{S_WAVE}, {NW-1}')
    e(f's_cselect_b32 s{S_TMP}, 1, 0')
    e(f's_andn2_b32 s{S_TMP}, s{S_TMP}, s{S_PH}')
    e(f's_cmp_lg_u32 s{S_TMP}, 0')
    e(f's_cbranch_scc1 {pf}_P1NEXT')
    e(f's_cmp_lg_u32 s{S_FIRST}, 0')
    e(f's_cbranch_scc1 {pf}_PUB')
    part_addrs()
    e(f's_cmp_eq_u32 s{S_PH}, 0')
    e(f's_cbranch_scc1 {pf}_SP1')
    e('v_mov_b32 v14, v15')
    lab(f'{pf}_SP1')
    e(f'buffer_store_dwordx4 v[32:35], v14, s[{S_WS}:{S_WS+3}], s{S_TMP} offen')
    e(f'buffer_store_dwordx4 v[36:39], v14, s[{S_WS}:{S_WS+3}], s{S_TMP} offen offset:16')
    e('s_waitcnt vmcnt(0)')
    e(f's_branch {pf}_P1NEXT')
    lab(f'{pf}_PUB')
    e(f's_cmp_lg_u32 s{S_PH}, 0')
    e(f's_cbranch_scc1 {pf}_PUBB')
    for d in range(4):
        e(f'v_cvt_pk_bf16_f32 v{24+d}, v{32+2*d}, v{33+2*d}')
    e(f'v_mad_u32_u16 v14, v{V_ROWS}, s{S_128}, v{V_J}')
    e(f'v_add_u32 v14, s{S_ROW0}, v14')
    e(f'buffer_store_dwordx4 v[24:27], v14, s[{S_T1}:{S_T1+3}], 0 offen sc1')
    if DBL: e(f'buffer_store_dwordx4 v[24:27], v14, s[{S_T1}:{S_T1+3}], 0 offen')
    e(f'buffer_load_dwordx4 v[16:19], v14, s[{S_X}:{S_X+3}], 0 offen')
    if 'sig' in XP: stamp(7)
    e(f's_branch {pf}_SIG')
    lab(f'{pf}_PUBB')
    stamp(8)
    hd(8, 88); hd(7, 88, True)
    for d in range(4):
        e(f'v_cvt_pk_bf16_f32 v{28+d}, v{32+2*d}, v{33+2*d}')
    e(f'v_mad_u32_u16 v14, v{V_ROWS}, s{S_128}, v{V_J} op_sel:[1,0,0,0]')
    e(f'v_add_u32 v14, s{S_ROW0}, v14')
    e(f'buffer_store_dwordx4 v[28:31], v14, s[{S_T1}:{S_T1+3}], 0 offen sc1')
    if DBL: e(f'buffer_store_dwordx4 v[28:31], v14, s[{S_T1}:{S_T1+3}], 0 offen')
    e(f'buffer_load_dwordx4 v[20:23], v14, s[{S_X}:{S_X+3}], 0 offen')
    lab(f'{pf}_SIG')
    e(f's_add_u32 s{S_POST}, s{S_PH}, 1')
    e(f's_mov_b32 s{S_RET}, 4')
    e(f's_mov_b32 s{S_NOUT}, 0')
    e(f's_branch {pf}_POSTWORK')
    lab(f'{pf}_P1NEXT')
    e(f's_cmp_lg_u32 s{S_PH}, 0')
    e(f's_cbranch_scc1 {pf}_P1DONE')
    e(f's_mov_b32 s{S_PH}, 1')
    gate('A', 0, KA)
    e(f's_branch {pf}_SEG')
    lab(f'{pf}_P1DONE')
    e(f's_cmp_lg_u32 s{S_FIRST}, 0')
    e(f's_cbranch_scc1 {pf}_TOP2')
    lab(f'{pf}_NEXTROUND')
    e(f's_add_u32 s{S_ROUND}, s{S_ROUND}, 1')
    e('s_waitcnt vmcnt(0) lgkmcnt(0)')
    e('s_barrier')
    e(f's_branch {pf}_ROUND')
    lab(f'{pf}_TOP2')
    for i in range(4):
        e(f's_mov_b32 s{S_TAB+i}, s{S_T1+i}')
    e(f's_mov_b32 s{S_PASS}, 1')
    e(f's_mov_b32 s{S_ROUND}, 0')
    e(f's_mov_b32 s{S_PH}, 0')
    gate('B', 1, KB)
    e(f's_cmp_eq_u32 s{S_NR}, 0')
    e(f's_cbranch_scc1 {pf}_SEG')
    e(f's_mov_b32 s{S_RET}, 3')
    e(f's_mov_b32 s{S_NOUT}, 0')
    e(f's_branch {pf}_POSTWORK')
    lab(f'{pf}_RET3')
    e('s_waitcnt lgkmcnt(0)')
    e('s_barrier')
    e(f's_branch {pf}_ROUND')

    def wait3(k, tag):
        e(f's_cmp_eq_u32 s{S_NOUT}, 3')
        e(f's_cbranch_scc1 {pf}_W16{tag}')
        e(f's_cmp_eq_u32 s{S_NOUT}, 1')
        e(f's_cbranch_scc1 {pf}_W8{tag}')
        e(f's_waitcnt vmcnt({k})')
        lab(f'{pf}_W8{tag}')
        e(f's_waitcnt vmcnt({8+k})')
        lab(f'{pf}_W16{tag}')
        e(f's_waitcnt vmcnt({16+k})')
    lab(f'{pf}_POSTWORK')
    e(f's_cmp_eq_u32 s{S_POST}, 3')
    e(f's_cbranch_scc1 {pf}_PGEMM')
    e(f's_sub_u32 s{S_POST}, s{S_POST}, 1')
    e('v_mov_b32 v33, 1')
    e(f's_lshl_b32 s{S_TMP}, s{S_POST}, 2')
    e(f's_add_u32 s{S_TMP}, s{S_TMP}, {L_SYNC}')
    e(f'v_mov_b32 v34, s{S_TMP}')
    e(f's_lshl_b32 s{S_TMP2}, s{S_POST}, 13')
    e(f's_add_u32 s{S_TMP2}, s{S_TMP2}, {hex(WS_BAR)}')
    e(f's_and_b32 s{S_SPIN}, s2, 15')
    e(f's_lshl_b32 s{S_TMP}, s{S_SPIN}, 7')
    e(f's_add_u32 s{S_T}, s{S_TMP}, s{S_TMP2}')
    e(f's_cmp_lt_u32 s{S_SPIN}, {NB % 16}')
    e(f's_cselect_b32 s{S_SPIN}, {NB//16}, {NB//16 - 1}')
    e('v_and_b32 v36, 31, v0')
    e('v_lshlrev_b32 v36, 7, v36')
    e('s_waitcnt vmcnt(1)')
    e('s_mov_b64 exec, 1')
    e('ds_add_rtn_u32 v35, v34, v33')
    e('s_waitcnt lgkmcnt(0)')
    e(f'v_readfirstlane_b32 s{S_TMP}, v35')
    e(f's_sub_u32 s{S_TMP}, s{S_TMP}, s{S_POST}')
    e(f's_cmp_lg_u32 s{S_TMP}, 11')
    e(f's_cbranch_scc1 {pf}_NOSIG')
    if not DIRECT:
        e(f's_mov_b32 s{S_TMP}, 1')
        e(f's_atomic_add s{S_TMP}, s[12:13], s{S_T} glc')
        e('s_waitcnt lgkmcnt(0)')
        e(f's_cmp_lg_u32 s{S_TMP}, s{S_SPIN}')
        e(f's_cbranch_scc1 {pf}_NOSIG')
    e('s_mov_b32 exec_lo, -1')
    e(f'buffer_atomic_add v33, v36, s[{S_WS}:{S_WS+3}], s{S_TMP2} offen offset:2048')
    e('s_nop 1')
    lab(f'{pf}_NOSIG')
    e('s_mov_b64 exec, -1')
    e(f's_mul_i32 s{S_POST}, s{S_POST}, 3')
    e(f's_branch {pf}_P1NEXT')
    lab(f'{pf}_PGEMM')
    e(f's_mov_b32 s{S_POST}, 0')
    tile_regs(14, 15, 6)
    e('ds_write_b128 v14, v[24:27] offset:128')
    e(f'ds_write_b128 v14, v[28:31] offset:{8*ROW_STRIDE+128}')
    e('s_waitcnt vmcnt(17)')
    wait3(0, 'b')
    e('ds_write_b128 v14, v[16:19]')
    e(f'ds_write_b128 v14, v[20:23] offset:{8*ROW_STRIDE}')
    e('s_waitcnt lgkmcnt(0)')
    for r in range(16):
        e(f'v_mov_b32 v{ACCO+r}, 0')
    gemm_steps(range(4), 15, 6, 32, [36, 40, 44], lambda ks: (ks >> 1) * 128)
    lab(f'{pf}_POSTEND')
    e(f's_cmp_eq_u32 s{S_RET}, 2')
    e(f's_cbranch_scc1 {pf}_RET2')
    e(f's_cmp_eq_u32 s{S_RET}, 1')
    e(f's_cbranch_scc1 {pf}_RET1')
    e(f's_cmp_eq_u32 s{S_RET}, 4')
    e(f's_cbranch_scc1 {pf}_P1NEXT')
    e(f's_branch {pf}_RET3')
    lab(f'{pf}_END_P2')
    e(f's_cmp_lg_u32 s{S_PH}, 0')
    e(f's_cbranch_scc1 {pf}_P2DONE')
    if 'p2' in XP: stamp(7)
    e(f's_mov_b32 s{S_PH}, 1')
    e(f's_branch {pf}_SEG')
    lab(f'{pf}_P2DONE')
    e(f's_cmp_lg_u32 s{S_FIRST}, 0')
    e(f's_cbranch_scc1 {pf}_FINAL2')
    part_addrs()
    e(f'buffer_store_dwordx4 v[40:43], v15, s[{S_WS}:{S_WS+3}], s{S_TMP} offen')
    e(f'buffer_store_dwordx4 v[44:47], v15, s[{S_WS}:{S_WS+3}], s{S_TMP} offen offset:16')
    e(f's_cmp_eq_u32 s{S_WAVE}, {NW-1}')
    e(f's_cbranch_scc1 {pf}_NEXTROUND')
    e(f'buffer_store_dwordx4 v[32:35], v14, s[{S_WS}:{S_WS+3}], s{S_TMP} offen')
    e(f'buffer_store_dwordx4 v[36:39], v14, s[{S_WS}:{S_WS+3}], s{S_TMP} offen offset:16')
    e(f's_branch {pf}_NEXTROUND')

    lab(f'{pf}_FINAL2')
    if 'sig' not in XP: stamp(2)
    tile_regs(14, 15, 94)
    e('ds_read_b128 v[64:67], v14')
    e(f'ds_read_b128 v[68:71], v14 offset:{8*ROW_STRIDE}')
    e('v_and_b32 v93, 7, v0')
    e(f'v_lshl_add_u32 v93, v93, 3, s{S_PAIR}')
    e('v_bfe_u32 v92, v0, 3, 1')
    e(f'v_mul_u32_u24 v92, {(RA+8)*8}, v92')
    e('v_add_u32 v93, v93, v92')
    e('ds_read_b32 v93, v93')
    for f in range(8):
        e(f'ds_read_b128 v[{96+4*f}:{99+4*f}], v94 offset:{(16+f)*1024}')
    e('s_waitcnt lgkmcnt(9)')
    for h in range(2):
        for d in range(4):
            xs = 64 + 4*h + d
            e(f'v_lshlrev_b32 v88, 16, v{xs}')
            e(f'v_and_b32 v89, s{S_HI}, v{xs}')
            e(f'v_fma_f32 v88, 2.0, v{ACC[h]+2*d}, -v88')
            e(f'v_fma_f32 v89, 2.0, v{ACC[h]+2*d+1}, -v89')
            e(f'v_cvt_pk_bf16_f32 v{80+4*h+d}, v88, v89')
    e('ds_write_b128 v14, v[80:83] offset:128')
    e(f'ds_write_b128 v14, v[84:87] offset:{8*ROW_STRIDE+128}')
    e('ds_read_b128 v[72:75], v15 offset:128')
    e('ds_read_b128 v[76:79], v15 offset:192')
    mfma_run(16, 24, lambda ks: 72 + 4*(ks-4), ['d'] + ['A%d' % i for i in range(16, 24)] + ['w', 'w', 'B4', 'B5'], 94)
    if OCO:
        e('v_bfe_u32 v92, v0, 4, 2')
        e('v_lshl_add_u32 v15, v92, 4, v15')
        e(f'v_mad_u32_u16 v90, v{V_ROWS}, s{S_128}, v{V_J}')
        e(f'v_mad_u32_u16 v91, v{V_ROWS}, s{S_128}, v{V_J} op_sel:[1,0,0,0]')
        e(f'v_add_u32 v90, s{S_ROW0}, v90')
        e(f'v_add_u32 v91, s{S_ROW0}, v91')
        e('s_nop 3')
        for mt in range(4):
            e(f'v_cvt_pk_bf16_f32 v{64+2*mt}, v{ACCO+4*mt}, v{ACCO+4*mt+1}')
            e(f'v_cvt_pk_bf16_f32 v{65+2*mt}, v{ACCO+4*mt+2}, v{ACCO+4*mt+3}')
        e('ds_write_b128 v15, v[64:67]')
        e('ds_write_b128 v15, v[68:71] offset:16')
        e('ds_read_b128 v[72:75], v14')
        e(f'ds_read_b128 v[76:79], v14 offset:{8*ROW_STRIDE}')
        e('s_waitcnt lgkmcnt(0)')
        e(f'buffer_store_dwordx4 v[76:79], v91, s[{S_OUT}:{S_OUT+3}], 0 offen ' + OPOL)
        e(f's_cmp_eq_u32 s{S_WAVE}, {NW-1}')
        e(f's_cbranch_scc1 {pf}_END')
        e(f'buffer_store_dwordx4 v[72:75], v90, s[{S_OUT}:{S_OUT+3}], 0 offen ' + OPOL)
    else:
        e('v_and_b32 v93, 255, v93')
        e('v_bfe_u32 v14, v0, 4, 2')
        e('v_lshlrev_b32 v14, 5, v14')
        e('v_lshl_add_u32 v14, v93, 7, v14')
        e(f'v_add_u32 v14, s{S_ROW0}, v14')
        e(f'v_cmp_gt_u32 vcc, {R}, v93')
        e('s_and_b64 exec, exec, vcc')
        e('s_nop 7')
        for mt in range(4):
            e(f'v_cvt_pk_bf16_f32 v{64+2*mt}, v{ACCO+4*mt}, v{ACCO+4*mt+1}')
            e(f'v_cvt_pk_bf16_f32 v{65+2*mt}, v{ACCO+4*mt+2}, v{ACCO+4*mt+3}')
        e(f'buffer_store_dwordx4 v[64:67], v14, s[{S_OUT}:{S_OUT+3}], 0 offen ' + OPOL)
        e(f'buffer_store_dwordx4 v[68:71], v14, s[{S_OUT}:{S_OUT+3}], 0 offen offset:16 ' + OPOL)
    lab(f'{pf}_END')
    if HD:
        e('s_waitcnt vmcnt(0)')
        hd(14, 88); hd(13, 88, True)
    dump_stamps(1, S_WS)
    lab(f'{pf}_END2')
    e('s_endpgm')
    out.extend(cold)
    lab('M_CODE_END')

WPC = K1T // 2 if K1T == 512 else 768
NWP = 1536 // WPC
def gen_wprep():
    e(f's_cmp_gt_u32 s2, {NC+NWP-1}')
    e('s_cbranch_scc1 K1_CPF')
    e('s_load_dwordx2 s[10:11], s[0:1], 32')
    e('s_load_dwordx2 s[12:13], s[0:1], 56')
    e(f's_sub_u32 s36, s2, {NC}')
    e(f's_mul_i32 s36, s36, {WPC}')
    e(f'v_cmp_gt_u32 vcc, {WPC}, v0')
    e('s_and_saveexec_b64 s[40:41], vcc')
    e('s_cbranch_execz K1_ZBAR')
    e('v_add_u32 v1, s36, v0')
    e('v_lshrrev_b32 v2, 6, v1')
    e('v_and_b32 v3, 3, v2')
    e('v_lshrrev_b32 v4, 2, v2')
    e('v_and_b32 v5, 15, v1')
    e('v_bfe_u32 v6, v1, 4, 2')
    e('v_lshrrev_b32 v7, 2, v5')
    e('v_lshlrev_b32 v7, 4, v7')
    e('v_lshl_add_u32 v7, v3, 2, v7')
    e('v_and_b32 v8, 3, v5')
    e('v_add_u32 v7, v7, v8')
    e('v_readfirstlane_b32 s38, v4')
    e('v_lshlrev_b32 v9, 12, v4')
    e('s_waitcnt lgkmcnt(0)')
    srd(16, 10, 11, 3 * 64 * 64 * 2)
    srd(28, 12, 13, WS_SIZE)
    e(f's_mov_b32 s37, {hex(WS_WT)}')
    e('s_lshr_b32 s38, s38, 1')
    e('s_cmp_eq_u32 s38, 1')
    e('s_cbranch_scc1 K2_WP')
    e('v_lshl_add_u32 v9, v6, 10, v9')
    e('v_lshl_add_u32 v9, v7, 1, v9')
    for j in range(8):
        e(f'buffer_load_ushort v{10+j}, v9, s[16:19], 0 offen offset:{j*128}')
    e('s_branch K2_WQ')
    lab('K2_WP')
    e('v_lshl_add_u32 v9, v6, 7, v9')
    e('v_lshl_add_u32 v9, v7, 1, v9')
    for j in range(8):
        e(f'buffer_load_ushort v{10+j}, v9, s[16:19], 0 offen offset:{(j&3)*1024 + (j>>2)*512}')
    lab('K2_WQ')
    e('s_waitcnt vmcnt(0)')
    for j in range(4):
        e(f'v_lshl_or_b32 v{20+j}, v{11+2*j}, 16, v{10+2*j}')
    e('v_lshlrev_b32 v1, 4, v1')
    e('buffer_store_dwordx4 v[20:23], v1, s[28:31], s37 offen')
    e('s_endpgm')
    lab('K1_ZBAR')
    e('s_mov_b64 exec, -1')
    e('v_and_b32 v1, 255, v0')
    e('v_lshlrev_b32 v1, 4, v1')
    for i in range(4):
        e(f'v_mov_b32 v{4+i}, 0')
    e('s_waitcnt lgkmcnt(0)')
    srd(28, 12, 13, WS_SIZE)
    e(f's_mov_b32 s37, {hex(WS_BAR)}')
    e('buffer_store_dwordx4 v[4:7], v1, s[28:31], s37 offen')
    for k in range(1, 4):
        e(f's_mov_b32 s37, {hex(WS_BAR+4096*k)}')
        e('buffer_store_dwordx4 v[4:7], v1, s[28:31], s37 offen')

S_NST = 74
S_PAIR = 75
def part_addrs():
    e(f'v_mad_u32_u16 v14, v{V_ROWS}, s{S_128}, v{V_J}')
    e(f'v_mad_u32_u16 v15, v{V_ROWS}, s{S_128}, v{V_J} op_sel:[1,0,0,0]')
    e('v_lshlrev_b32 v14, 1, v14')
    e('v_lshlrev_b32 v15, 1, v15')
    e(f's_lshl_b32 s{S_TMP}, s{S_ROW0}, 1')
    e(f's_add_u32 s{S_TMP}, s{S_TMP}, {hex(WS_PART)}')

def kd(name, vgpr, sgpr):
    out.append('.p2align 6')
    out.append(f'.amdhsa_kernel {name}')
    out.append(f'  .amdhsa_next_free_vgpr {vgpr}')
    out.append(f'  .amdhsa_next_free_sgpr {sgpr}')
    out.append(f'  .amdhsa_accum_offset {(vgpr+3)//4*4}')
    out.append('  .amdhsa_group_segment_fixed_size 0')
    out.append('  .amdhsa_kernarg_size 64')
    out.append('  .amdhsa_user_sgpr_count 2')
    out.append('  .amdhsa_user_sgpr_kernarg_segment_ptr 1')
    out.append('  .amdhsa_system_sgpr_workgroup_id_x 1')
    out.append('.end_amdhsa_kernel')

hdr = open('standalone__spectral_conv_chebnet__graph.s.ref').read().split('\n')
for l in hdr:
    if l.startswith(';') and '@launch' not in l and 'Override launch' not in l and 'grid=ceil' not in l:
        out.append(l)
    elif not l.startswith(';'):
        break
G1 = NC + NWP + (8 if CPF else 0)
out.append(f'; @launch kernel=part_kernel grid=({G1},1,1) block=({K1T},1,1) lds={4096+32768}')
out.append(f'; @launch kernel=main_kernel grid=({NB},1,1) block=({NT},1,1) lds={L_END3}')
out.append('.amdgcn_target "amdgcn-amd-amdhsa--gfx950"')
out.append('.text')
gen_k1()
gen_main()
out.append('.section .rodata,"a"')
kd('part_kernel', max(64, K1_VGPR), 102 if (INSTR or HD) else 72)
kd('main_kernel', 128, 102 if (INSTR or HD) else 88)
dst = sys.argv[1] if len(sys.argv) > 1 else 'standalone__spectral_conv_chebnet__graph.s'
open(dst, 'w').write('\n'.join(out) + '\n')
print('wrote', dst, len(out), 'lines')
```
